```python
import torch

def _softmax(x, axis=-1):
    return torch.softmax(x, dim=axis)
def _gelu(x):
    return torch.nn.functional.gelu(x, approximate="tanh")
def _silu(x):
    return torch.nn.functional.silu(x)
def _sigmoid(x):
    return torch.sigmoid(x)
def _layernorm(x, axis=-1, eps=1e-5):
    m = x.mean(dim=axis, keepdim=True)
    v = x.var(dim=axis, keepdim=True, unbiased=False)
    return (x - m) / torch.sqrt(v + eps)
def _scatter_add(tgt, idx, src, axis=0):
    return tgt.clone().index_add_(axis, idx, src)
def _segment_sum(src, seg, n):
    out = torch.zeros((n,) + src.shape[1:], dtype=src.dtype)
    return out.index_add_(0, seg, src)
def _pad(x, pw):
    flat = tuple(v for pair in reversed(pw) for v in pair)
    return torch.nn.functional.pad(x, flat)

kernel_name = 'parallel_sum__linear_kernel_hedgehog__glu_gated_reglu__prompt'

def setup_inputs():

    _w = (lambda a: (lambda t: t.to(torch.bfloat16) if t.is_floating_point() else t)(torch.as_tensor(a)))
    def _A_setup():
        B, S, D, H = 1, 2048, 640, 32
        Dh = D // H
        return {
            "x": _w((lambda *s: torch.randn(*s, dtype=torch.bfloat16) * 0.05)(B, S, D)),
            "wqkv": _w((lambda *s: torch.randn(*s, dtype=torch.bfloat16) * 0.2)(D, 3 * D)),
            "w_phi": _w((lambda *s: torch.randn(*s, dtype=torch.bfloat16) * 0.2)(H, Dh, Dh) * (Dh ** -0.5)),
            "wo": _w((lambda *s: torch.randn(*s, dtype=torch.bfloat16) * 0.05)(D, D)),
        }
    _A_in = _A_setup()

    def _B_setup():
        B, S, D, F = 1, 2048, 640, 1728
        return {
            "x": _w((lambda *s: torch.randn(*s, dtype=torch.bfloat16) * 0.05)(B, S, D)),
            "W_gate": _w((lambda *s: torch.randn(*s, dtype=torch.bfloat16) * 0.4)(D, F) * (2.0 / D) ** 0.5),
            "W_up": _w((lambda *s: torch.randn(*s, dtype=torch.bfloat16) * 0.4)(D, F) * (2.0 / D) ** 0.5),
            "W_down": _w((lambda *s: torch.randn(*s, dtype=torch.bfloat16) * 0.4)(F, D) * (1.0 / F) ** 0.5),
        }
    _B_in = _B_setup()

    return {
        "A_x": _A_in["x"],
        "A_wqkv": _A_in["wqkv"],
        "A_w_phi": _A_in["w_phi"],
        "A_wo": _A_in["wo"],
        "B_x": _B_in["x"],
        "B_W_gate": _B_in["W_gate"],
        "B_W_up": _B_in["W_up"],
        "B_W_down": _B_in["W_down"],
    }

def reference(A_x, A_wqkv, A_w_phi, A_wo, B_x, B_W_gate, B_W_up, B_W_down):
    def _A_ref(x, wqkv, w_phi, wo):
        B, S, D = x.shape
        H = 32; Dh = D // H
        qkv = (lambda x, *d: x.permute(*d))((x @ wqkv).reshape(B, S, 3, H, Dh), 2, 0, 3, 1, 4)
        q, k, v = qkv[0], qkv[1], qkv[2]
        pq = torch.einsum("bhsd,hdf->bhsf", q, w_phi)
        pk = torch.einsum("bhsd,hdf->bhsf", k, w_phi)
        phi_q = torch.concatenate([_softmax(pq, axis=-1), _softmax(-pq, axis=-1)], axis=-1)
        phi_k = torch.concatenate([_softmax(pk, axis=-1), _softmax(-pk, axis=-1)], axis=-1)
        kv = torch.einsum("bhsf,bhsd->bhfd", phi_k, v)
        z  = torch.einsum("bhsf->bhf", phi_k)
        num = torch.einsum("bhqf,bhfd->bhqd", phi_q, kv)
        den = torch.einsum("bhqf,bhf->bhq", phi_q, z)[..., None] + 1e-6
        o = num / den
        return (lambda x, *d: x.permute(*d))(o, 0, 2, 1, 3).reshape(B, S, D) @ wo

    def _B_ref(x, W_gate, W_up, W_down):
        gate = torch.einsum("bsd,df->bsf", x, W_gate)
        up = torch.einsum("bsd,df->bsf", x, W_up)
        gate = gate * (lambda x, dt: x.to(dt))(gate > 0, gate.dtype)
        h = gate * up
        return torch.einsum("bsf,fd->bsd", h, W_down)

    x = A_x
    xn = _layernorm(x, axis=-1)
    return x + _A_ref(xn, A_wqkv, A_w_phi, A_wo) + _B_ref(xn, B_W_gate, B_W_up, B_W_down)
```

```python
import re

REG_RE = re.compile(r'^(-|abs\(|\|)?([vas])(\d+)\)?\|?$')
RNG_RE = re.compile(r'^(-)?([vas])\[(\d+):(\d+)\]$')

def regs_of(op):
    op = op.strip()
    m = RNG_RE.match(op)
    if m:
        return [(m.group(2), i) for i in range(int(m.group(3)), int(m.group(4)) + 1)]
    m = REG_RE.match(op)
    if m:
        return [(m.group(2), int(m.group(3)))]
    if op in ('vcc',):
        return [('x', 'vcc')]
    if op in ('exec',):
        return [('x', 'exec')]
    if op == 'm0':
        return [('x', 'm0')]
    return []

TRANS = ('v_exp_f32', 'v_rcp_f32', 'v_rsq_f32', 'v_sqrt_f32', 'v_log_f32')
DLOPS = ('v_dot2c_f32_bf16', 'v_dot2_f32_bf16')

class I:
    __slots__ = ('text', 'op', 'kind', 'rd', 'wr', 'tag', 'passes', 'waitfor', 'cost', 'meta', 'offpath')
    def __init__(self, text, tag=None, waitfor=None, cost=None):
        self.text = text.strip()
        self.tag = tag
        self.waitfor = waitfor
        self.meta = None
        self.offpath = False
        t = self.text.split(';')[0].strip()
        self.passes = 0
        if t.endswith(':') or t.startswith('.') or t == '':
            self.op = ''
            self.kind = 'label'
            self.rd = []; self.wr = []; self.cost = 0
            return
        parts = t.split(None, 1)
        op = parts[0]
        op = re.sub(r'_(e32|e64|dpp|sdwa)$', '', op)
        self.op = op
        rest = parts[1] if len(parts) > 1 else ''
        ops = [o.strip() for o in rest.split(',')] if rest else []
        mods = ''
        if ops:
            last = ops[-1].split()
            if last:
                ops[-1] = last[0]
                mods = ' '.join(last[1:])
        R = lambda idxs: [r for i in idxs if i < len(ops) for r in regs_of(ops[i])]
        allidx = list(range(len(ops)))
        rd, wr = [], []
        c = 4
        if op.startswith('v_mfma'):
            self.kind = 'mfma'
            self.passes = 8 if '32x32' in op else 4
            wr = R([0]); rd = R([1, 2, 3]); c = 8
        elif op.startswith('v_cmp'):
            self.kind = 'valu'; wr = R([0]); rd = R(allidx[1:])
        elif op.startswith('v_permlane'):
            self.kind = 'valu'; wr = R([0, 1]); rd = R([0, 1])
        elif op in ('v_fmac_f32',):
            self.kind = 'valu'; wr = R([0]); rd = R(allidx)
        elif op in ('v_dot2c_f32_bf16',):
            self.kind = 'dl'; wr = R([0]); rd = R(allidx)
        elif op in DLOPS:
            self.kind = 'dl'; wr = R([0]); rd = R(allidx[1:])
        elif op in ('v_add_co_u32', 'v_sub_co_u32'):
            self.kind = 'valu'; wr = R([0, 1]); rd = R(allidx[2:])
        elif op in ('v_addc_co_u32',):
            self.kind = 'valu'; wr = R([0, 1]); rd = R(allidx[2:])
        elif op.startswith('v_'):
            self.kind = 'trans' if op in TRANS else 'valu'
            wr = R([0]); rd = R(allidx[1:])
            if op in TRANS: c = 8
        elif op.startswith('ds_read'):
            self.kind = 'ds_read'; wr = R([0]); rd = R([1])
        elif op.startswith('ds_'):
            self.kind = 'ds_write'; rd = R(allidx)
        elif op.startswith('buffer_load') or op.startswith('global_load'):
            if ' lds' in ' ' + mods or op.startswith('global_load_lds'):
                self.kind = 'dma'; rd = R(allidx) + [('x', 'm0')]; c = 14
            else:
                self.kind = 'vload'; wr = R([0]); rd = R(allidx[1:]); c = 8
        elif op.startswith('buffer_store') or op.startswith('global_store'):
            self.kind = 'vstore'; rd = R(allidx); c = 8
        elif op.startswith('buffer_atomic') or op.startswith('global_atomic'):
            if 'sc0' in mods.split():
                self.kind = 'vload'; wr = R([0]); rd = R(allidx)
            else:
                self.kind = 'vstore'; rd = R(allidx)
            c = 8
        elif op in ('buffer_inv', 'buffer_wbl2'):
            self.kind = 'vstore'
        elif op == 's_waitcnt':
            self.kind = 'wait'
        elif op == 's_barrier':
            self.kind = 'barrier'
        elif op == 's_nop':
            self.kind = 'nop'; c = 4 * (int(ops[0], 0) + 1)
        elif op.startswith('s_cbranch') or op in ('s_branch', 's_endpgm', 's_setpc_b64'):
            self.kind = 'branch'; rd = R(allidx)
        elif op.startswith('s_load') or op in ('s_memtime', 's_memrealtime'):
            self.kind = 'smem'; wr = R([0]); rd = R(allidx[1:])
        elif op.startswith('s_cmp') or op in ('s_sleep', 's_setprio'):
            self.kind = 'salu'; rd = R(allidx)
        elif op.startswith('s_'):
            self.kind = 'salu'; wr = R([0]); rd = R(allidx[1:])
            if 'saveexec' in op:
                wr = wr + [('x', 'exec')]; rd = rd + [('x', 'exec')]
        else:
            raise ValueError('unknown op ' + self.text)
        self.rd = rd; self.wr = wr
        self.cost = c if cost is None else cost
    def __repr__(self):
        return self.text

class WaitTag:
    def __init__(self, tags, lgkm0=False):
        self.tags = set(tags) if not isinstance(tags, str) else {tags}
        self.lgkm0 = lgkm0
        self.kind = 'waittag'; self.cost = 4; self.rd = []; self.wr = []; self.op = ''; self.passes = 0
        self.text = f'; waittag {self.tags}'
        self.offpath = False
        self.tag = None

VM_KINDS = ('vload', 'vstore', 'dma')
LG_KINDS = ('ds_read', 'ds_write')

def insert_waits(code, report=None):
    out = []
    vm = []
    lg = []
    smem_pending = set()
    def emit_wait(vmn=None, lgn=None):
        parts = []
        if vmn is not None:
            vmn = min(vmn, 63); parts.append(f'vmcnt({vmn})')
            del vm[:max(0, len(vm) - vmn)]
        if lgn is not None:
            lgn = min(lgn, 15); parts.append(f'lgkmcnt({lgn})')
            del lg[:max(0, len(lg) - lgn)]
            if lgn == 0: smem_pending.clear()
        w = I('s_waitcnt ' + ' '.join(parts))
        out.append(w)
    for ins in code:
        if ins.offpath:
            out.append(ins); continue
        if isinstance(ins, WaitTag):
            need = None
            for k, o in enumerate(vm):
                if o.tag in ins.tags: need = k
            vmn = None if need is None else len(vm) - 1 - need
            lgn = 0 if (ins.lgkm0 and (lg or smem_pending)) else None
            if vmn is not None or lgn is not None:
                emit_wait(vmn, lgn)
            continue
        if ins.kind == 'wait':
            m = re.search(r'vmcnt\((\d+)\)', ins.text)
            if m: del vm[:max(0, len(vm) - int(m.group(1)))]
            m = re.search(r'lgkmcnt\((\d+)\)', ins.text)
            if m:
                n = int(m.group(1)); del lg[:max(0, len(lg) - n)]
                if n == 0: smem_pending.clear()
            out.append(ins); continue
        if ins.kind in ('label', 'branch') :
            out.append(ins); continue
        touched = set(ins.rd) | set(ins.wr)
        vmn = lgn = None
        for k, o in enumerate(vm):
            if o.kind == 'vload' and touched & set(o.wr):
                if ins.kind == 'vload' and not (set(ins.rd) & set(o.wr)): continue
                vmn = len(vm) - 1 - k
        for k, o in enumerate(lg):
            if o.kind == 'ds_read' and touched & set(o.wr):
                if ins.kind == 'ds_read' and not (set(ins.rd) & set(o.wr)): continue
                lgn = len(lg) - 1 - k
        if touched & smem_pending: lgn = 0
        if ins.kind in LG_KINDS and len(lg) >= 15: lgn = 14 if lgn is None else min(lgn, 14)
        if ins.kind in VM_KINDS and len(vm) >= 63: vmn = 62 if vmn is None else min(vmn, 62)
        if vmn is not None or lgn is not None:
            emit_wait(vmn, lgn)
        out.append(ins)
        if ins.kind in VM_KINDS: vm.append(ins)
        elif ins.kind in LG_KINDS:
            lg.append(ins)
            if len(lg) > 15 and report is not None: report.append(f'lgkm overflow at {ins.text}')
        elif ins.kind == 'smem': smem_pending |= set(ins.wr)
        if len(vm) > 63 and report is not None: report.append(f'vmcnt overflow at {ins.text}')
    return out

def states(ins):
    if ins.kind == 'label': return 0
    if ins.kind == 'nop': return ins.cost // 4
    return 1

def insert_hazard_nops(code, report=None):
    out = []
    hist = []
    pos = 0
    def need_between(p, c):
        n = 0
        pw = set(p.wr); cr = set(c.rd); cw = set(c.wr)
        vw = {r for r in pw if r[0] in 'va'}
        if p.kind == 'mfma':
            big = {2: 5, 4: 8, 8: 12, 16: 20}[p.passes]
            if c.kind == 'mfma':
                ops = c.text.split(None, 1)[1].split(',')
                a = set(regs_of(ops[1])) | set(regs_of(ops[2])); cc = regs_of(ops[3].split()[0])
                if vw & a: n = max(n, big)
                if vw & set(cc):
                    same = (cc == list(p.wr)) and c.passes == p.passes
                    n = max(n, 0 if same else {2: 4, 4: 6, 8: 10, 16: 18}[p.passes])
            else:
                if vw & (cr | cw): n = max(n, big)
        if p.kind == 'mfma' and c.kind in ('valu', 'trans', 'dl'):
            ops = p.text.split(None, 1)[1].split(',')
            cc = set(regs_of(ops[3].split()[0]))
            if cc & cw: n = max(n, {2: 1, 4: 3, 8: 7, 16: 15}[p.passes])
        if p.kind in ('valu', 'trans', 'dl'):
            if c.kind == 'mfma' and vw & cr: n = max(n, 2)
            if c.op.startswith('v_permlane') and vw & cr: n = max(n, 2)
            if c.op in ('v_readfirstlane_b32', 'v_readlane_b32') and vw & cr: n = max(n, 1)
            if p.kind == 'trans' and c.kind in ('valu', 'dl', 'mfma') and vw & cr: n = max(n, 1)
            if p.kind == 'dl' and vw & (cr | cw):
                if not (c.op == p.op and c.op == 'v_dot2c_f32_bf16' and vw & cw and not (vw & (cr - cw))): n = max(n, 3)
            sw = {r for r in pw if r[0] == 's' or r == ('x', 'vcc')}
            if sw:
                if c.kind in VM_KINDS and sw & cr: n = max(n, 5)
                if c.kind in ('valu', 'trans', 'dl') and sw & cr: n = max(n, 2)
                if c.op in ('v_readlane_b32', 'v_writelane_b32') and sw & cr: n = max(n, 4)
            if ('x', 'exec') in pw and c.kind == 'mfma': n = max(n, 4)
        if p.kind == 'vstore' and 'x4' in p.op or (p.kind == 'vstore' and 'x3' in p.op):
            ops = p.text.split(None, 1)[1].split(',')
            data = set(regs_of(ops[0].strip()))
            if data & cw: n = max(n, 2 if c.kind in ('valu', 'trans', 'dl') else 1)
        if p.kind == 'salu' and ('x', 'm0') in pw and c.kind == 'dma': n = max(n, 1)
        if p.kind == 'salu' and ('x', 'exec') in pw and c.kind in ('valu', 'trans', 'dl', 'mfma') and False: n = max(n, 0)
        return n
    for ins in code:
        if ins.kind == 'label':
            out.append(ins); continue
        req = 0
        for (p, ppos) in reversed(hist):
            d = pos - ppos - 1
            if d >= 20: break
            n = need_between(p, ins)
            if n > d: req = max(req, n - d)
        if req:
            if report is not None: report.append(f'nop {req} before: {ins.text}')
            r = req
            while r > 0:
                k = min(r, 16)
                nop = I(f's_nop {k-1}')
                out.append(nop); pos += k; r -= k
        out.append(ins)
        hist.append((ins, pos))
        pos += states(ins)
        if len(hist) > 64: del hist[:32]
    return out

def weave(main, fillers, lead=0):
    ng = len(main)
    base = [sum(i.cost for i in g) for g in main]
    items = list(fillers)
    total_fill = sum(sum(x.cost for x in (it[1] if isinstance(it[1], list) else [it[1]])) for it in items)
    total = sum(base) + total_fill
    out = []
    k = 0
    acc = 0.0
    done_cost = 0
    for g in range(ng):
        out.extend(main[g]); done_cost += base[g]
        target = total * (g + 1) / ng
        while k < len(items):
            mn, it = items[k]
            c = sum(x.cost for x in (it if isinstance(it, list) else [it]))
            if mn > g: break
            if done_cost + c / 2 > target and g < ng - 1: break
            out.extend(it if isinstance(it, list) else [it]); done_cost += c; k += 1
    while k < len(items):
        it = items[k][1]; out.extend(it if isinstance(it, list) else [it]); k += 1
    return out

def est_cycles(code):
    t = 0; mf_free = 0
    for i in code:
        if i.kind == 'label': continue
        if i.kind == 'mfma':
            t = max(t, mf_free); mf_free = t + 4 * i.passes; t += 8
        else:
            t += i.cost
    return max(t, mf_free)

def render(code):
    lines = []
    for i in code:
        if i.kind == 'label': lines.append(i.text)
        else: lines.append('    ' + i.text)
    return '\n'.join(lines) + '\n'

def offpath(lst):
    for i in lst: i.offpath = True
    return lst
```

```python
from ir import *
from layout import *
from k2 import emit_wgmap, Stamps, finish, kd

XF0 = 96
XF = lambda s: XF0 + 4 * s
def vr(b, n=4): return f'v[{b}:{b+n-1}]'
def ar(b, n=4): return f'a[{b}:{b+n-1}]'

S_X, S_WQKV, S_WPHI, S_WO, S_BX, S_WG, S_WU, S_WD = 16, 18, 20, 22, 24, 26, 28, 30
S_DBG, S_WS = 32, 34
S_WAVE, S_I, S_J, S_T0, S_T1, S_T2 = 36, 37, 38, 39, 40, 41
SRD_X = 44
SRD_W = 48
SRD_W2 = 52
SRD_ACT = 56
S_SOFF, S_SOFF2, S_ROLE = 8, 9, 10
SRD_T = 4
SRD_T2 = 12
V_LANE, V_T, V_HH = 1, 2, 3
V_R, V_C = 4, 5
V_ACTL = 6
V_DMA = 8
V_AF = 14
V_TMP = 32

class Ring:
    def __init__(self, lo, hi, first_at=None):
        self.lo, self.hi = lo, hi
        self.pos = lo
        self.first_at = first_at
        self.alloc = []
    def add(self, size):
        if not self.alloc and self.first_at is not None:
            base = self.first_at
        else:
            base = self.pos
            if base + size > self.hi: base = self.lo
        self.alloc.append((base, size))
        self.pos = base + size
        if self.pos >= self.hi: self.pos = self.lo
        return base
    def free_after(self, n):
        b, s = self.alloc[n]
        last = -1
        for m in range(n):
            bm, sm = self.alloc[m]
            if bm < b + s and b < bm + sm: last = m
        return last

def prologue(c, st):
    A = lambda t, **k: c.append(I(t, **k))
    A('s_load_dwordx16 s[16:31], s[0:1], 0')
    A('s_load_dwordx4 s[32:35], s[0:1], 72')
    A(f'v_and_b32 v{V_LANE}, 63, v0')
    A('v_lshrrev_b32 v7, 6, v0')
    A(f'v_and_b32 v{V_T}, 31, v{V_LANE}')
    A(f'v_readfirstlane_b32 s{S_WAVE}, v7')
    A(f'v_lshrrev_b32 v{V_HH}, 5, v{V_LANE}')
    emit_wgmap(c, S_I, S_J, S_T0)
    A(f'v_lshrrev_b32 v32, 3, v{V_LANE}')
    A(f'v_and_b32 v33, 7, v{V_LANE}')
    A('v_lshrrev_b32 v34, 1, v32')
    A('v_xor_b32 v33, v33, v34')
    A('v_mul_u32_u24 v32, 1280, v32')
    for q in range(4):
        A(f'v_xor_b32 v35, {4*(q&1)}, v33')
        A(f'v_lshl_add_u32 v35, v35, 4, v32')
        A(f'v_add_u32 v{V_DMA+q}, {q*(8*1280-1024)}, v35')
    A(f's_lshl_b32 s{S_T0}, s{S_I}, 2'); A(f's_add_u32 s{S_T0}, s{S_T0}, s{S_WAVE}')
    A(f's_mul_i32 s{S_T1}, s{S_T0}, {32*1280}')
    A('s_waitcnt lgkmcnt(0)')
    A(f's_add_u32 s{SRD_X}, s{S_X}, s{S_T1}'); A(f's_addc_u32 s{SRD_X+1}, s{S_X+1}, 0')
    A(f's_mov_b32 s{SRD_X+2}, {32*1280}'); A(f's_mov_b32 s{SRD_X+3}, 0x00020000')
    A(f's_lshl_b32 s{S_T2}, s{S_WAVE}, 12')
    for b in range(8): c.extend(x_dma(b))

def x_dma(b):
    r = [I(f's_add_u32 m0, s{S_T2}, {(b % 8) * 16384}'), I(f's_mov_b32 s{S_SOFF}, {b*128}')]
    for q in range(4):
        r.append(I(f'buffer_load_dwordx4 v{V_DMA+q}, s[{SRD_X}:{SRD_X+3}], s{S_SOFF} offen offset:{q*1024} lds', tag=f'x{b}'))
    return r

def x_consume(c, st, mid=None):
    A = lambda t, **k: c.append(I(t, **k))
    A(f'v_lshrrev_b32 v32, 1, v{V_T}'); A('v_and_b32 v32, 7, v32'); A(f'v_xor_b32 v32, v{V_HH}, v32')
    A(f'v_lshlrev_b32 v33, 7, v{V_T}'); A(f'v_add_u32 v33, s{S_T2}, v33')
    for sub in range(4):
        A(f'v_xor_b32 v34, {2*sub}, v32'); A(f'v_lshl_add_u32 v{36+sub}, v34, 4, v33')
        A(f'v_add_u32 v{40+sub}, 0x10000, v{36+sub}')
    A('v_mov_b32 v44, 0x3f803f80')
    for k in range(8): A(f'v_mov_b32 v{48+k}, 0')
    for b in range(10):
        c.append(WaitTag(f'x{b}'))
        for sub in range(4):
            off = (b % 8) * 16384
            A(f'ds_read_b128 {vr(XF(4*b+sub))}, v{(36 if off < 65536 else 40)+sub} offset:{off & 0xffff}')
        if b in (0, 1):
            A('s_waitcnt lgkmcnt(0)')
            c.extend(x_dma(b + 8))
        for k in range(16):
            x = XF(4 * b) + k
            A(f'v_dot2c_f32_bf16 v{48 + (k & 3)}, v{x}, v44')
            A(f'v_dot2c_f32_bf16 v{52 + (k & 3)}, v{x}, v{x}')
        if mid and b in mid: c.extend(mid[b])

def ln_finalize(c):
    A = lambda t, **k: c.append(I(t, **k))
    A('v_add_f32 v48, v48, v49'); A('v_add_f32 v50, v50, v51'); A('v_add_f32 v52, v52, v53'); A('v_add_f32 v54, v54, v55')
    A('v_add_f32 v48, v48, v50'); A('v_add_f32 v52, v52, v54')
    A('v_permlane32_swap_b32 v48, v52')
    A('v_add_f32 v48, v48, v52')
    A('v_mov_b32 v49, v48')
    A('v_permlane32_swap_b32 v48, v49')
    A(f'v_mul_f32 v48, {1.0/640!r}, v48')
    A(f'v_mul_f32 v49, {1.0/640!r}, v49')
    A('v_fma_f32 v49, -v48, v48, v49')
    A('v_max_f32 v49, 0, v49')
    A('v_add_f32 v49, 0x3727c5ac, v49')
    A(f'v_rsq_f32 v{V_R}, v49')
    A(f'v_mul_f32 v{V_C}, v48, v{V_R}'); A(f'v_sub_f32 v{V_C}, 0, v{V_C}')

def ln_norm(s, t0):
    r = []
    for k in range(4):
        x = XF(s) + k
        r += [I(f'v_lshlrev_b32 v{t0+2*k}, 16, v{x}'), I(f'v_and_b32 v{t0+2*k+1}, 0xffff0000, v{x}')]
    for k in range(8): r.append(I(f'v_fma_f32 v{t0+k}, v{t0+k}, v{V_R}, v{V_C}'))
    for k in range(4): r.append(I(f'v_cvt_pk_bf16_f32 v{XF(s)+k}, v{t0+2*k}, v{t0+2*k+1}'))
    return r

def act_lane_offset(c):
    A = lambda t, **k: c.append(I(t, **k))
    A(f'v_lshrrev_b32 v32, 4, v{V_T}'); A(f'v_mul_u32_u24 v32, {NKS*1024}, v32')
    A(f'v_and_b32 v33, 15, v{V_T}'); A(f'v_lshl_add_u32 v33, v{V_HH}, 4, v33')
    A(f'v_lshl_add_u32 v{V_ACTL}, v33, 4, v32')
    A(f's_lshl_b32 s{S_T0}, s{S_I}, 2'); A(f's_add_u32 s{S_T0}, s{S_T0}, s{S_WAVE}')
    A(f's_mul_i32 s{S_T0}, s{S_T0}, {2*NKS*1024}')
    A(f's_add_u32 s{SRD_ACT}, s{S_WS}, s{S_T0}'); A(f's_addc_u32 s{SRD_ACT+1}, s{S_WS+1}, 0')
    A(f's_mov_b32 s{SRD_ACT+2}, {2*NKS*1024}'); A(f's_mov_b32 s{SRD_ACT+3}, 0x00020000')

def wp_task_setup(c, vbase):
    A = lambda t, **k: c.append(I(t, **k))
    A(f's_lshl_b32 s60, s2, 2'); A(f's_add_u32 s60, s60, s{S_WAVE}')
    A('s_mul_hi_u32 s61, s60, 0x1999999a')
    A('s_mul_i32 s62, s61, 10'); A('s_sub_u32 s62, s60, s62')
    A('s_cmp_lt_u32 s61, 54')
    A(f's_cselect_b32 s{SRD_T}, s{S_WD}, s{S_WO}'); A(f's_cselect_b32 s{SRD_T+1}, s{S_WD+1}, s{S_WO+1}')
    A(f's_mov_b32 s63, {D*1280}'); A(f's_cselect_b32 s{SRD_T+2}, {F*1280}, s63')
    A(f's_mov_b32 s{SRD_T+3}, 0x00020000')
    A('s_cmp_lt_u32 s61, 74'); A(f's_cselect_b32 s{SRD_T+2}, s{SRD_T+2}, 0')
    A(f'v_lshrrev_b32 v32, 3, v{V_LANE}'); A(f'v_and_b32 v33, 7, v{V_LANE}')
    A('v_lshrrev_b32 v34, 2, v32'); A('v_and_b32 v35, 3, v32')
    A('s_lshl_b32 s63, s62, 7')
    for g in range(4):
        d = vbase + g
        A(f's_lshl_b32 s64, s61, 5'); A(f's_add_u32 s64, s64, {16*(g>>1) + 4*(g&1)}')
        A(f's_sub_u32 s65, s61, 54'); A('s_lshl_b32 s65, s65, 2'); A(f's_add_u32 s65, s65, {g}')
        A('s_mul_hi_u32 s66, s65, 0x1999999a'); A('s_mul_i32 s67, s66, 10'); A('s_sub_u32 s67, s65, s67')
        A('s_mul_i32 s66, s66, 80')
        A('s_lshr_b32 s68, s67, 1'); A('s_mul_i32 s68, s68, 20'); A('s_and_b32 s69, s67, 1'); A('s_lshl_b32 s69, s69, 2'); A('s_add_u32 s68, s68, s69')
        A('s_sub_u32 s69, s67, 8'); A('s_mul_i32 s69, s69, 40'); A('s_add_u32 s69, s69, 16')
        A('s_cmp_lt_u32 s67, 8'); A('s_cselect_b32 s68, s68, s69'); A('s_cselect_b32 s69, 8, 20')
        A('s_add_u32 s68, s68, s66')
        A('s_cmp_lt_u32 s61, 54'); A('s_cselect_b32 s68, s64, s68'); A('s_cselect_b32 s69, 8, s69')
        A(f'v_mul_u32_u24 v36, s69, v34'); A('v_add_u32 v36, v36, v35'); A('v_add_u32 v36, s68, v36')
        A('v_mul_u32_u24 v36, 1280, v36'); A('v_lshl_add_u32 v36, v33, 4, v36'); A('v_add_u32 v36, s63, v36')
        A(f'v_subrev_u32 v{d}, {g*1024}, v36') if g else A(f'v_mov_b32 v{d}, v36')
    A(f's_add_u32 s{SRD_T2}, s{S_WS}, {WP_OFF}'); A(f's_addc_u32 s{SRD_T2+1}, s{S_WS+1}, 0')
    A(f's_mov_b32 s{SRD_T2+2}, {WP_SIZE}'); A(f's_mov_b32 s{SRD_T2+3}, 0x00020000')
    A('s_cmp_lt_u32 s61, 74'); A(f's_cselect_b32 s{SRD_T2+2}, s{SRD_T2+2}, 0')
    for ctp in range(4):
        A(f's_lshl_b32 s64, s62, 2'); A(f's_add_u32 s64, s64, {ctp}')
        A('s_mul_hi_u32 s65, s64, 0x33333334'); A('s_mul_i32 s66, s65, 5'); A('s_sub_u32 s66, s64, s66')
        A(f's_mul_i32 s65, s65, {NKS*5120}'); A('s_mul_i32 s67, s61, 5120'); A('s_add_u32 s65, s65, s67')
        A('s_lshl_b32 s66, s66, 10'); A(f's_add_u32 s{70+ctp}, s65, s66')

def wp_task_dma(vbase, lds_base):
    r = [I(f's_lshl_b32 s60, s{S_WAVE}, 12'), I(f's_add_u32 m0, s60, {lds_base}')]
    for g in range(4):
        r.append(I(f'buffer_load_dwordx4 v{vbase+g}, s[{SRD_T}:{SRD_T+3}], 0 offen offset:{g*1024} lds', tag='wp'))
    return r

def wp_task_finish(lds_base, t0):
    r = []
    r += [I(f'v_lshrrev_b32 v{t0}, 4, v{V_LANE}'), I(f'v_lshlrev_b32 v{t0}, 10, v{t0}'),
          I(f'v_bfe_u32 v{t0+1}, v{V_LANE}, 2, 2'), I(f'v_lshl_add_u32 v{t0}, v{t0+1}, 7, v{t0}'),
          I(f'v_and_b32 v{t0+1}, 3, v{V_LANE}'), I(f'v_lshl_add_u32 v{t0}, v{t0+1}, 3, v{t0}'),
          I(f's_lshl_b32 s60, s{S_WAVE}, 12'), I(f's_add_u32 s60, s60, {lds_base}'), I(f'v_add_u32 v{t0}, s60, v{t0}'),
          I(f'v_lshlrev_b32 v{t0+1}, 4, v{V_LANE}')]
    r.append(WaitTag('wp'))
    for ctp in range(4):
        d = t0 + 2 + 4 * ctp
        for j in range(2):
            r.append(I(f'ds_read_b64_tr_b16 v[{d+2*j}:{d+2*j+1}], v{t0} offset:{j*512 + ctp*32}'))
    for ctp in range(4):
        d = t0 + 2 + 4 * ctp
        r.append(I(f'buffer_store_dwordx4 {vr(d)}, v{t0+1}, s[{SRD_T2}:{SRD_T2+3}], s{70+ctp} offen'))
    return r

class GemmPass:
    pass

def mlp_role(c, st):
    A = lambda t, **k: c.append(I(t, **k))
    NU = 3
    A(f's_lshr_b32 s{S_ROLE}, s{S_J}, 2'); A(f's_lshl_b32 s{S_ROLE}, s{S_ROLE}, 1')
    A(f's_and_b32 s{S_T0}, s{S_J}, 1'); A(f's_add_u32 s{S_ROLE}, s{S_ROLE}, s{S_T0}')
    A(f's_cmp_lt_u32 s{S_WAVE}, 2')
    A(f's_cselect_b32 s{SRD_W}, s{S_WG}, s{S_WU}'); A(f's_cselect_b32 s{SRD_W+1}, s{S_WG+1}, s{S_WU+1}')
    A(f's_mov_b32 s{SRD_W+2}, {D*F*2}'); A(f's_mov_b32 s{SRD_W+3}, 0x00020000')
    WD = 20
    A(f'v_lshrrev_b32 v32, 3, v{V_LANE}'); A(f'v_and_b32 v33, 7, v{V_LANE}')
    A('v_bfe_u32 v34, v32, 1, 1'); A('v_lshlrev_b32 v34, 2, v34'); A('v_xor_b32 v33, v33, v34')
    A(f's_and_b32 s{S_T0}, s{S_WAVE}, 1'); A(f's_lshl_b32 s{S_T0}, s{S_T0}, 3')
    A(f'v_add_u32 v32, s{S_T0}, v32'); A('v_mul_u32_u24 v32, 3456, v32'); A('v_lshl_add_u32 v32, v33, 4, v32')
    for q in range(4): A(f'v_add_u32 v{WD+q}, {q*(16*3456-1024)}, v32')
    A(f's_mul_i32 s{S_SOFF2}, s{S_ROLE}, {NU*128}')
    ring = Ring(0, 9 * 16384, first_at=8 * 16384)
    NST = NU * 10
    for n in range(NST): ring.add(16384)
    def dma_stage(n):
        u, k0 = divmod(n, 10)
        r = [I(f's_add_u32 m0, s{S_T2}, {ring.alloc[n][0]}'),
             I(f's_add_u32 s{S_SOFF}, s{S_SOFF2}, {u*128 + k0*64*3456}')]
        for q in range(4):
            r.append(I(f'buffer_load_dwordx4 v{WD+q}, s[{SRD_W}:{SRD_W+3}], s{S_SOFF} offen offset:{q*1024} lds', tag=f'w{n}'))
        return r
    c.extend(dma_stage(0))
    st(c)
    A(f'v_lshrrev_b32 v32, 5, v{V_LANE}'); A('v_lshlrev_b32 v32, 12, v32')
    A(f'v_bfe_u32 v33, v{V_LANE}, 2, 2'); A('v_lshl_add_u32 v32, v33, 7, v32')
    A(f'v_bfe_u32 v34, v{V_LANE}, 4, 1'); A('v_lshl_add_u32 v32, v34, 5, v32')
    A(f'v_and_b32 v34, 3, v{V_LANE}'); A('v_lshl_add_u32 v32, v34, 3, v32')
    A('v_lshrrev_b32 v33, 1, v33'); A('v_lshlrev_b32 v33, 6, v33')
    for T in range(2):
        A(f'v_xor_b32 v34, {64*T}, v33'); A(f'v_add_u32 v{V_AF+3*T}, v32, v34')
        A(f'v_add_u32 v{V_AF+3*T+1}, 0x10000, v{V_AF+3*T}'); A(f'v_add_u32 v{V_AF+3*T+2}, 0x20000, v{V_AF+3*T}')
    act_lane_offset(c)
    wp_task_setup(c, 88)
    x_consume(c, st)
    st(c)
    A('s_barrier')
    WP_LDS = 9 * 16384
    c.extend(dma_stage(1)); c.extend(wp_task_dma(88, WP_LDS)); c.extend(dma_stage(2))
    ln_finalize(c)
    ACC = lambda u, T: (u % 2) * 64 + 16 * T
    AFR = lambda kk, T: 128 + 16 * (kk % 2) + 4 * T
    def frag_reads(kk, T):
        n, sp = divmod(kk, 4)
        M, Tt = divmod(T, 2)
        r = []
        for j in range(2):
            off = ring.alloc[n][0] + M * 8192 + sp * 1024 + j * 512
            r.append(I(f'ds_read_b64_tr_b16 {ar(AFR(kk,T)+2*j, 2)}, v{V_AF+3*Tt+(off>>16)} offset:{off & 0xffff}'))
        return r
    def epilogue(u):
        r = []
        for T in range(2):
            g, up = ACC(u, T), ACC(u, 2 + T)
            P = 64 + 8 * T
            for i in range(0, 16, 2):
                t = V_TMP + 4 * ((i // 2) % 4)
                r += [I(f'v_accvgpr_read_b32 v{t}, a{g+i}'), I(f'v_accvgpr_read_b32 v{t+1}, a{g+i+1}'),
                      I(f'v_accvgpr_read_b32 v{t+2}, a{up+i}'), I(f'v_accvgpr_read_b32 v{t+3}, a{up+i+1}'),
                      I(f'v_max_f32 v{t}, 0, v{t}'), I(f'v_max_f32 v{t+1}, 0, v{t+1}'),
                      I(f'v_mul_f32 v{t}, v{t}, v{t+2}'), I(f'v_mul_f32 v{t+1}, v{t+1}, v{t+3}'),
                      I(f'v_cvt_pk_bf16_f32 v{P+i//2}, v{t}, v{t+1}')]
            r.append(I(f's_mul_i32 s{S_T0}, s{S_ROLE}, {NU*2*1024}'))
            r.append(I(f's_add_u32 s{S_T0}, s{S_T0}, {(2*u+T)*1024}'))
            for ch in range(2):
                r.append(I(f'buffer_store_dwordx4 {vr(P+4*ch)}, v{V_ACTL}, s[{SRD_ACT}:{SRD_ACT+3}], s{S_T0} offen offset:{ch*512}', tag='hst'))
        return r
    c.extend(ln_norm(0, V_TMP))
    c.append(WaitTag('w0')); A('s_barrier')
    for T in range(4): c.extend(frag_reads(0, T))
    next_dma = 3
    for u in range(NU):
        main = []; fill = []
        for s in range(40):
            kk = 40 * u + s; n = kk // 4
            boundary = (kk + 1) % 4 == 0 and kk + 1 < 40 * NU
            for T in range(4):
                cc = '0' if s == 0 else ar(ACC(u, T), 16)
                g = [I(f'v_mfma_f32_32x32x16_bf16 {ar(ACC(u,T),16)}, {ar(AFR(kk,T))}, {vr(XF(s))}, {cc}')]
                if T == 0 and boundary:
                    g += [WaitTag(f'w{n+1}', lgkm0=True), I('s_barrier')]
                if kk + 1 < 40 * NU: g += frag_reads(kk + 1, T)
                if T == 3:
                    if boundary or (kk < 16 and kk % 2 == 0):
                        lim = n + 1 if boundary else n
                        if next_dma < NST and ring.free_after(next_dma) < lim:
                            g += dma_stage(next_dma); next_dma += 1
                main.append(g)
            if u == 0 and s + 1 < 40:
                for ins in ln_norm(s + 1, V_TMP): fill.append((4 * s, ins))
        if u > 0:
            for ins in epilogue(u - 1): fill.append((3, ins))
        if u == 1:
            for ins in wp_task_finish(WP_LDS, 48): fill.append((100, ins))
        if u == 0:
            out = []
            k = 0
            for gi, g in enumerate(main):
                out.extend(g)
                s = gi // 4
                cut = (0, 7, 14, 20, 20)
                lo, hi = 20 * s + cut[gi % 4], 20 * s + cut[gi % 4 + 1]
                out.extend(x[1] for x in fill[lo:hi])
            c.extend(out)
        else:
            c.extend(weave(main, fill))
        st(c)
    assert next_dma == NST, next_dma
    c.extend(epilogue(NU - 1))

def gen_k1(name='k1_kernel', stamps=False, roles=('mlp', 'att')):
    c = []
    st = Stamps(stamps)
    A = lambda t, **k: c.append(I(t, **k))
    A(f'{name}:')
    A('s_cmp_ge_u32 s2, 256')
    A(f's_cbranch_scc1 L_{name}_end')
    st.real(c); st(c)
    prologue(c, st)
    A(f's_and_b32 s{S_T0}, s{S_J}, 2')
    A(f's_cmp_eq_u32 s{S_T0}, 0')
    A(f's_cbranch_scc1 L_{name}_att')
    cm = []; stm = Stamps(stamps); stm.n = st.n
    mlp_role(cm, stm)
    stm(cm); stm.real(cm); stm.dump(cm, S_WS, S_WS + 1, S_WAVE)
    cm.append(I('s_endpgm'))
    ca = [I(f'L_{name}_att:')]; sta = Stamps(stamps); sta.n = st.n
    if 'att' in roles:
        from k1att import att_role
        att_role(ca, sta)
        sta(ca); sta.real(ca); sta.dump(ca, S_WS, S_WS + 1, S_WAVE)
    ca.append(I(f'L_{name}_end:')); ca.append(I('s_endpgm'))
    return c, cm, ca

def build_k1(name='k1_kernel', stamps=False, roles=('mlp', 'att'), rep=None):
    c, cm, ca = gen_k1(name, stamps, roles)
    full_m = finish(c + cm, rep)
    full_a = finish(c + ca, rep)
    n = 0
    pro_last = c[-1]
    im = full_m.index(pro_last); ia = full_a.index(pro_last)
    assert [x.text for x in full_m[:im+1]] == [x.text for x in full_a[:ia+1]]
    return full_m + full_a[ia+1:]

if __name__ == '__main__':
    rep = []
    code = build_k1(roles=('mlp',), rep=rep)
    print(len(code), 'instrs; est cycles (mlp part incl. prologue)', est_cycles(code))
    print('\n'.join(rep[:30]))
```

```python
from ir import *
from layout import *
from k1 import *

PHI_PITCH, V_PITCH = 336, 208
LDS_PHI = 0
LDS_V = 128 * PHI_PITCH
LDS_PF = LDS_V + 128 * V_PITCH
RING_LO, RING_HI = 81920, 163840
A_KV, A_Q, A_HU, A_FR, A_PF, A_PQ = 0, 80, 0, 128, 168, 200
S_LOG2E, S_G, S_CNT = 11, 42, 43
SRD_Q = SRD_W2
SRD_KVS = 16
SRD_DBG = 20
S_W5, S_W3, S_HU = 3, 74, 75

def softmax_head(D, E):
    r = []
    P, tm = E, D + 10
    M, N, U, SP, SN = tm, tm + 1, tm + 2, tm + 3, tm + 4
    x = [D + i for i in range(10)]
    r.append(I(f'v_max3_f32 v{M}, v{x[0]}, v{x[1]}, v{x[2]}'))
    r.append(I(f'v_max3_f32 v{N}, -v{x[0]}, -v{x[1]}, -v{x[2]}'))
    for k in (3, 5, 7):
        r.append(I(f'v_max3_f32 v{M}, v{M}, v{x[k]}, v{x[k+1]}'))
        r.append(I(f'v_max3_f32 v{N}, v{N}, -v{x[k]}, -v{x[k+1]}'))
    r.append(I(f'v_max_f32 v{M}, v{M}, v{x[9]}'))
    r.append(I(f'v_max_f32_e64 v{N}, v{N}, -v{x[9]}'))
    r.append(I(f'v_permlane32_swap_b32 v{M}, v{N}'))
    r.append(I(f'v_max_f32 v{M}, v{M}, v{N}'))
    r.append(I(f'v_mul_f32 v{M}, s{S_LOG2E}, v{M}'))
    r.append(I(f'v_mov_b32 v{U}, v{M}'))
    r.append(I(f'v_permlane32_swap_b32 v{M}, v{U}'))
    for i in range(10):
        r.append(I(f'v_fma_f32 v{E+i}, v{x[i]}, s{S_LOG2E}, -v{M}'))
        r.append(I(f'v_fma_f32 v{x[i]}, -v{x[i]}, s{S_LOG2E}, -v{U}'))
    for i in range(10):
        r.append(I(f'v_exp_f32 v{E+i}, v{E+i}'))
        r.append(I(f'v_exp_f32 v{x[i]}, v{x[i]}'))
    r.append(I(f'v_add_f32 v{SP}, v{E}, v{E+1}')); r.append(I(f'v_add_f32 v{SN}, v{x[0]}, v{x[1]}'))
    for i in range(2, 10):
        r.append(I(f'v_add_f32 v{SP}, v{SP}, v{E+i}')); r.append(I(f'v_add_f32 v{SN}, v{SN}, v{x[i]}'))
    r.append(I(f'v_permlane32_swap_b32 v{SP}, v{SN}'))
    r.append(I(f'v_add_f32 v{SP}, v{SP}, v{SN}'))
    r.append(I(f'v_rcp_f32 v{SP}, v{SP}'))
    r.append(I(f'v_mov_b32 v{SN}, v{SP}'))
    r.append(I(f'v_permlane32_swap_b32 v{SP}, v{SN}'))
    for i in range(10):
        r.append(I(f'v_mul_f32 v{E+i}, v{E+i}, v{SP}')); r.append(I(f'v_mul_f32 v{x[i]}, v{x[i]}, v{SN}'))
    for p in range(5): r.append(I(f'v_cvt_pk_bf16_f32 v{P+p}, v{E+2*p}, v{E+2*p+1}'))
    for p in range(5): r.append(I(f'v_cvt_pk_bf16_f32 v{P+5+p}, v{x[2*p]}, v{x[2*p+1]}'))
    return r

def pack_acc(acc_regs, dst, t0):
    r = []
    for k in range(0, len(acc_regs), 2):
        t = t0 + 2 * ((k // 2) % 2)
        r += [I(f'v_accvgpr_read_b32 v{t}, a{acc_regs[k]}'), I(f'v_accvgpr_read_b32 v{t+1}, a{acc_regs[k+1]}'),
              I(f'v_cvt_pk_bf16_f32 v{dst + k//2}, v{t}, v{t+1}')]
    return r

def feature_maps(acc5, sink, between):
    KB, DV, E = 32, (52, 68), 84
    def phi(h):
        r = []
        for dl in range(2):
            d = vr(DV[h % 2], 16)
            r.append(I(f'v_mfma_f32_32x32x16_bf16 {d}, {ar(A_PF + 4*(2*h+dl))}, {vr(KB + 4*(h+dl))}, {"0" if dl == 0 else d}'))
        return r
    r = pack_acc(acc5, KB, E)
    r += phi(0)
    r += between
    for h in range(4):
        sm = softmax_head(DV[h % 2], E)
        if h + 1 < 4: sm = sm[:12] + phi(h + 1) + sm[12:]
        r += sm
        r += sink(h, E)
    return r

def att_role(c, st):
    A = lambda t, **k: c.append(I(t, **k))
    V_KVD, V_QD, V_HD = 12, 17, 20
    V_KVA, V_QA, V_HA = 24, 26, 28
    V_W0, V_W1, V_W2, V_W3 = 8, 9, 10, 11
    V_M0, V_M1 = 30, 31
    A(f's_lshr_b32 s{S_G}, s{S_J}, 2'); A(f's_lshl_b32 s{S_G}, s{S_G}, 1')
    A(f's_and_b32 s{S_T0}, s{S_J}, 1'); A(f's_add_u32 s{S_G}, s{S_G}, s{S_T0}')
    A(f's_mov_b32 s{SRD_W}, s{S_WQKV}'); A(f's_mov_b32 s{SRD_W+1}, s{S_WQKV+1}')
    A(f's_mov_b32 s{SRD_W+2}, {D*3*D*2}'); A(f's_mov_b32 s{SRD_W+3}, 0x00020000')
    A(f's_mul_i32 s{S_T0}, s{S_G}, 160')
    for p in range(5):
        A(f'v_add_u32 v32, {64*p}, v{V_LANE}')
        A('v_mul_u32_u24 v33, 3277, v32'); A('v_lshrrev_b32 v33, 16, v33')
        A('v_mul_u32_u24 v34, 20, v33'); A('v_sub_u32 v34, v32, v34')
        A('v_cmp_gt_u32 vcc, 10, v34')
        A('v_lshlrev_b32 v34, 4, v34')
        A('v_mul_u32_u24 v33, 3840, v33')
        A(f'v_add_u32 v35, {1280}, v34'); A(f'v_add_u32 v36, {2560-160}, v34')
        A('v_cndmask_b32 v34, v36, v35, vcc')
        A('v_add_u32 v33, v33, v34'); A(f'v_add_u32 v33, s{S_T0}, v33')
        A(f'v_subrev_u32 v{V_KVD+p}, {(p % 4)*1024}, v33')
    A(f's_mul_i32 s{S_SOFF2}, s{S_WAVE}, {16*3840}')
    ring = Ring(RING_LO, RING_HI, first_at=RING_HI - 20480)
    stages = []
    for k in range(10): stages.append(('kv', k)); ring.add(20480)
    for k in range(10): stages.append(('q', k)); ring.add(12288)
    for k in range(5): stages.append(('hu', k)); ring.add(16384)
    NST = len(stages)
    S_M5, S_M3 = 60, 61
    def dma_stage(n):
        kind, k = stages[n]; base = ring.alloc[n][0]
        r = []
        if kind == 'kv':
            r.append(I(f's_add_u32 m0, s{S_W5}, {base}'))
            r.append(I(f's_add_u32 s{S_SOFF}, s{S_SOFF2}, {k*64*3840}'))
            for p in range(4):
                r.append(I(f'buffer_load_dwordx4 v{V_KVD+p}, s[{SRD_W}:{SRD_W+3}], s{S_SOFF} offen offset:{p*1024} lds', tag=f'w{n}'))
            r.append(I(f's_add_u32 m0, s{S_W5}, {base+4096}'))
            r.append(I(f'buffer_load_dwordx4 v{V_KVD+4}, s[{SRD_W}:{SRD_W+3}], s{S_SOFF} offen lds', tag=f'w{n}'))
        elif kind == 'q':
            r.append(I(f's_add_u32 m0, s{S_W3}, {base}'))
            r.append(I(f's_add_u32 s{S_SOFF}, s{S_SOFF2}, {k*64*3840}'))
            for p in range(3):
                r.append(I(f'buffer_load_dwordx4 v{V_QD+p}, s[{SRD_W}:{SRD_W+3}], s{S_SOFF} offen offset:{p*1024} lds', tag=f'w{n}'))
        else:
            r.append(I(f's_add_u32 m0, s{S_T2}, {base}'))
            r.append(I(f's_add_u32 s{S_SOFF}, s{S_HU}, {k*128*3456}'))
            for q in range(4):
                r.append(I(f'buffer_load_dwordx4 v{V_HD+q}, s[{SRD_W2}:{SRD_W2+3}], s{S_SOFF} offen offset:{q*1024} lds', tag=f'w{n}'))
        return r
    A(f's_mul_i32 s{S_W5}, s{S_WAVE}, 5120'); A(f's_mul_i32 s{S_W3}, s{S_WAVE}, 3072')
    c.extend(dma_stage(0))
    A(f's_lshl_b32 s{S_T0}, s{S_G}, 2'); A(f's_add_u32 s{S_T0}, s{S_T0}, s{S_WAVE}'); A(f's_mul_i32 s{S_T0}, s{S_T0}, 800')
    A(f's_add_u32 s{SRD_T}, s{S_WPHI}, s{S_T0}'); A(f's_addc_u32 s{SRD_T+1}, s{S_WPHI+1}, 0')
    A(f's_mov_b32 s{SRD_T+2}, 800'); A(f's_mov_b32 s{SRD_T+3}, 0x00020000')
    A(f'v_lshlrev_b32 v32, 1, v{V_T}')
    A(f'v_subrev_u32 v33, 4, v32')
    A(f'v_cmp_gt_u32 vcc, 18, v{V_T}'); A('v_cndmask_b32 v33, v33, v32, vcc')
    A(f'v_and_b32 v34, 30, v{V_T}'); A('v_cmp_eq_u32 s[66:67], 20, v34'); A('s_or_b64 vcc, vcc, s[66:67]')
    A('v_mov_b32 v35, 0x40000000'); A('v_cndmask_b32 v33, v35, v33, vcc')
    A(f's_lshl_b32 s{S_T0}, s{S_WAVE}, 2')
    PFV = 64
    for dl in range(2):
        for eh in range(2):
            A(f'v_lshlrev_b32 v36, 2, v{V_HH}'); A(f'v_add_u32 v36, {16*dl + 8*eh}, v36'); A(f'v_subrev_u32 v36, s{S_T0}, v36')
            A('v_cmp_gt_u32 vcc, 20, v36')
            A('v_mul_u32_u24 v37, 40, v36'); A('v_add_u32 v37, v37, v33')
            A(f'v_cndmask_b32 v{56 + 2*dl + eh}, v35, v37, vcc')
    for dl in range(2):
        for e in range(8):
            A(f'buffer_load_ushort v{PFV + 8*dl + e}, v{56 + 2*dl + (e >> 2)}, s[{SRD_T}:{SRD_T+3}], 0 offen offset:{(e & 3)*40}', tag='pf')
    st(c)
    A(f's_mul_i32 s{S_T0}, s{S_G}, 160')
    for p in range(3):
        A(f'v_add_u32 v32, {64*p}, v{V_LANE}')
        A('v_mul_u32_u24 v33, 5462, v32'); A('v_lshrrev_b32 v33, 16, v33')
        A('v_mul_u32_u24 v34, 12, v33'); A('v_sub_u32 v34, v32, v34')
        A('v_mul_u32_u24 v33, 3840, v33'); A('v_lshl_add_u32 v33, v34, 4, v33'); A(f'v_add_u32 v33, s{S_T0}, v33')
        A(f'v_subrev_u32 v{V_QD+p}, {p*1024}, v33')
    A(f's_cmp_lt_u32 s{S_WAVE}, 2')
    A(f's_cselect_b32 s{SRD_W2}, s{S_WG}, s{S_WU}'); A(f's_cselect_b32 s{SRD_W2+1}, s{S_WG+1}, s{S_WU+1}')
    A(f's_cmp_lt_u32 s{S_G}, 6'); A(f's_cselect_b32 s{SRD_W2+2}, {D*F*2}, 0'); A(f's_mov_b32 s{SRD_W2+3}, 0x00020000')
    A(f'v_lshrrev_b32 v32, 2, v{V_LANE}'); A('v_mul_u32_u24 v32, 3456, v32')
    A(f'v_and_b32 v33, 3, v{V_LANE}'); A('v_lshl_add_u32 v32, v33, 4, v32')
    for q in range(4): A(f'v_add_u32 v{V_HD+q}, {q*(16*3456-1024)}, v32')
    A(f's_and_b32 s{S_HU}, s{S_WAVE}, 1'); A(f's_mul_i32 s{S_HU}, s{S_HU}, {64*3456}')
    A(f's_lshl_b32 s65, s{S_G}, 6'); A(f's_add_u32 s{S_HU}, s{S_HU}, s65'); A(f's_add_u32 s{S_HU}, s{S_HU}, {1536*2}')
    A(f'v_bfe_u32 v32, v{V_LANE}, 2, 2'); A(f'v_lshl_add_u32 v32, v{V_HH}, 3, v32')
    A(f'v_bfe_u32 v33, v{V_LANE}, 4, 1'); A('v_lshlrev_b32 v33, 5, v33')
    A(f'v_and_b32 v34, 3, v{V_LANE}'); A('v_lshl_add_u32 v33, v34, 3, v33')
    for (reg, pitch) in ((V_KVA, 320), (V_QA, 192), (V_HA, 64)):
        A(f'v_mul_u32_u24 v34, {pitch}, v32'); A('v_add_u32 v34, v34, v33')
        A(f'v_add_u32 v{reg}, 0x10000, v34'); A(f'v_add_u32 v{reg+1}, 0x20000, v34')
    act_lane_offset(c)
    wp_task_setup(c, 88)
    A(f's_mul_i32 s{S_T0}, s{S_G}, 20480'); A(f's_add_u32 s{S_T0}, s{S_T0}, {KVS_OFF}')
    A(f's_add_u32 s{SRD_KVS}, s{S_WS}, s{S_T0}'); A(f's_addc_u32 s{SRD_KVS+1}, s{S_WS+1}, 0')
    A(f's_cmp_eq_u32 s{S_I}, 0'); A(f's_cselect_b32 s{SRD_KVS+2}, 20480, 0'); A(f's_mov_b32 s{SRD_KVS+3}, 0x00020000')
    A(f's_lshl_b32 s{S_T0}, s{S_G}, 2')
    A(f's_add_u32 s{SRD_DBG}, s{S_DBG}, s{S_T0}'); A(f's_addc_u32 s{SRD_DBG+1}, s{S_DBG+1}, 0')
    A(f's_cselect_b32 s{SRD_DBG+2}, 0, 0'); A(f's_mov_b32 s{SRD_DBG+3}, 0x00020000')
    for k in range(4): A(f'v_mov_b32 v{80+k}, 0')
    A(f'v_lshlrev_b32 v84, 4, v{V_LANE}'); A(f's_mul_i32 s{S_T0}, s{S_WAVE}, 5120')
    for k in range(4):
        A(f'buffer_store_dwordx4 v[80:83], v84, s[{SRD_KVS}:{SRD_KVS+3}], s{S_T0} offen offset:{k*1024} sc1', tag='kz')
    A(f's_add_u32 s{S_T0}, s{S_T0}, 4096')
    A(f'buffer_store_dwordx4 v[80:83], v84, s[{SRD_KVS}:{SRD_KVS+3}], s{S_T0} offen sc1', tag='kz')
    x_consume(c, st)
    st(c)
    c.append(WaitTag('kz'))
    A('s_barrier')
    A(f's_cmp_eq_u32 s{S_I}, 0'); A(f's_cselect_b32 s{SRD_DBG+2}, 4, 0')
    A(f's_cmp_eq_u32 s{S_WAVE}, 0'); A(f's_cselect_b32 s{SRD_DBG+2}, s{SRD_DBG+2}, 0')
    A('v_mov_b32 v80, 0x10000'); A(f'v_lshlrev_b32 v81, 2, v{V_LANE}')
    A(f'buffer_atomic_add v80, v81, s[{SRD_DBG}:{SRD_DBG+3}], 0 offen', tag='zf')
    WP_LDS = 0
    c.extend(dma_stage(1)); c.extend(wp_task_dma(88, WP_LDS)); c.extend(dma_stage(2))
    A(f's_mov_b32 s{SRD_KVS+2}, 20480'); A(f's_mov_b32 s{SRD_DBG+2}, 4')
    A(f's_lshl_b32 s{S_T0}, s{S_WAVE}, 11'); A(f's_add_u32 s{S_T0}, s{S_T0}, {LDS_PF}')
    A(f'v_lshlrev_b32 v82, 4, v{V_LANE}'); A(f'v_add_u32 v82, s{S_T0}, v82')
    for dl in range(2):
        for p in range(4): A(f'v_lshl_or_b32 v{PFV+4*dl+p}, v{PFV+8*dl+2*p+1}, 16, v{PFV+8*dl+2*p}')
    for dl in range(2): A(f'ds_write_b128 v82, {vr(PFV+4*dl)} offset:{dl*1024}')
    ln_finalize(c)
    A(f's_mov_b32 s{S_LOG2E}, 0x3fb8aa3b')
    A(f'v_mul_u32_u24 v32, {PHI_PITCH}, v{V_T}'); A(f's_mul_i32 s{S_T0}, s{S_WAVE}, {32*PHI_PITCH}'); A(f'v_add_u32 v32, s{S_T0}, v32')
    A(f'v_lshl_add_u32 v{V_W0}, v{V_HH}, 4, v32')
    A(f'v_lshl_add_u32 v{V_W1}, v{V_HH}, 3, v32')
    A(f'v_mul_u32_u24 v32, {V_PITCH}, v{V_T}'); A(f's_mul_i32 s{S_T0}, s{S_WAVE}, {32*V_PITCH}'); A(f's_add_u32 s{S_T0}, s{S_T0}, {LDS_V}')
    A(f'v_add_u32 v32, s{S_T0}, v32')
    A(f'v_lshl_add_u32 v{V_W2}, v{V_HH}, 3, v32'); A(f'v_lshl_add_u32 v{V_W3}, v{V_HH}, 4, v32')
    state = {'next': 3}
    info = []
    def pass_main(kind, st0, nst, ksps, ntile, accf, fragf, afr, first_c0=True, xoff=0):
        main = []
        nk = nst * ksps
        for s in range(nk):
            n = st0 + s // ksps
            last_in_stage = (s + 1) % ksps == 0
            for T in range(ntile):
                cc = '0' if s == 0 else ar(accf(T), 16)
                g = [I(f'v_mfma_f32_32x32x16_bf16 {ar(accf(T),16)}, {ar(afr(s,T))}, {vr(XF(s))}, {cc}')]
                if T == 0 and last_in_stage and n + 1 < NST:
                    g += [WaitTag(f'w{n+1}', lgkm0=True), I('s_barrier')]
                g += fragf(s, T)
                if T == ntile - 1 and (last_in_stage or n < 2):
                    lim = n + 1 if last_in_stage else n
                    while state['next'] < NST and ring.free_after(state['next']) < lim:
                        g += dma_stage(state['next']); state['next'] += 1
                        if not last_in_stage: break
                main.append(g)
        return main
    def reads(kind, n, sp, T, dst):
        base = ring.alloc[n][0]; r = []
        for j in range(2):
            if kind == 'kv': off, reg = base + sp * 5120 + j * 1280 + T * 64, V_KVA
            elif kind == 'q': off, reg = base + sp * 3072 + j * 768 + T * 64, V_QA
            else: off, reg = base + (2 * T + (sp >> 2)) * 4096 + (sp & 3) * 1024 + j * 256, V_HA
            assert 0x10000 <= off < 0x30000
            r.append(I(f'ds_read_b64_tr_b16 {ar(dst+2*j, 2)}, v{reg + (off >> 16) - 1} offset:{off & 0xffff}'))
        return r
    def mk(kind, st0, ksps, ntile, nk, base_par, nxt):
        afr = lambda s, T: A_FR + 20 * ((base_par + s) % 2) + 4 * T
        def fragf(s, T):
            if s + 1 < nk:
                return reads(kind, st0 + (s + 1) // ksps, (s + 1) % ksps, T, afr(s + 1, T))
            return nxt(T)
        return afr, fragf
    def first_frags(kind, st0, ntile_next, ntile_cur, par):
        def f(T):
            r = []
            tl = [T] if T < ntile_next else []
            if T == ntile_cur - 1: tl += list(range(ntile_cur, ntile_next))
            for t in tl: r += reads(kind, st0, 0, t, A_FR + 20 * par + 4 * t)
            return r
        return f
    c.extend(ln_norm(0, 32))
    c.append(WaitTag('w0', lgkm0=True)); A('s_barrier')
    for T in range(5): c.extend(reads('kv', 0, 0, T, A_FR + 4 * T))
    A(f'v_lshlrev_b32 v72, 4, v{V_LANE}'); A(f'v_add_u32 v72, {LDS_PF}, v72')
    for f in range(8): A(f'ds_read_b128 {ar(A_PF+4*f)}, v72 offset:{f*1024}')
    afr, fragf = mk('kv', 0, 4, 5, 40, 0, first_frags('q', 10, 3, 5, 0))
    main = pass_main('kv', 0, 10, 4, 5, lambda T: A_KV + 16 * T, fragf, afr)
    out = []
    cut = (0, 5, 10, 15, 20, 20)
    for gi, g in enumerate(main):
        out.extend(g); s, T = divmod(gi, 5)
        if s + 1 < 40: out.extend(ln_norm(s + 1, 32)[cut[T]:cut[T + 1]])
        if gi == 150: out.extend(wp_task_finish(WP_LDS, 48))
    c.extend(out); st(c)
    fill = []
    kacc = [A_KV + i for i in range(40)]
    vacc = [A_KV + 40 + i for i in range(40)]
    ep = []
    A2 = []
    for b in range(10):
        t = 68 + 8 * (b % 2)
        ep += pack_acc(vacc[4*b:4*b+4], t + 4, t)
        Q0 = 2 * b
        off = 8 * Q0 + 8 * (Q0 // 5)
        reg = V_W3 if (2 * b + 1) % 5 == 0 else V_W2
        ep.append(I(f'ds_write_b64 v{reg}, v[{t+4}:{t+5}] offset:{off}'))
    ep += [I('v_mov_b32 v84, 0x3f803f80'), I('v_mov_b32 v85, 0x3f803f80'),
           I(f'v_mul_u32_u24 v86, 88, v{V_HH}'), I(f'v_add_u32 v86, v86, v{V_W2}')]
    ep += [I(f'ds_write_b64 v86, v[84:85] offset:{40}'), I(f'ds_write_b64 v86, v[84:85] offset:{88}')]
    def ksink(h, P):
        return [I(f'ds_write_b128 v{V_W0}, {vr(P)} offset:{h*80}'),
                I(f'ds_write_b128 v{V_W0}, {vr(P+4)} offset:{h*80+32}'),
                I(f'ds_write_b64 v{V_W1}, v[{P+8}:{P+9}] offset:{h*80+64}')]
    ep = feature_maps(kacc, ksink, ep)
    ep.insert(40, I(f'v_mov_b32 v{V_M0}, 0'))
    ep.insert(41, I(f'buffer_load_dword v{V_M1}, v{V_M0}, s[{SRD_DBG}:{SRD_DBG+3}], 0 offen sc1', tag='zchk'))
    for ins in ep: fill.append((3, ins))
    afr, fragf = mk('q', 10, 4, 3, 40, 0, first_frags('hu', 20, 2, 3, 0))
    main = pass_main('q', 10, 10, 4, 3, lambda T: A_Q + 16 * T, fragf, afr)
    c.extend(weave(main, fill)); st(c)
    kv = []
    FA = 64
    kv += [I(f'v_bfe_u32 v32, v{V_LANE}, 2, 2'), I(f'v_lshl_add_u32 v32, v{V_HH}, 3, v32'),
           I(f'v_and_b32 v33, 3, v{V_LANE}'), I(f'v_bfe_u32 v34, v{V_LANE}, 4, 1'),
           I(f'v_mul_u32_u24 v35, {PHI_PITCH}, v32'), I(f's_mul_i32 s{S_T0}, s{S_WAVE}, 80'), I(f'v_add_u32 v35, s{S_T0}, v35'),
           I(f'v_lshl_add_u32 v35, v33, 3, v35'),
           I(f'v_lshl_add_u32 v{V_W0}, v34, 5, v35'),
           I(f'v_add_u32 v{V_W1}, 64, v35'),
           I(f'v_mul_u32_u24 v35, {V_PITCH}, v32'), I(f's_mul_i32 s{S_T0}, s{S_WAVE}, 48'), I(f's_add_u32 s{S_T0}, s{S_T0}, {LDS_V}'),
           I(f'v_add_u32 v35, s{S_T0}, v35'),
           I('v_lshlrev_b32 v36, 3, v33'),
           I('v_min_u32 v37, 1, v33'), I('v_lshlrev_b32 v37, 3, v37'), I('v_add_u32 v37, 32, v37'),
           I('v_cmp_eq_u32 vcc, 0, v34'), I('v_cndmask_b32 v36, v37, v36, vcc'),
           I(f'v_add_u32 v{V_W2}, v35, v36')]
    def kvreads(k):
        b = FA + 12 * (k % 2); r = []
        for j in range(2):
            r.append(I(f'ds_read_b64_tr_b16 v[{b+2*j}:{b+2*j+1}], v{V_W0} offset:{k*16*PHI_PITCH + j*4*PHI_PITCH}'))
            r.append(I(f'ds_read_b64_tr_b16 v[{b+4+2*j}:{b+5+2*j}], v{V_W1} offset:{k*16*PHI_PITCH + j*4*PHI_PITCH}'))
            r.append(I(f'ds_read_b64_tr_b16 v[{b+8+2*j}:{b+9+2*j}], v{V_W2} offset:{k*16*V_PITCH + j*4*V_PITCH}'))
        return r
    kv += kvreads(0)
    for k in range(8):
        b = FA + 12 * (k % 2)
        if k + 1 < 8: kv += kvreads(k + 1)
        kv.append(I(f'v_mfma_f32_32x32x16_bf16 v[32:47], {vr(b)}, {vr(b+8)}, {"0" if k == 0 else "v[32:47]"}'))
        kv.append(I(f'v_mfma_f32_32x32x16_bf16 v[48:63], {vr(b+4)}, {vr(b+8)}, {"0" if k == 0 else "v[48:63]"}'))
    kv += [I(f'v_lshlrev_b32 v64, 2, v{V_T}'), I(f'v_lshl_add_u32 v64, v{V_HH}, 9, v64'),
           I(f's_mul_i32 s{S_T0}, s{S_WAVE}, 5120'), I(f'v_add_u32 v64, s{S_T0}, v64'),
           I(f'v_cmp_ge_u32 vcc, 20, v{V_T}'), I('v_mov_b32 v65, 0x40000000'), I('v_cndmask_b32 v64, v65, v64, vcc'),
           I('v_add_u32 v65, 4096, v64')]
    zchk = [WaitTag('zchk'), I(f'v_readfirstlane_b32 s{S_CNT}, v{V_M1}'), I(f's_cmp_ge_u32 s{S_CNT}, 0x10000'),
            I('s_cbranch_scc1 L_zok'),
            ] + offpath([I('s_mov_b32 s69, 0'), I('L_zspin:'), I('s_sleep 2'), I('s_add_u32 s69, s69, 1'), I('s_cmp_ge_u32 s69, 0x8000'), I('s_cbranch_scc1 L_zok'),
            I(f'buffer_load_dword v{V_M1}, v{V_M0}, s[{SRD_DBG}:{SRD_DBG+3}], 0 offen sc1'), I('s_waitcnt vmcnt(0)'),
            I('s_nop 0'),
            I(f'v_readfirstlane_b32 s{S_CNT}, v{V_M1}'), I(f's_cmp_ge_u32 s{S_CNT}, 0x10000'), I('s_cbranch_scc0 L_zspin')]) + [
            I('L_zok:')]
    at = []
    for i in range(16):
        at.append(I(f'buffer_atomic_add_f32 v{32+i}, v64, s[{SRD_KVS}:{SRD_KVS+3}], 0 offen offset:{(8*(i>>2) + (i&3))*128}', tag='kvat'))
    for i in range(4):
        at.append(I(f'buffer_atomic_add_f32 v{48+i}, v65, s[{SRD_KVS}:{SRD_KVS+3}], 0 offen offset:{i*128}', tag='kvat'))
    qacc = [A_Q + i for i in range(40)]
    def qsink(h, P):
        return [I(f'v_accvgpr_write_b32 a{A_PQ+12*h+p}, v{P+p}') for p in range(10)]
    zz = [I(f'v_accvgpr_write_b32 a{A_PQ+12*h+10+z}, 0') for h in range(4) for z in range(2)]
    qe = feature_maps(qacc, qsink, zz + [I('s_nop 3')])
    afr, fragf = mk('hu', 20, 8, 2, 40, 0, lambda T: [])
    main = pass_main('hu', 20, 5, 8, 2, lambda T: A_HU + 16 * T, fragf, afr)
    fill = [(15, ins) for ins in kv] + [(15, zchk)] + [(15, ins) for ins in at] + [(15, ins) for ins in qe]
    c.extend(weave(main, fill)); st(c)
    assert state['next'] == NST
    r = []
    for i in range(0, 16, 2):
        t = 32 + 4 * ((i // 2) % 4)
        r += [I(f'v_accvgpr_read_b32 v{t}, a{A_HU+i}'), I(f'v_accvgpr_read_b32 v{t+1}, a{A_HU+i+1}'),
              I(f'v_accvgpr_read_b32 v{t+2}, a{A_HU+16+i}'), I(f'v_accvgpr_read_b32 v{t+3}, a{A_HU+16+i+1}'),
              I(f'v_max_f32 v{t}, 0, v{t}'), I(f'v_max_f32 v{t+1}, 0, v{t+1}'),
              I(f'v_mul_f32 v{t}, v{t}, v{t+2}'), I(f'v_mul_f32 v{t+1}, v{t+1}, v{t+3}'),
              I(f'v_cvt_pk_bf16_f32 v{64+i//2}, v{t}, v{t+1}')]
    c.append(WaitTag('kvat')); A('s_barrier')
    A(f's_cmp_eq_u32 s{S_WAVE}, 0'); A(f's_cselect_b32 s{SRD_DBG+2}, 4, 0')
    A('v_mov_b32 v90, 1'); A(f'v_lshlrev_b32 v91, 2, v{V_LANE}')
    A(f'buffer_atomic_add v90, v91, s[{SRD_DBG}:{SRD_DBG+3}], 0 offen', tag='arr')
    A(f's_mov_b32 s{SRD_DBG+2}, 4')
    c.extend(r)
    A(f's_add_u32 s{S_T0}, s{S_G}, 48'); A(f's_lshl_b32 s{S_T0}, s{S_T0}, 10')
    A(f's_cmp_lt_u32 s{S_G}, 6'); A(f's_cselect_b32 s{SRD_ACT+2}, s{SRD_ACT+2}, 0')
    for ch in range(2):
        A(f'buffer_store_dwordx4 {vr(64+4*ch)}, v{V_ACTL}, s[{SRD_ACT}:{SRD_ACT+3}], s{S_T0} offen offset:{ch*512}', tag='hst')
    A(f's_mov_b32 s{SRD_ACT+2}, {2*NKS*1024}')
    A(f'v_mov_b32 v{V_M0}, 0')
    A('s_mov_b32 s69, 0')
    A('L_kvspin:')
    A(f'buffer_load_dword v{V_M1}, v{V_M0}, s[{SRD_DBG}:{SRD_DBG+3}], 0 offen sc1'); A('s_waitcnt vmcnt(0)')
    A(f'v_readfirstlane_b32 s{S_CNT}, v{V_M1}'); A(f's_and_b32 s{S_CNT}, s{S_CNT}, 0xffff'); A(f's_cmp_ge_u32 s{S_CNT}, 16')
    A('s_cbranch_scc1 L_kvok'); A('s_sleep 2'); A('s_add_u32 s69, s69, 1'); A('s_cmp_lt_u32 s69, 0x8000'); A('s_cbranch_scc1 L_kvspin')
    A('L_kvok:')
    st(c)
    A(f'v_min_u32 v32, 20, v{V_T}'); A('v_lshlrev_b32 v32, 2, v32'); A(f's_mul_i32 s{S_T0}, s{S_WAVE}, 5120'); A(f'v_add_u32 v32, s{S_T0}, v32')
    A(f'v_lshl_add_u32 v33, v{V_HH}, 10, v32')
    A(f'v_lshl_add_u32 v34, v{V_HH}, 9, v32'); A('v_add_u32 v34, 4096, v34')
    for s in range(2):
        for e in range(8):
            A(f'buffer_load_dword v{40+8*s+e}, v33, s[{SRD_KVS}:{SRD_KVS+3}], 0 offen offset:{(16*s+e)*128} sc1')
    for e in range(4):
        A(f'buffer_load_dword v{56+e}, v34, s[{SRD_KVS}:{SRD_KVS+3}], 0 offen offset:{e*128} sc1')
    for p in range(10): A(f'v_cvt_pk_bf16_f32 v{72+p}, v{40+2*p}, v{41+2*p}')
    A('v_mov_b32 v82, 0'); A('v_mov_b32 v83, 0')
    A(f's_mul_i32 s{S_T0}, s{S_WAVE}, 3072'); A(f'v_lshlrev_b32 v35, 4, v{V_LANE}'); A(f'v_add_u32 v36, s{S_T0}, v35')
    for s in range(3): A(f'ds_write_b128 v36, {vr(72+4*s)} offset:{s*1024}')
    A('s_waitcnt lgkmcnt(0)'); A('s_barrier')
    FR = 96; DD = 160; OP = 240
    for h in range(4):
        for s in range(3): A(f'ds_read_b128 {vr(FR+12*h+4*s)}, v35 offset:{h*3072+s*1024}')
    for h in range(4):
        for s in range(3):
            dd = vr(DD + 16 * h, 16)
            A(f'v_mfma_f32_32x32x16_bf16 {dd}, {vr(FR+12*h+4*s)}, {ar(A_PQ+12*h+4*s)}, {"0" if s == 0 else dd}')
    for h in range(4):
        d = DD + 16 * h
        A(f'v_add_f32 v32, 0x358637bd, v{d+12}'); A('v_rcp_f32 v32, v32')
        for i in range(12): A(f'v_mul_f32 v{d+i}, v{d+i}, v32')
        for p in range(4): A(f'v_cvt_pk_bf16_f32 v{OP+4*h+p}, v{d+2*p}, v{d+2*p+1}')
        tl = 40 + 4 * (h >> 1) + 2 * (h & 1)
        for p in range(2): A(f'v_cvt_pk_bf16_f32 v{tl+p}, v{d+8+2*p}, v{d+9+2*p}')
    for h in range(4):
        A(f's_mul_i32 s{S_T0}, s{S_G}, 10'); A(f's_add_u32 s{S_T0}, s{S_T0}, {2*h}')
        A(f's_lshr_b32 s{S_T1}, s{S_T0}, 2'); A(f's_and_b32 s{S_T0}, s{S_T0}, 3')
        A(f's_add_u32 s{S_T1}, s{S_T1}, 54'); A(f's_lshl_b32 s{S_T1}, s{S_T1}, 10'); A(f's_lshl_b32 s{S_T0}, s{S_T0}, 8')
        A(f's_add_u32 s{S_T0}, s{S_T0}, s{S_T1}')
        A(f'buffer_store_dwordx4 {vr(OP+4*h)}, v{V_ACTL}, s[{SRD_ACT}:{SRD_ACT+3}], s{S_T0} offen')
    A(f'v_cmp_eq_u32 vcc, 0, v{V_HH}'); A('v_mov_b32 v33, 0x40000000'); A(f'v_cndmask_b32 v33, v33, v{V_ACTL}, vcc')
    for j in range(2):
        A(f's_mul_i32 s{S_T0}, s{S_G}, 10'); A(f's_add_u32 s{S_T0}, s{S_T0}, {8+j}')
        A(f's_lshr_b32 s{S_T1}, s{S_T0}, 2'); A(f's_and_b32 s{S_T0}, s{S_T0}, 3')
        A(f's_add_u32 s{S_T1}, s{S_T1}, 54'); A(f's_lshl_b32 s{S_T1}, s{S_T1}, 10'); A(f's_lshl_b32 s{S_T0}, s{S_T0}, 8')
        A(f's_add_u32 s{S_T0}, s{S_T0}, s{S_T1}')
        A(f'buffer_store_dwordx4 {vr(40+4*j)}, v33, s[{SRD_ACT}:{SRD_ACT+3}], s{S_T0} offen')
```

```python
from ir import *
from layout import *

def emit_wgmap(c, s_i, s_j, tmp):
    c += [I(f's_and_b32 s{tmp}, s2, 7'),
          I(f's_lshr_b32 s{tmp+1}, s2, 3'),
          I(f's_and_b32 s{s_i}, s{tmp}, 1'),
          I(f's_lshl_b32 s{s_i}, s{s_i}, 3'),
          I(f's_and_b32 s{s_j}, s{tmp+1}, 7'),
          I(f's_add_u32 s{s_i}, s{s_i}, s{s_j}'),
          I(f's_lshr_b32 s{s_j}, s{tmp}, 1'),
          I(f's_lshl_b32 s{s_j}, s{s_j}, 2'),
          I(f's_lshr_b32 s{tmp+1}, s{tmp+1}, 3'),
          I(f's_add_u32 s{s_j}, s{s_j}, s{tmp+1}')]

def srd(c, d, lo, hi, nrec):
    c += [I(f's_mov_b32 s{d}, s{lo}'), I(f's_mov_b32 s{d+1}, s{hi}'),
          I(f's_mov_b32 s{d+2}, {nrec}'), I(f's_mov_b32 s{d+3}, 0x00020000')]

STAMP_OFF = 0xE00000
class Stamps:
    def __init__(self, on, base=76): self.on = on; self.n = 0; self.base = base
    def __call__(self, c):
        if not self.on: return
        r = self.base + 2 * self.n; self.n += 1
        c.append(I(f's_memtime s[{r}:{r+1}]')); c.append(I('s_waitcnt lgkmcnt(0)'))
    def real(self, c):
        if not self.on: return
        r = self.base + 2 * self.n; self.n += 1
        c.append(I(f's_memrealtime s[{r}:{r+1}]')); c.append(I('s_waitcnt lgkmcnt(0)'))
    def dump(self, c, ws_lo, ws_hi, s_wave, kern_idx=0):
        if not self.on: return
        A = lambda t: c.append(I(t))
        A('s_waitcnt vmcnt(0) lgkmcnt(0)')
        A(f's_lshl_b32 s60, s2, 2'); A(f's_add_u32 s60, s60, s{s_wave}'); A('s_lshl_b32 s60, s60, 7')
        A(f's_add_u32 s60, s60, {STAMP_OFF + kern_idx * 0x20000}')
        A(f's_add_u32 s56, s{ws_lo}, s60'); A(f's_addc_u32 s57, s{ws_hi}, 0')
        A('s_mov_b32 s58, 128'); A('s_mov_b32 s59, 0x00020000')
        A('v_mov_b32 v1, 0')
        for k in range(self.n):
            A(f'v_mov_b32 v2, s{self.base+2*k}'); A(f'v_mov_b32 v3, s{self.base+2*k+1}')
            A(f'buffer_store_dwordx2 v[2:3], v1, s[56:59], 0 offen offset:{8*k}')
            A('s_waitcnt vmcnt(0)')

def gen_k2(name='k2_kernel', sc1=False, stamps=False, NB=12, NSLOT=7, samecg=False):
    c = []
    st = Stamps(stamps)
    A = lambda t, **k: c.append(I(t, **k))
    A(f'{name}:')
    A('s_cmp_ge_u32 s2, 256')
    A(f's_cbranch_scc1 L_{name}_end')
    st.real(c); st(c)
    A('s_load_dwordx2 s[4:5], s[0:1], 0')
    A('s_load_dwordx2 s[6:7], s[0:1], 64')
    A('s_load_dwordx2 s[8:9], s[0:1], 80')
    A('v_lshrrev_b32 v1, 6, v0')
    A('v_and_b32 v2, 63, v0')
    A('v_readfirstlane_b32 s30, v1')
    emit_wgmap(c, 31, 32, 34)
    A('s_lshr_b32 s33, s32, 3')
    A('s_and_b32 s32, s32, 7')
    A('s_lshl_b32 s31, s31, 3')
    A('s_lshl_b32 s33, s33, 2')
    A('s_add_u32 s31, s31, s33')
    A('s_add_u32 s31, s31, s30')
    A('v_lshlrev_b32 v3, 4, v2')
    if samecg:
        A('s_and_b32 s31, s31, 7'); A('s_mov_b32 s32, 0')
    A('v_add_u32 v6, 0x10000, v3'); A('v_add_u32 v7, 0x20000, v3')
    A('s_waitcnt lgkmcnt(0)')
    A(f's_mul_i32 s34, s31, {NKS*1024}')
    A('s_add_u32 s12, s8, s34'); A('s_addc_u32 s13, s9, 0')
    A(f's_mov_b32 s14, {NKS*1024}'); A('s_mov_b32 s15, 0x00020000')
    A(f's_mul_i32 s34, s32, {NKS*5120}')
    A(f's_add_u32 s34, s34, {WP_OFF}')
    A('s_add_u32 s16, s8, s34'); A('s_addc_u32 s17, s9, 0')
    A(f's_mov_b32 s18, {NKS*5120}'); A('s_mov_b32 s19, 0x00020000')
    A('s_mul_i32 s36, s30, 5120')
    SLOT = 20480
    NST = (NKS + 3) // 4
    def dma_stage(n):
        slot = (n % NSLOT) * SLOT
        r = []
        r.append(I(f's_add_u32 m0, s36, {slot}'))
        r.append(I(f's_add_u32 s37, s36, {n*4*5120}'))
        for p in range(4):
            r.append(I(f'buffer_load_dwordx4 v3, s[16:19], s37 offen offset:{p*1024} lds', tag=f'st{n}'))
        r.append(I(f's_add_u32 m0, s36, {slot+4096}'))
        r.append(I(f's_add_u32 s37, s36, {n*4*5120+4096}'))
        r.append(I(f'buffer_load_dwordx4 v3, s[16:19], s37 offen lds', tag=f'st{n}'))
        return r
    BF = lambda s: 64 + 4 * (s % NB)
    mod = ' sc1' if sc1 else ''
    def bload(s):
        r = []
        if s % 4 == 0: r.append(I(f's_mov_b32 s38, {s*1024}'))
        r.append(I(f'buffer_load_dwordx4 v[{BF(s)}:{BF(s)+3}], v3, s[12:15], s38 offen offset:{(s%4)*1024}{mod}'))
        return r
    c += dma_stage(0)
    for s in range(4): c += bload(s)
    c += dma_stage(1)
    for s in range(4, NB): c += bload(s)
    for n in range(2, NSLOT - 1): c += dma_stage(n)
    A('s_lshl_b32 s34, s31, 4'); A('s_mul_i32 s34, s34, 1280'); A('s_mul_i32 s35, s32, 160'); A('s_add_u32 s34, s34, s35')
    A('s_add_u32 s20, s4, s34'); A('s_addc_u32 s21, s5, 0')
    A(f's_sub_u32 s22, {S*D*2}, s34'); A('s_mov_b32 s23, 0x00020000')
    A('s_add_u32 s24, s6, s34'); A('s_addc_u32 s25, s7, 0')
    A(f's_sub_u32 s26, {S*D*2}, s34'); A('s_mov_b32 s27, 0x00020000')
    A('v_and_b32 v4, 15, v2'); A('v_mul_u32_u24 v4, 1280, v4')
    A('v_lshrrev_b32 v5, 4, v2'); A('v_lshl_add_u32 v4, v5, 3, v4')
    XR = 40
    for ct in range(5):
        A(f'buffer_load_dwordx2 v[{XR+2*ct}:{XR+2*ct+1}], v4, s[20:23], 0 offen offset:{ct*32}')
    ACC = lambda ct: 8 + 4 * ct
    AF = lambda s, ct: 128 + 20 * (s % 2) + 4 * ct
    def areads(s):
        n = s // 4; slot = (n % NSLOT) * SLOT
        r = []
        for ct in range(5):
            off = slot + (s%4)*5120 + ct*1024
            r.append(I(f'ds_read_b128 v[{AF(s,ct)}:{AF(s,ct)+3}], v{(3,6,7)[off>>16]} offset:{off & 0xffff}'))
        return r
    st(c)
    c.append(WaitTag('st0')); A('s_barrier')
    st(c)
    c += areads(0)
    for s in range(NKS):
        n = s // 4
        nxt = areads(s + 1) if s + 1 < NKS else []
        boundary = (s + 1) % 4 == 0 and s + 1 < NKS
        for ct in range(5):
            cc = '0' if s == 0 else f'v[{ACC(ct)}:{ACC(ct)+3}]'
            A(f'v_mfma_f32_16x16x32_bf16 v[{ACC(ct)}:{ACC(ct)+3}], v[{AF(s,ct)}:{AF(s,ct)+3}], v[{BF(s)}:{BF(s)+3}], {cc}')
            if ct == 4 - 4 and boundary:
                c.append(WaitTag(f'st{n+1}', lgkm0=True)); A('s_barrier')
            if boundary or True:
                if nxt: c.append(nxt[ct])
            if ct == 1 and boundary:
                nn = n + NSLOT
                if nn < NST: c += dma_stage(nn)
            if ct == 4 and s + NB < NKS: c += bload(s + NB)
        if s == 0 and NSLOT - 1 < NST:
            c += dma_stage(NSLOT - 1)
        if s in (3, 19, 39, 59): st(c)
    st(c)
    for ct in range(5):
        a = ACC(ct); x = XR + 2 * ct
        A(f'v_lshlrev_b32 v50, 16, v{x}'); A(f'v_and_b32 v51, 0xffff0000, v{x}')
        A(f'v_lshlrev_b32 v52, 16, v{x+1}'); A(f'v_and_b32 v53, 0xffff0000, v{x+1}')
        for k in range(4): A(f'v_add_f32 v{50+k}, v{50+k}, v{a+k}')
        A(f'v_cvt_pk_bf16_f32 v{54+2*ct}, v50, v51'); A(f'v_cvt_pk_bf16_f32 v{55+2*ct}, v52, v53')
        A(f'buffer_store_dwordx2 v[{54+2*ct}:{55+2*ct}], v4, s[24:27], 0 offen offset:{ct*32}')
    st(c); st.real(c)
    st.dump(c, 8, 9, 30)
    A(f'L_{name}_end:')
    A('s_endpgm')
    return c

def finish(c, rep=None):
    c = insert_waits(c, rep)
    c = insert_hazard_nops(c, rep)
    return c

def kd(name, vgpr, agpr_off, sgpr=96):
    return f""".amdhsa_kernel {name}
  .amdhsa_next_free_vgpr {vgpr}
  .amdhsa_next_free_sgpr {sgpr}
  .amdhsa_accum_offset {agpr_off}
  .amdhsa_group_segment_fixed_size 0
  .amdhsa_kernarg_size 88
  .amdhsa_user_sgpr_count 2
  .amdhsa_user_sgpr_kernarg_segment_ptr 1
  .amdhsa_system_sgpr_workgroup_id_x 1
.end_amdhsa_kernel
"""

if __name__ == '__main__':
    rep = []
    c = finish(gen_k2(), rep)
    print(render(c)[:3000])
    print(len(c), 'instrs; est cycles', est_cycles(c))
    print('\n'.join(rep[:40]))
```

```python
import numpy as np
S, D, F, H, DH = 2048, 640, 1728, 32, 20
NKS = 74
ACT_OFF = 0
ACT_SIZE = 128 * NKS * 1024
WP_OFF = 0xA00000
WP_SIZE = 8 * NKS * 5 * 1024
KVS_OFF = 0xD00000
KVS_SIZE = 8 * 4 * 40 * 32 * 4

def krow(s, g, e):
    if s < 54:
        return 32 * s + 16 * (g >> 1) + 8 * (e >> 2) + 4 * (g & 1) + (e & 3)
    J = 4 * (s - 54) + g
    G, q = divmod(J, 10)
    if q < 8:
        hp, hh = q >> 1, q & 1
        r = 20 * (4 * G + hp) + 4 * hh + 8 * (e >> 2) + (e & 3)
    else:
        j = q - 8
        r = 20 * (4 * G + 2 * j + (e >> 2)) + 16 + (e & 3)
    return F + r

KROW = np.array([[[krow(s, g, e) for e in range(8)] for g in range(4)] for s in range(NKS)])

def pack_act(act):
    l = np.arange(64)
    tok = (np.arange(128)[:, None] * 16 + (l & 15)[None, :])
    kr = KROW[:, l >> 4, :]
    return act[tok[:, None, :, None], kr[None, :, :, :]]

def pack_wp(wcat):
    l = np.arange(64)
    col = (80 * np.arange(8)[:, None, None] + 16 * np.arange(5)[None, :, None] + (l & 15)[None, None, :])
    kr = KROW[:, l >> 4, :]
    return wcat[kr[None, :, None, :, :], col[:, None, :, :, None]]

def wg_map(wg):
    xcd, q = wg & 7, wg >> 3
    i = 8 * (xcd & 1) + (q & 7)
    j = 4 * (xcd >> 1) + (q >> 3)
    return i, j
```

```python
import sys
from k1 import *
from k2 import *
from build_util import assemble_check
NAME = 'parallel_sum__linear_kernel_hedgehog__glu_gated_reglu__prompt'
HEADER = open('cdna_kernels/' + NAME + '.s.ref').read().split('; Override launch geometry')[0]

def build(path, stamps=False, check=True):
    rep = []
    k1 = build_k1('k1_kernel', stamps=stamps, rep=rep)
    k2 = finish(gen_k2('k2_kernel', stamps=False), rep)
    txt = HEADER
    txt += '; @launch kernel=k1_kernel grid=(256,1,1) block=(256,1,1) lds=163840\n'
    txt += '; @launch kernel=k2_kernel grid=(256,1,1) block=(256,1,1) lds=143360\n'
    txt += '.amdgcn_target "amdgcn-amd-amdhsa--gfx950"\n.text\n'
    txt += '.globl k1_kernel\n.p2align 8\n.type k1_kernel,@function\n' + render(k1)
    txt += '.globl k2_kernel\n.p2align 8\n.type k2_kernel,@function\n' + render(k2)
    txt += '.section .rodata,"a"\n.p2align 6\n' + kd('k1_kernel', 512, 256, 102) + '.p2align 6\n' + kd('k2_kernel', 192, 192)
    open(path, 'w').write(txt)
    from collections import Counter
    print(path, 'K1 instrs', len(k1), 'K2', len(k2), 'bytes', len(txt), Counter(r.split(' before')[0] for r in rep))
    if check: assemble_check(path, NAME + '_kernel', lists=True)

if __name__ == '__main__':
    build('full.s', stamps=False)
    build('full_st.s', stamps=True)
```

```python
import re

REG_RE = re.compile(r'^(-|abs\(|\|)?([vas])(\d+)\)?\|?$')
RNG_RE = re.compile(r'^(-)?([vas])\[(\d+):(\d+)\]$')

def regs_of(op):
    op = op.strip()
    m = RNG_RE.match(op)
    if m:
        return [(m.group(2), i) for i in range(int(m.group(3)), int(m.group(4)) + 1)]
    m = REG_RE.match(op)
    if m:
        return [(m.group(2), int(m.group(3)))]
    if op in ('vcc',):
        return [('x', 'vcc')]
    if op in ('exec',):
        return [('x', 'exec')]
    if op == 'm0':
        return [('x', 'm0')]
    return []

TRANS = ('v_exp_f32', 'v_rcp_f32', 'v_rsq_f32', 'v_sqrt_f32', 'v_log_f32')
DLOPS = ('v_dot2c_f32_bf16', 'v_dot2_f32_bf16')

class I:
    __slots__ = ('text', 'op', 'kind', 'rd', 'wr', 'tag', 'passes', 'waitfor', 'cost', 'meta', 'offpath')
    def __init__(self, text, tag=None, waitfor=None, cost=None):
        self.text = text.strip()
        self.tag = tag
        self.waitfor = waitfor
        self.meta = None
        self.offpath = False
        t = self.text.split(';')[0].strip()
        self.passes = 0
        if t.endswith(':') or t.startswith('.') or t == '':
            self.op = ''
            self.kind = 'label'
            self.rd = []; self.wr = []; self.cost = 0
            return
        parts = t.split(None, 1)
        op = parts[0]
        op = re.sub(r'_(e32|e64|dpp|sdwa)$', '', op)
        self.op = op
        rest = parts[1] if len(parts) > 1 else ''
        ops = [o.strip() for o in rest.split(',')] if rest else []
        mods = ''
        if ops:
            last = ops[-1].split()
            if last:
                ops[-1] = last[0]
                mods = ' '.join(last[1:])
        R = lambda idxs: [r for i in idxs if i < len(ops) for r in regs_of(ops[i])]
        allidx = list(range(len(ops)))
        rd, wr = [], []
        c = 4
        if op.startswith('v_mfma'):
            self.kind = 'mfma'
            self.passes = 8 if '32x32' in op else 4
            wr = R([0]); rd = R([1, 2, 3]); c = 8
        elif op.startswith('v_cmp'):
            self.kind = 'valu'; wr = R([0]); rd = R(allidx[1:])
        elif op.startswith('v_permlane'):
            self.kind = 'valu'; wr = R([0, 1]); rd = R([0, 1])
        elif op == 'v_writelane_b32':
            self.kind = 'valu'; wr = R([0]); rd = R(allidx)
        elif op in ('v_fmac_f32',):
            self.kind = 'valu'; wr = R([0]); rd = R(allidx)
        elif op in ('v_dot2c_f32_bf16',):
            self.kind = 'dl'; wr = R([0]); rd = R(allidx)
        elif op in DLOPS:
            self.kind = 'dl'; wr = R([0]); rd = R(allidx[1:])
        elif op in ('v_add_co_u32', 'v_sub_co_u32'):
            self.kind = 'valu'; wr = R([0, 1]); rd = R(allidx[2:])
        elif op in ('v_addc_co_u32',):
            self.kind = 'valu'; wr = R([0, 1]); rd = R(allidx[2:])
        elif op.startswith('v_'):
            self.kind = 'trans' if op in TRANS else 'valu'
            wr = R([0]); rd = R(allidx[1:])
            if op in TRANS: c = 8
        elif op.startswith('ds_read'):
            self.kind = 'ds_read'; wr = R([0]); rd = R([1])
        elif op.startswith('ds_'):
            self.kind = 'ds_write'; rd = R(allidx)
        elif op.startswith('buffer_load') or op.startswith('global_load'):
            if ' lds' in ' ' + mods or op.startswith('global_load_lds'):
                self.kind = 'dma'; rd = R(allidx) + [('x', 'm0')]; c = 14
            else:
                self.kind = 'vload'; wr = R([0]); rd = R(allidx[1:]); c = 8
        elif op.startswith('buffer_store') or op.startswith('global_store'):
            self.kind = 'vstore'; rd = R(allidx); c = 8
        elif op.startswith('buffer_atomic') or op.startswith('global_atomic'):
            if 'sc0' in mods.split():
                self.kind = 'vload'; wr = R([0]); rd = R(allidx)
            else:
                self.kind = 'vstore'; rd = R(allidx)
            c = 8
        elif op in ('buffer_inv', 'buffer_wbl2'):
            self.kind = 'vstore'
        elif op == 's_waitcnt':
            self.kind = 'wait'
        elif op == 's_barrier':
            self.kind = 'barrier'
        elif op == 's_nop':
            self.kind = 'nop'; c = 4 * (int(ops[0], 0) + 1)
        elif op.startswith('s_cbranch') or op in ('s_branch', 's_endpgm', 's_setpc_b64'):
            self.kind = 'branch'; rd = R(allidx)
        elif op.startswith('s_load') or op in ('s_memtime', 's_memrealtime'):
            self.kind = 'smem'; wr = R([0]); rd = R(allidx[1:])
        elif op.startswith('s_cmp') or op in ('s_sleep', 's_setprio'):
            self.kind = 'salu'; rd = R(allidx)
        elif op.startswith('s_'):
            self.kind = 'salu'; wr = R([0]); rd = R(allidx[1:])
            if 'saveexec' in op:
                wr = wr + [('x', 'exec')]; rd = rd + [('x', 'exec')]
        else:
            raise ValueError('unknown op ' + self.text)
        self.rd = rd; self.wr = wr
        self.cost = c if cost is None else cost
    def __repr__(self):
        return self.text

class WaitTag:
    def __init__(self, tags, lgkm0=False):
        self.tags = set(tags) if not isinstance(tags, str) else {tags}
        self.lgkm0 = lgkm0
        self.kind = 'waittag'; self.cost = 4; self.rd = []; self.wr = []; self.op = ''; self.passes = 0
        self.text = f'; waittag {self.tags}'
        self.offpath = False
        self.tag = None

VM_KINDS = ('vload', 'vstore', 'dma')
LG_KINDS = ('ds_read', 'ds_write')

def insert_waits(code, report=None):
    out = []
    vm = []
    lg = []
    smem_pending = set()
    def emit_wait(vmn=None, lgn=None):
        parts = []
        if vmn is not None:
            vmn = min(vmn, 63); parts.append(f'vmcnt({vmn})')
            del vm[:max(0, len(vm) - vmn)]
        if lgn is not None:
            lgn = min(lgn, 15); parts.append(f'lgkmcnt({lgn})')
            del lg[:max(0, len(lg) - lgn)]
            if lgn == 0: smem_pending.clear()
        w = I('s_waitcnt ' + ' '.join(parts))
        out.append(w)
    for ins in code:
        if ins.offpath:
            out.append(ins); continue
        if isinstance(ins, WaitTag):
            need = None
            for k, o in enumerate(vm):
                if o.tag in ins.tags: need = k
            vmn = None if need is None else len(vm) - 1 - need
            lgn = 0 if (ins.lgkm0 and (lg or smem_pending)) else None
            if vmn is not None or lgn is not None:
                emit_wait(vmn, lgn)
            continue
        if ins.kind == 'wait':
            m = re.search(r'vmcnt\((\d+)\)', ins.text)
            if m: del vm[:max(0, len(vm) - int(m.group(1)))]
            m = re.search(r'lgkmcnt\((\d+)\)', ins.text)
            if m:
                n = int(m.group(1)); del lg[:max(0, len(lg) - n)]
                if n == 0: smem_pending.clear()
            out.append(ins); continue
        if ins.kind in ('label', 'branch') :
            out.append(ins); continue
        touched = set(ins.rd) | set(ins.wr)
        vmn = lgn = None
        for k, o in enumerate(vm):
            if o.kind == 'vload' and touched & set(o.wr):
                if ins.kind == 'vload' and not (set(ins.rd) & set(o.wr)): continue
                vmn = len(vm) - 1 - k
        for k, o in enumerate(lg):
            if o.kind == 'ds_read' and touched & set(o.wr):
                if ins.kind == 'ds_read' and not (set(ins.rd) & set(o.wr)): continue
                lgn = len(lg) - 1 - k
        if touched & smem_pending: lgn = 0
        if ins.kind in LG_KINDS and len(lg) >= 15: lgn = 14 if lgn is None else min(lgn, 14)
        if ins.kind in VM_KINDS and len(vm) >= 63: vmn = 62 if vmn is None else min(vmn, 62)
        if vmn is not None or lgn is not None:
            emit_wait(vmn, lgn)
        out.append(ins)
        if ins.kind in VM_KINDS: vm.append(ins)
        elif ins.kind in LG_KINDS:
            lg.append(ins)
            if len(lg) > 15 and report is not None: report.append(f'lgkm overflow at {ins.text}')
        elif ins.kind == 'smem': smem_pending |= set(ins.wr)
        if len(vm) > 63 and report is not None: report.append(f'vmcnt overflow at {ins.text}')
    return out

def states(ins):
    if ins.kind == 'label': return 0
    if ins.kind == 'nop': return ins.cost // 4
    return 1

def insert_hazard_nops(code, report=None):
    out = []
    hist = []
    pos = 0
    def need_between(p, c):
        n = 0
        pw = set(p.wr); cr = set(c.rd); cw = set(c.wr)
        vw = {r for r in pw if r[0] in 'va'}
        if p.kind == 'mfma':
            big = {2: 5, 4: 8, 8: 12, 16: 20}[p.passes]
            if c.kind == 'mfma':
                ops = c.text.split(None, 1)[1].split(',')
                a = set(regs_of(ops[1])) | set(regs_of(ops[2])); cc = regs_of(ops[3].split()[0])
                if vw & a: n = max(n, big)
                if vw & set(cc):
                    same = (cc == list(p.wr)) and c.passes == p.passes
                    n = max(n, 0 if same else {2: 4, 4: 6, 8: 10, 16: 18}[p.passes])
            else:
                if vw & (cr | cw): n = max(n, big)
        if p.kind == 'mfma' and c.kind in ('valu', 'trans', 'dl'):
            ops = p.text.split(None, 1)[1].split(',')
            cc = set(regs_of(ops[3].split()[0]))
            if cc & cw: n = max(n, {2: 1, 4: 3, 8: 7, 16: 15}[p.passes])
        if p.kind in ('valu', 'trans', 'dl'):
            if c.kind == 'mfma' and vw & cr: n = max(n, 2)
            if c.op.startswith('v_permlane') and vw & cr: n = max(n, 2)
            if c.op in ('v_readfirstlane_b32', 'v_readlane_b32') and vw & cr: n = max(n, 1)
            if p.kind == 'trans' and c.kind in ('valu', 'dl', 'mfma') and vw & cr: n = max(n, 1)
            if p.kind == 'dl' and vw & (cr | cw):
                if not (c.op == p.op and c.op == 'v_dot2c_f32_bf16' and vw & cw and not (vw & (cr - cw))): n = max(n, 3)
            sw = {r for r in pw if r[0] == 's' or r == ('x', 'vcc')}
            if sw:
                if c.kind in VM_KINDS and sw & cr: n = max(n, 5)
                if c.kind in ('valu', 'trans', 'dl') and sw & cr: n = max(n, 2)
                if c.op in ('v_readlane_b32', 'v_writelane_b32') and sw & cr: n = max(n, 4)
            if ('x', 'exec') in pw and c.kind == 'mfma': n = max(n, 4)
        if p.kind == 'vstore' and 'x4' in p.op or (p.kind == 'vstore' and 'x3' in p.op):
            ops = p.text.split(None, 1)[1].split(',')
            data = set(regs_of(ops[0].strip()))
            if data & cw: n = max(n, 2 if c.kind in ('valu', 'trans', 'dl') else 1)
        if p.kind == 'salu' and ('x', 'm0') in pw and c.kind == 'dma': n = max(n, 1)
        if p.kind == 'salu' and ('x', 'exec') in pw and c.kind in ('valu', 'trans', 'dl', 'mfma') and False: n = max(n, 0)
        return n
    for ins in code:
        if ins.kind == 'label':
            out.append(ins); continue
        req = 0
        for (p, ppos) in reversed(hist):
            d = pos - ppos - 1
            if d >= 20: break
            n = need_between(p, ins)
            if n > d: req = max(req, n - d)
        if req:
            if report is not None: report.append(f'nop {req} before: {ins.text}')
            r = req
            while r > 0:
                k = min(r, 16)
                nop = I(f's_nop {k-1}')
                out.append(nop); pos += k; r -= k
        out.append(ins)
        hist.append((ins, pos))
        pos += states(ins)
        if len(hist) > 64: del hist[:32]
    return out

def _cost(it):
    return sum(x.cost for x in it) if isinstance(it, list) else it.cost

def weave(main, fillers):
    ng = len(main)
    post = [g[1] if isinstance(g, tuple) else [] for g in main]
    main = [g[0] if isinstance(g, tuple) else g for g in main]
    base = [sum(i.cost for i in g) + sum(i.cost for i in p) for g, p in zip(main, post)]
    items = [(f[0], f[1], f[2] if len(f) > 2 and f[2] is not None else ng - 1) for f in fillers]
    n = len(items)
    cost = [_cost(it[1]) for it in items]
    eff = [0] * n
    m = ng - 1
    for q in range(n - 1, -1, -1):
        m = min(m, items[q][2]); eff[q] = m
    pre = [0]
    for x in cost: pre.append(pre[-1] + x)
    bpre = [0]
    for x in base: bpre.append(bpre[-1] + x)
    out = []
    k = 0
    for g in range(ng):
        out.extend(main[g])
        gap = base[g]
        while k < n:
            mn, it, mx = items[k]
            if mn > g: break
            D = max(eff[k], g)
            j = k
            while j + 1 < n and eff[j + 1] <= D and items[j + 1][0] <= D: j += 1
            if D > g:
                target = (bpre[D + 1] - bpre[g] + (gap - base[g]) + pre[j + 1] - pre[k]) / (D - g + 1)
                if gap + cost[k] / 2 > target: break
            out.extend(it if isinstance(it, list) else [it]); gap += cost[k]; k += 1
        out.extend(post[g])
    while k < n:
        it = items[k][1]; out.extend(it if isinstance(it, list) else [it]); k += 1
    return out

def chunk_atoms(code, nparts):
    nocut = [False] * (len(code) + 1)
    lastw = None
    for i, ins in enumerate(code):
        op = getattr(ins, 'op', '')
        reads = op in ('s_cselect_b32', 's_cselect_b64', 's_addc_u32', 's_subb_u32') or op.startswith('s_cbranch_scc')
        if reads and lastw is not None:
            for k in range(lastw + 1, i + 1): nocut[k] = True
        if op.startswith('s_') and op not in ('s_cselect_b32', 's_cselect_b64', 's_mov_b32', 's_mov_b64', 's_nop', 's_waitcnt', 's_mul_i32', 's_mul_hi_u32') and ins.kind == 'salu': lastw = i
    parts = []; start = 0
    for p in range(1, nparts):
        cut = len(code) * p // nparts
        while cut < len(code) and nocut[cut]: cut += 1
        if cut < start: cut = start
        parts.append(code[start:cut]); start = cut
    parts.append(code[start:])
    return parts

def est_cycles(code):
    t = 0; mf_free = 0
    for i in code:
        if i.kind == 'label': continue
        if i.kind == 'mfma':
            t = max(t, mf_free); mf_free = t + 4 * i.passes; t += 8
        else:
            t += i.cost
    return max(t, mf_free)

def render(code):
    lines = []
    for i in code:
        if i.kind == 'label': lines.append(i.text)
        else: lines.append('    ' + i.text)
    return '\n'.join(lines) + '\n'

def offpath(lst):
    for i in lst: i.offpath = True
    return lst

def dma(text, m0, tag=None):
    i = I(text, tag=tag); i.meta = ('m0', m0[0], m0[1]); return i

def place_m0(code):
    out = []
    cur = None
    for ins in code:
        if ins.kind in ('label', 'branch') : cur = None
        if ins.kind == 'dma' and ins.meta and ins.meta[0] == 'm0':
            need = ins.meta[1:]
            if cur != need:
                w = I(f's_add_u32 m0, s{need[0]}, {need[1]}')
                k = len(out)
                if k > 0 and (out[k-1].kind in ('valu', 'trans', 'ds_read', 'ds_write', 'mfma', 'wait') or out[k-1].op in ('s_add_u32', 's_lshl_b32')): k -= 1
                out.insert(k, w); cur = need
        elif ('x', 'm0') in ins.wr: cur = None
        out.append(ins)
    return out
```

```python
from ir import *
from layout import *
from k2 import emit_wgmap, Stamps, finish, kd

XF0 = 96
XF = lambda s: XF0 + 4 * s
def vr(b, n=4): return f'v[{b}:{b+n-1}]'
def ar(b, n=4): return f'a[{b}:{b+n-1}]'

S_X, S_WQKV, S_WPHI, S_WO, S_BX, S_WG, S_WU, S_WD = 16, 18, 20, 22, 24, 26, 28, 30
S_DBG, S_WS = 32, 34
S_WAVE, S_I, S_J, S_T0, S_T1, S_T2 = 36, 37, 38, 39, 40, 41
SRD_X = 44
SRD_W = 48
SRD_W2 = 52
SRD_ACT = 56
S_SOFF, S_SOFF2, S_ROLE = 8, 9, 10
SRD_T = 4
SRD_T2 = 12
S_KB = 76
V_LANE, V_T, V_HH = 1, 2, 3
V_R, V_C = 4, 5
V_ACTL = 6
V_ST = 7
V_DMA = 8
V_TMP = 32

OPT = dict(rot=True, touch=True)

class Ring:
    def __init__(self, lo, hi, first_at=None):
        self.lo, self.hi = lo, hi
        self.pos = lo
        self.first_at = first_at
        self.alloc = []
        self.nb = {}
    def add(self, size):
        if not self.alloc and self.first_at is not None:
            base = self.first_at
        else:
            base = self.pos
            if base + size > self.hi: base = self.lo
        self.alloc.append((base, size))
        self.pos = base + size
        if self.pos >= self.hi: self.pos = self.lo
        return base
    def add_at(self, base, size, not_before=-1):
        self.alloc.append((base, size)); self.nb[len(self.alloc) - 1] = not_before
    def free_after(self, n):
        b, s = self.alloc[n]
        last = self.nb.get(n, -1)
        for m in range(n):
            bm, sm = self.alloc[m]
            if bm < b + s and b < bm + sm: last = m
        return last

def kb_entry(n):
    if n == 0: return []
    return [I(f's_add_u32 s{S_KB+n}, s{S_KB+n-1}, 64'), I(f's_cmp_eq_u32 s{S_KB+n}, 640'), I(f's_cselect_b32 s{S_KB+n}, 0, s{S_KB+n}')]

def x_dma(n):
    r = [I(f's_lshl_b32 s{S_SOFF}, s{S_KB+n}, 1')]
    for q in range(4):
        r.append(dma(f'buffer_load_dwordx4 v{V_DMA+q}, s[{SRD_X}:{SRD_X+3}], s{S_SOFF} offen offset:{q*1024} lds', (S_T2, (n % 8) * 16384), tag=f'x{n}'))
    return r

def prologue(c, st):
    A = lambda t, **k: c.append(I(t, **k))
    A('s_load_dwordx16 s[16:31], s[0:1], 0')
    A('s_load_dwordx4 s[32:35], s[0:1], 72')
    A(f'v_and_b32 v{V_LANE}, 63, v0')
    A('v_lshrrev_b32 v32, 6, v0')
    A(f'v_lshrrev_b32 v33, 3, v{V_LANE}')
    A(f'v_readfirstlane_b32 s{S_WAVE}, v32')
    A(f'v_and_b32 v34, 7, v{V_LANE}')
    A('v_lshrrev_b32 v35, 1, v33')
    A('v_xor_b32 v34, v34, v35')
    A('v_mul_u32_u24 v33, 1280, v33')
    for q in range(4):
        A(f'v_xor_b32 v35, {4*(q&1)}, v34')
        A(f'v_lshl_add_u32 v35, v35, 4, v33')
        A(f'v_add_u32 v{V_DMA+q}, {q*(8*1280-1024)}, v35')
    emit_wgmap(c, S_I, S_J, S_T0)
    if OPT['rot']:
        A(f's_and_b32 s{S_T0}, s{S_J}, 3'); A(f's_mul_i32 s{S_T0}, s{S_T0}, 5'); A(f's_lshr_b32 s{S_T0}, s{S_T0}, 1')
        A(f's_and_b32 s{S_T1}, s{S_I}, 7'); A(f's_add_u32 s{S_T0}, s{S_T0}, s{S_T1}')
        A(f's_sub_u32 s{S_T1}, s{S_T0}, 10'); A(f's_cmp_ge_u32 s{S_T0}, 10'); A(f's_cselect_b32 s{S_T0}, s{S_T1}, s{S_T0}')
        A(f's_lshl_b32 s{S_KB}, s{S_T0}, 6')
    else:
        A(f's_mov_b32 s{S_KB}, 0')
    c.extend(kb_entry(1))
    A(f's_lshl_b32 s{S_T0}, s{S_I}, 2'); A(f's_add_u32 s{S_T0}, s{S_T0}, s{S_WAVE}')
    A(f's_mul_i32 s{S_T1}, s{S_T0}, {32*1280}')
    A(f's_lshl_b32 s{S_T2}, s{S_WAVE}, 12')
    A('s_waitcnt lgkmcnt(0)')
    A(f's_add_u32 s{SRD_X}, s{S_X}, s{S_T1}'); A(f's_addc_u32 s{SRD_X+1}, s{S_X+1}, 0')
    A(f's_mov_b32 s{SRD_X+2}, {32*1280}'); A(f's_mov_b32 s{SRD_X+3}, 0x00020000')
    c.extend(x_dma(0)); c.extend(x_dma(1))
    for n in range(2, 10): c.extend(kb_entry(n))
    A(f'v_and_b32 v{V_T}, 31, v{V_LANE}')
    A(f'v_lshrrev_b32 v{V_HH}, 5, v{V_LANE}')

def x_consume(c, st, alu, extra):
    A = lambda t, **k: c.append(I(t, **k))
    A(f'v_lshrrev_b32 v32, 1, v{V_T}'); A('v_and_b32 v32, 7, v32'); A(f'v_xor_b32 v32, v{V_HH}, v32')
    A(f'v_lshlrev_b32 v33, 7, v{V_T}'); A(f'v_add_u32 v33, s{S_T2}, v33')
    for sub in range(4):
        A(f'v_xor_b32 v34, {2*sub}, v32'); A(f'v_lshl_add_u32 v{40+sub}, v34, 4, v33')
        A(f'v_add_u32 v{44+sub}, 0x10000, v{40+sub}')
    A('v_mov_b32 v38, 0x3f803f80')
    for k in range(8): A(f'v_mov_b32 v{48+k}, 0')
    c.extend(alu)
    st(c, 'setup')
    c.extend(x_dma(2)); c.extend(x_dma(3))
    for n in range(10):
        c.append(WaitTag(f'x{n}'))
        off = (n % 8) * 16384
        for sub in range(4):
            A(f'ds_read_b128 {vr(XF(4*n+sub))}, v{(40 if off < 65536 else 44)+sub} offset:{off & 0xffff}')
        if n + 4 < 10: c.extend(x_dma(n + 4))
        if n in extra: c.extend(extra[n])
        for k in range(16):
            x = XF(4 * n) + k
            A(f'v_dot2c_f32_bf16 v{48 + (k & 3)}, v{x}, v38')
            A(f'v_dot2c_f32_bf16 v{52 + (k & 3)}, v{x}, v{x}')
        if n in (0, 4, 9): st(c, f'x{n}')

def ln_finalize(c):
    A = lambda t, **k: c.append(I(t, **k))
    A('v_add_f32 v48, v48, v49'); A('v_add_f32 v50, v50, v51'); A('v_add_f32 v52, v52, v53'); A('v_add_f32 v54, v54, v55')
    A('v_add_f32 v48, v48, v50'); A('v_add_f32 v52, v52, v54')
    A('s_nop 1')
    A('v_permlane32_swap_b32 v48, v52')
    A('v_add_f32 v48, v48, v52')
    A('v_mov_b32 v49, v48')
    A('s_nop 1')
    A('v_permlane32_swap_b32 v48, v49')
    A(f'v_mul_f32 v48, {1.0/640!r}, v48')
    A(f'v_mul_f32 v49, {1.0/640!r}, v49')
    A('v_fma_f32 v49, -v48, v48, v49')
    A('v_max_f32 v49, 0, v49')
    A('v_add_f32 v49, 0x3727c5ac, v49')
    A(f'v_rsq_f32 v{V_R}, v49')
    A('s_nop 0')
    A(f'v_mul_f32 v{V_C}, v48, v{V_R}'); A(f'v_sub_f32 v{V_C}, 0, v{V_C}')

def ln_norm(s, t0):
    r = []
    for k in range(4):
        x = XF(s) + k
        r += [I(f'v_lshlrev_b32 v{t0+2*k}, 16, v{x}'), I(f'v_and_b32 v{t0+2*k+1}, 0xffff0000, v{x}')]
    for k in range(8): r.append(I(f'v_fma_f32 v{t0+k}, v{t0+k}, v{V_R}, v{V_C}'))
    for k in range(4): r.append(I(f'v_cvt_pk_bf16_f32 v{XF(s)+k}, v{t0+2*k}, v{t0+2*k+1}'))
    return r

def act_lane_offset(c):
    A = lambda t, **k: c.append(I(t, **k))
    A(f'v_lshrrev_b32 v32, 4, v{V_T}'); A(f'v_mul_u32_u24 v32, {NKS*1024}, v32')
    A(f'v_and_b32 v33, 15, v{V_T}'); A(f'v_lshl_add_u32 v33, v{V_HH}, 4, v33')
    A(f'v_lshl_add_u32 v{V_ACTL}, v33, 4, v32')
    A(f's_lshl_b32 s{S_T0}, s{S_I}, 2'); A(f's_add_u32 s{S_T0}, s{S_T0}, s{S_WAVE}')
    A(f's_mul_i32 s{S_T0}, s{S_T0}, {2*NKS*1024}')
    A(f's_add_u32 s{SRD_ACT}, s{S_WS}, s{S_T0}'); A(f's_addc_u32 s{SRD_ACT+1}, s{S_WS+1}, 0')
    A(f's_mov_b32 s{SRD_ACT+2}, {2*NKS*1024}'); A(f's_mov_b32 s{SRD_ACT+3}, 0x00020000')

def wp_task_setup(c, vbase):
    A = lambda t, **k: c.append(I(t, **k))
    A(f's_lshl_b32 s60, s2, 2'); A(f's_add_u32 s60, s60, s{S_WAVE}')
    A('s_mul_hi_u32 s61, s60, 0x1999999a')
    A('s_mul_i32 s62, s61, 10'); A('s_sub_u32 s62, s60, s62')
    A('s_cmp_lt_u32 s61, 54')
    A(f's_cselect_b32 s{SRD_T}, s{S_WD}, s{S_WO}'); A(f's_cselect_b32 s{SRD_T+1}, s{S_WD+1}, s{S_WO+1}')
    A(f's_mov_b32 s63, {D*1280}'); A(f's_cselect_b32 s{SRD_T+2}, {F*1280}, s63')
    A(f's_mov_b32 s{SRD_T+3}, 0x00020000')
    A('s_cmp_lt_u32 s61, 74'); A(f's_cselect_b32 s{SRD_T+2}, s{SRD_T+2}, 0')
    A(f'v_lshrrev_b32 v32, 3, v{V_LANE}'); A(f'v_and_b32 v33, 7, v{V_LANE}')
    A('v_lshrrev_b32 v34, 2, v32'); A('v_and_b32 v35, 3, v32')
    A('s_lshl_b32 s63, s62, 7')
    for g in range(4):
        d = vbase + g
        A(f's_lshl_b32 s64, s61, 5'); A(f's_add_u32 s64, s64, {16*(g>>1) + 4*(g&1)}')
        A(f's_sub_u32 s65, s61, 54'); A('s_lshl_b32 s65, s65, 2'); A(f's_add_u32 s65, s65, {g}')
        A('s_mul_hi_u32 s66, s65, 0x1999999a'); A('s_mul_i32 s67, s66, 10'); A('s_sub_u32 s67, s65, s67')
        A('s_mul_i32 s66, s66, 80')
        A('s_lshr_b32 s68, s67, 1'); A('s_mul_i32 s68, s68, 20'); A('s_and_b32 s69, s67, 1'); A('s_lshl_b32 s69, s69, 2'); A('s_add_u32 s68, s68, s69')
        A('s_sub_u32 s69, s67, 8'); A('s_mul_i32 s69, s69, 40'); A('s_add_u32 s69, s69, 16')
        A('s_cmp_lt_u32 s67, 8'); A('s_cselect_b32 s68, s68, s69'); A('s_cselect_b32 s69, 8, 20')
        A('s_add_u32 s68, s68, s66')
        A('s_cmp_lt_u32 s61, 54'); A('s_cselect_b32 s68, s64, s68'); A('s_cselect_b32 s69, 8, s69')
        A(f'v_mul_u32_u24 v36, s69, v34'); A('v_add_u32 v36, v36, v35'); A('v_add_u32 v36, s68, v36')
        A('v_mul_u32_u24 v36, 1280, v36'); A('v_lshl_add_u32 v36, v33, 4, v36'); A('v_add_u32 v36, s63, v36')
        A(f'v_subrev_u32 v{d}, {g*1024}, v36')
    A(f's_add_u32 s{SRD_T2}, s{S_WS}, {WP_OFF}'); A(f's_addc_u32 s{SRD_T2+1}, s{S_WS+1}, 0')
    A(f's_mov_b32 s{SRD_T2+2}, {WP_SIZE}'); A(f's_mov_b32 s{SRD_T2+3}, 0x00020000')
    A('s_cmp_lt_u32 s61, 74'); A(f's_cselect_b32 s{SRD_T2+2}, s{SRD_T2+2}, 0')
    for ctp in range(4):
        A(f's_lshl_b32 s64, s62, 2'); A(f's_add_u32 s64, s64, {ctp}')
        A('s_mul_hi_u32 s65, s64, 0x33333334'); A('s_mul_i32 s66, s65, 5'); A('s_sub_u32 s66, s64, s66')
        A(f's_mul_i32 s65, s65, {NKS*5120}'); A('s_mul_i32 s67, s61, 5120'); A('s_add_u32 s65, s65, s67')
        A('s_lshl_b32 s66, s66, 10'); A(f's_add_u32 s{70+ctp}, s65, s66')

def wp_task_touch(vbase, vdummy):
    if not OPT['touch']: return []
    return [I(f'buffer_load_dword v{vdummy}, v{vbase+g}, s[{SRD_T}:{SRD_T+3}], 0 offen offset:{g*1024}', tag='touch') for g in range(4)]

def wp_task_dma(vbase, lds_base):
    r = []
    for g in range(4):
        r.append(dma(f'buffer_load_dwordx4 v{vbase+g}, s[{SRD_T}:{SRD_T+3}], 0 offen offset:{g*1024} lds', (S_T2, lds_base), tag='wp'))
    return r

def wp_task_finish(lds_base, t0):
    r = []
    r += [I(f'v_lshrrev_b32 v{t0}, 4, v{V_LANE}'), I(f'v_lshlrev_b32 v{t0}, 10, v{t0}'),
          I(f'v_bfe_u32 v{t0+1}, v{V_LANE}, 2, 2'), I(f'v_lshl_add_u32 v{t0}, v{t0+1}, 7, v{t0}'),
          I(f'v_and_b32 v{t0+1}, 3, v{V_LANE}'), I(f'v_lshl_add_u32 v{t0}, v{t0+1}, 3, v{t0}'),
          I(f'v_add_u32 v{t0}, s{S_T2}, v{t0}'), I(f'v_add_u32 v{t0}, {lds_base}, v{t0}'),
          I(f'v_lshlrev_b32 v{t0+1}, 4, v{V_LANE}')]
    r.append(WaitTag('wp'))
    for ctp in range(4):
        d = t0 + 2 + 4 * ctp
        for j in range(2):
            r.append(I(f'ds_read_b64_tr_b16 v[{d+2*j}:{d+2*j+1}], v{t0} offset:{j*512 + ctp*32}'))
    for ctp in range(4):
        d = t0 + 2 + 4 * ctp
        r.append(I(f'buffer_store_dwordx4 {vr(d)}, v{t0+1}, s[{SRD_T2}:{SRD_T2+3}], s{70+ctp} offen'))
    return r

class Stream:
    def __init__(self, ring, pieces):
        self.ring = ring
        self.pieces = pieces
        self.next = 0
        self.queue = []
        self.n = len(ring.alloc)
    def release(self, lim):
        while self.next < self.n and self.ring.free_after(self.next) < lim:
            self.queue += self.pieces(self.next); self.next += 1
    def take(self, k):
        out = []
        for _ in range(min(k, len(self.queue))): out += self.queue.pop(0)
        return out
    def flush(self):
        return self.take(len(self.queue))

def gemm_pass(stream, st, st0, nst, ksps, ntile, accf, afr, reads, nxt_reads, dma_gaps, late=False, stamp_every=0):
    main = []
    nk = nst * ksps
    h = ntile // 2
    for s in range(nk):
        n = st0 + s // ksps
        last = (s + 1) % ksps == 0
        sync = last and n + 1 < stream.n
        rd = []
        if s + 1 < nk:
            for T in range(ntile): rd += reads(n + (1 if last else 0), (s + 1) % ksps, T, afr(s + 1, T))
        else:
            rd = nxt_reads
        sgap = h if late else 0
        rgaps = list(range(h, ntile)) if late else list(range(max(1, (ntile + 1) // 2)))
        per = (len(rd) + len(rgaps) - 1) // len(rgaps)
        for T in range(ntile):
            g = []
            if T == sgap:
                g.append(WaitTag(f'w{n+1}', lgkm0=True) if sync else I('s_waitcnt lgkmcnt(0)'))
            elif late and T == 0:
                g.append(I(f's_waitcnt lgkmcnt({ntile})'))
            cc = '0' if s == 0 else ar(accf(T), 16)
            g.append(I(f'v_mfma_f32_32x32x16_bf16 {ar(accf(T),16)}, {ar(afr(s,T))}, {vr(XF(s))}, {cc}'))
            if T == sgap and sync:
                g.append(I('s_barrier'))
                if stamp_every and (n % stamp_every == 0): st(g, f'S{n+1}')
                stream.release(n + 1)
            if T in rgaps:
                k = rgaps.index(T)
                g += rd[k * per:(k + 1) * per]
            post = []
            for _ in range(dma_gaps.count(T)): post += stream.take(1)
            main.append((g, post))
    return main

def mlp_role(c0, st):
    c = []
    A = lambda t, **k: c.append(I(t, **k))
    NU = 3
    WD, V_AF = 20, 14
    A(f's_lshr_b32 s{S_ROLE}, s{S_J}, 2'); A(f's_lshl_b32 s{S_ROLE}, s{S_ROLE}, 1')
    A(f's_and_b32 s{S_T0}, s{S_J}, 1'); A(f's_add_u32 s{S_ROLE}, s{S_ROLE}, s{S_T0}')
    A(f's_cmp_lt_u32 s{S_WAVE}, 2')
    A(f's_cselect_b32 s{SRD_W}, s{S_WG}, s{S_WU}'); A(f's_cselect_b32 s{SRD_W+1}, s{S_WG+1}, s{S_WU+1}')
    A(f's_mov_b32 s{SRD_W+2}, {D*F*2}'); A(f's_mov_b32 s{SRD_W+3}, 0x00020000')
    A(f'v_lshrrev_b32 v32, 3, v{V_LANE}'); A(f'v_and_b32 v33, 7, v{V_LANE}')
    A('v_bfe_u32 v34, v32, 1, 1'); A('v_lshlrev_b32 v34, 2, v34'); A('v_xor_b32 v33, v33, v34')
    A(f's_and_b32 s{S_T0}, s{S_WAVE}, 1'); A(f's_lshl_b32 s{S_T0}, s{S_T0}, 3')
    A(f'v_add_u32 v32, s{S_T0}, v32'); A('v_mul_u32_u24 v32, 3456, v32'); A('v_lshl_add_u32 v32, v33, 4, v32')
    A(f's_mul_i32 s{S_T0}, s{S_ROLE}, {NU*128}')
    A(f'v_add_u32 v32, s{S_T0}, v32')
    for q in range(4): A(f'v_add_u32 v{WD+q}, {q*(16*3456-1024)}, v32')
    K = 1024
    ring = Ring(0, 0)
    slotA = (128 * K, 0, 32 * K, 64 * K)
    for n in range(10): ring.add_at(slotA[n % 4], 32 * K)
    WP_LDS = 96 * K
    for k, b_ in enumerate((112, 96, 32, 48, 64, 80, 128, 144, 0, 16)):
        ring.add_at(b_ * K, 16 * K, not_before=(7 if k == 1 else -1))
    def pieces(n):
        r = []
        units = (0, 1) if n < 10 else (2,)
        k0 = n % 10
        for ui, u in enumerate(units):
            for q in range(4):
                g = []
                if q == 0: g += [I(f's_add_u32 s{S_SOFF2}, s{S_KB+k0}, {u*128}')]
                g.append(dma(f'buffer_load_dwordx4 v{WD+q}, s[{SRD_W}:{SRD_W+3}], s{S_SOFF2} offen offset:{q*1024} lds', (S_T2, ring.alloc[n][0] + ui * 16384), tag=f'w{n}'))
                r.append(g)
        return r
    stream = Stream(ring, pieces)
    A(f'v_lshrrev_b32 v32, 5, v{V_LANE}'); A('v_lshlrev_b32 v32, 12, v32')
    A(f'v_bfe_u32 v33, v{V_LANE}, 2, 2'); A('v_lshl_add_u32 v32, v33, 7, v32')
    A(f'v_bfe_u32 v34, v{V_LANE}, 4, 1'); A('v_lshl_add_u32 v32, v34, 5, v32')
    A(f'v_and_b32 v34, 3, v{V_LANE}'); A('v_lshl_add_u32 v32, v34, 3, v32')
    A('v_lshrrev_b32 v33, 1, v33'); A('v_lshlrev_b32 v33, 6, v33')
    for T in range(2):
        A(f'v_xor_b32 v34, {64*T}, v33'); A(f'v_add_u32 v{V_AF+3*T}, v32, v34')
        A(f'v_add_u32 v{V_AF+3*T+1}, 0x10000, v{V_AF+3*T}'); A(f'v_add_u32 v{V_AF+3*T+2}, 0x20000, v{V_AF+3*T}')
    act_lane_offset(c)
    wp_task_setup(c, 88)
    alu = c
    c = c0
    A = lambda t, **k: c.append(I(t, **k))
    conv = [I(f's_mul_i32 s{S_KB+n}, s{S_KB+n}, 3456') for n in range(10)]
    stream.next = 1
    p0 = [i for g in pieces(0) for i in g]
    x_consume(c, st, alu, {6: conv + p0[:5], 7: p0[5:], 8: wp_task_touch(88, 92)})
    A('s_barrier')
    stream.release(0)
    c.extend(stream.take(4))
    ln_finalize(c)
    ACC = lambda u, T: 64 * u + 16 * T
    AFB = 192
    def reads(n, sp, T, dst):
        ui, T4 = divmod(T, 4)
        M, Tt = divmod(T4, 2); r = []
        for j in range(2):
            off = ring.alloc[n][0] + ui * 16384 + M * 8192 + sp * 1024 + j * 512
            r.append(I(f'ds_read_b64_tr_b16 {ar(dst+2*j, 2)}, v{V_AF+3*Tt+(off>>16)} offset:{off & 0xffff}'))
        return r
    def epilogue(u):
        r = []
        for T in range(2):
            g, up = ACC(u, T), ACC(u, 2 + T)
            P = 64 + 8 * T
            for i in range(0, 16, 2):
                t = V_TMP + 4 * ((i // 2) % 4)
                r += [I(f'v_accvgpr_read_b32 v{t}, a{g+i}'), I(f'v_accvgpr_read_b32 v{t+1}, a{g+i+1}'),
                      I(f'v_accvgpr_read_b32 v{t+2}, a{up+i}'), I(f'v_accvgpr_read_b32 v{t+3}, a{up+i+1}'),
                      I(f'v_max_f32 v{t}, 0, v{t}'), I(f'v_max_f32 v{t+1}, 0, v{t+1}'),
                      I(f'v_mul_f32 v{t}, v{t}, v{t+2}'), I(f'v_mul_f32 v{t+1}, v{t+1}, v{t+3}'),
                      I(f'v_cvt_pk_bf16_f32 v{P+i//2}, v{t}, v{t+1}')]
            r.append(I(f's_mul_i32 s{S_T0}, s{S_ROLE}, {NU*2*1024}'))
            r.append(I(f's_add_u32 s{S_T0}, s{S_T0}, {(2*u+T)*1024}'))
            for ch in range(2):
                r.append(I(f'buffer_store_dwordx4 {vr(P+4*ch)}, v{V_ACTL}, s[{SRD_ACT}:{SRD_ACT+3}], s{S_T0} offen offset:{ch*512}', tag='hst'))
        return r
    SE = OPT.get('se', 2)
    c.extend(ln_norm(0, V_TMP))
    c.append(WaitTag('w0')); A('s_barrier')
    st(c, 'S0')
    afrA = lambda s, T: AFB + 32 * (s % 2) + 4 * T
    afrB = afrA
    for T in range(8): c.extend(reads(0, 0, T, afrA(0, T)))
    A('s_waitcnt lgkmcnt(0)')
    nxt = [i for T in range(4) for i in reads(10, 0, T, afrB(0, T))]
    main = gemm_pass(stream, st, 0, 10, 4, 8, lambda T: ACC(T // 4, T % 4), afrA, reads, nxt, [0, 1, 2, 3], late=True, stamp_every=SE)
    fill = []
    for s in range(39):
        for ins in ln_norm(s + 1, V_TMP): fill.append((8 * s, ins, 8 * s + 6))
        if s == 10:
            for ins in wp_task_dma(88, WP_LDS): fill.append((8 * s + 7, ins, 8 * s + 7))
        if s == 22:
            fill.append((8 * s + 7, wp_task_finish(WP_LDS, 48), 8 * s + 7))
    c.extend(weave(main, fill)); st(c, 'PA')
    main = gemm_pass(stream, st, 10, 10, 4, 4, lambda T: ACC(2, T), afrB, reads, [], [2, 3], stamp_every=SE)
    fill = [(3, ins) for ins in epilogue(0) + epilogue(1)]
    c.extend(weave(main, fill)); st(c, 'PB')
    assert stream.next == stream.n and not stream.queue
    c.extend(epilogue(NU - 1))

def gen_k1(name='k1_kernel', stamps=False, roles=('mlp', 'att')):
    c = []
    st = Stamps(stamps, vreg=V_ST, sreg=100)
    A = lambda t, **k: c.append(I(t, **k))
    A(f'{name}:')
    A('s_cmp_ge_u32 s2, 256')
    A(f's_cbranch_scc1 L_{name}_end')
    st.real(c); st(c, 'start')
    prologue(c, st)
    st(c, 'x01')
    if stamps: st._commit(c)
    A(f's_and_b32 s{S_T0}, s{S_J}, 2')
    A(f's_cmp_eq_u32 s{S_T0}, 0')
    A(f's_cbranch_scc1 L_{name}_att')
    cm = []; stm = st.copy()
    mlp_role(cm, stm)
    stm(cm, 'end'); stm.real(cm); stm.dump(cm, S_WS, S_WS + 1, S_WAVE)
    cm.append(I('s_endpgm'))
    ca = [I(f'L_{name}_att:')]; sta = st.copy()
    if 'att' in roles:
        from k1att import att_role
        att_role(ca, sta)
        sta(ca, 'end'); sta.real(ca); sta.dump(ca, S_WS, S_WS + 1, S_WAVE)
    ca.append(I(f'L_{name}_end:')); ca.append(I('s_endpgm'))
    return c, cm, ca, stm.names, sta.names

def build_k1(name='k1_kernel', stamps=False, roles=('mlp', 'att'), rep=None):
    c, cm, ca, nm, na = gen_k1(name, stamps, roles)
    full_m = finish(c + cm, rep)
    full_a = finish(c + ca, rep)
    pro_last = c[-1]
    im = full_m.index(pro_last); ia = full_a.index(pro_last)
    assert [x.text for x in full_m[:im+1]] == [x.text for x in full_a[:ia+1]]
    build_k1.names = (nm, na)
    build_k1.est = (est_cycles(full_m), est_cycles(full_a))
    return full_m + full_a[ia+1:]
```

```python
from ir import *
from layout import *
from k1 import *

PHI_PITCH, V_PITCH = 336, 208
LDS_PHI = 0
LDS_V = 128 * PHI_PITCH
LDS_PF = LDS_V + 128 * V_PITCH
RING_LO, RING_HI = 81920, 163840
A_KV, A_Q, A_HU, A_FR, A_PF, A_PQ = 0, 80, 224, 128, 192, 0
S_LOG2E, S_G, S_CNT = 11, 42, 43
SRD_Q = SRD_W2
SRD_KVS = 16
SRD_DBG = 20
S_W5, S_W3 = 3, 74

def softmax_head(D, E):
    r = []
    P, tm = E, D + 10
    M, N, U, SP, SN = tm, tm + 1, tm + 2, tm + 3, tm + 4
    x = [D + i for i in range(10)]
    r.append(I(f'v_max3_f32 v{M}, v{x[0]}, v{x[1]}, v{x[2]}'))
    r.append(I(f'v_max3_f32 v{N}, -v{x[0]}, -v{x[1]}, -v{x[2]}'))
    for k in (3, 5, 7):
        r.append(I(f'v_max3_f32 v{M}, v{M}, v{x[k]}, v{x[k+1]}'))
        r.append(I(f'v_max3_f32 v{N}, v{N}, -v{x[k]}, -v{x[k+1]}'))
    r.append(I(f'v_max_f32 v{M}, v{M}, v{x[9]}'))
    r.append(I(f'v_max_f32_e64 v{N}, v{N}, -v{x[9]}'))
    r.append(I(f'v_permlane32_swap_b32 v{M}, v{N}'))
    r.append(I(f'v_max_f32 v{M}, v{M}, v{N}'))
    r.append(I(f'v_mul_f32 v{M}, s{S_LOG2E}, v{M}'))
    r.append(I(f'v_mov_b32 v{U}, v{M}'))
    r.append(I(f'v_permlane32_swap_b32 v{M}, v{U}'))
    for i in range(10):
        r.append(I(f'v_fma_f32 v{E+i}, v{x[i]}, s{S_LOG2E}, -v{M}'))
        r.append(I(f'v_fma_f32 v{x[i]}, -v{x[i]}, s{S_LOG2E}, -v{U}'))
    for i in range(10):
        r.append(I(f'v_exp_f32 v{E+i}, v{E+i}'))
        r.append(I(f'v_exp_f32 v{x[i]}, v{x[i]}'))
    r.append(I(f'v_add_f32 v{SP}, v{E}, v{E+1}')); r.append(I(f'v_add_f32 v{SN}, v{x[0]}, v{x[1]}'))
    for i in range(2, 10):
        r.append(I(f'v_add_f32 v{SP}, v{SP}, v{E+i}')); r.append(I(f'v_add_f32 v{SN}, v{SN}, v{x[i]}'))
    r.append(I(f'v_permlane32_swap_b32 v{SP}, v{SN}'))
    r.append(I(f'v_add_f32 v{SP}, v{SP}, v{SN}'))
    r.append(I(f'v_rcp_f32 v{SP}, v{SP}'))
    r.append(I(f'v_mov_b32 v{SN}, v{SP}'))
    r.append(I(f'v_permlane32_swap_b32 v{SP}, v{SN}'))
    for i in range(10):
        r.append(I(f'v_mul_f32 v{E+i}, v{E+i}, v{SP}')); r.append(I(f'v_mul_f32 v{x[i]}, v{x[i]}, v{SN}'))
    for p in range(5): r.append(I(f'v_cvt_pk_bf16_f32 v{P+p}, v{E+2*p}, v{E+2*p+1}'))
    for p in range(5): r.append(I(f'v_cvt_pk_bf16_f32 v{P+5+p}, v{x[2*p]}, v{x[2*p+1]}'))
    return r

def pack_acc(acc_regs, dst, t0):
    r = []
    for k in range(0, len(acc_regs), 2):
        t = t0 + 2 * ((k // 2) % 2)
        r += [I(f'v_accvgpr_read_b32 v{t}, a{acc_regs[k]}'), I(f'v_accvgpr_read_b32 v{t+1}, a{acc_regs[k+1]}'),
              I(f'v_cvt_pk_bf16_f32 v{dst + k//2}, v{t}, v{t+1}')]
    return r

def feature_maps(acc5, sink, between):
    KB, DV, E = 32, (52, 68), 84
    def phi(h):
        r = []
        for dl in range(2):
            d = vr(DV[h % 2], 16)
            r.append(I(f'v_mfma_f32_32x32x16_bf16 {d}, {ar(A_PF + 4*(2*h+dl))}, {vr(KB + 4*(h+dl))}, {"0" if dl == 0 else d}'))
        return r
    r = pack_acc(acc5, KB, E)
    r += phi(0)
    r += between
    for h in range(4):
        sm = softmax_head(DV[h % 2], E)
        if h + 1 < 4: sm = sm[:12] + phi(h + 1) + sm[12:]
        r += sm
        r += sink(h, E)
    return r

def att_role(c0, st):
    c = []
    A = lambda t, **k: c.append(I(t, **k))
    V_KVD, V_QD, V_HD = 12, 17, 20
    V_KVA, V_QA, V_HA = 24, 27, 30
    V_W0, V_W1, V_W2, V_W3 = 8, 9, 10, 11
    V_M0, V_M1 = 12, 13
    S_HU = 86
    SRD_PH = 92
    S_ZO = 91
    K = 1024
    A(f's_lshr_b32 s{S_G}, s{S_J}, 2'); A(f's_lshl_b32 s{S_G}, s{S_G}, 1')
    A(f's_and_b32 s{S_T0}, s{S_J}, 1'); A(f's_add_u32 s{S_G}, s{S_G}, s{S_T0}')
    A(f's_mov_b32 s{SRD_W}, s{S_WQKV}'); A(f's_mov_b32 s{SRD_W+1}, s{S_WQKV+1}')
    A(f's_mov_b32 s{SRD_W+2}, {D*3*D*2}'); A(f's_mov_b32 s{SRD_W+3}, 0x00020000')
    A(f's_mul_i32 s{S_T0}, s{S_G}, 160'); A(f's_mul_i32 s{S_T1}, s{S_WAVE}, {16*3840}'); A(f's_add_u32 s{S_T0}, s{S_T0}, s{S_T1}')
    for p in range(5):
        A(f'v_add_u32 v32, {64*p}, v{V_LANE}')
        A('v_mul_u32_u24 v33, 3277, v32'); A('v_lshrrev_b32 v33, 16, v33')
        A('v_mul_u32_u24 v34, 20, v33'); A('v_sub_u32 v34, v32, v34')
        A('v_cmp_gt_u32 vcc, 10, v34')
        A('v_lshlrev_b32 v34, 4, v34')
        A('v_mul_u32_u24 v33, 3840, v33')
        A(f'v_add_u32 v35, {1280}, v34'); A(f'v_add_u32 v36, {2560-160}, v34')
        A('v_cndmask_b32 v34, v36, v35, vcc')
        A('v_add_u32 v33, v33, v34'); A(f'v_add_u32 v33, s{S_T0}, v33')
        A(f'v_subrev_u32 v{V_KVD+p}, {(p % 4)*1024}, v33')
    for p in range(3):
        A(f'v_add_u32 v32, {64*p}, v{V_LANE}')
        A('v_mul_u32_u24 v33, 5462, v32'); A('v_lshrrev_b32 v33, 16, v33')
        A('v_mul_u32_u24 v34, 12, v33'); A('v_sub_u32 v34, v32, v34')
        A('v_mul_u32_u24 v33, 3840, v33'); A('v_lshl_add_u32 v33, v34, 4, v33'); A(f'v_add_u32 v33, s{S_T0}, v33')
        A(f'v_subrev_u32 v{V_QD+p}, {p*1024}, v33')
    ring = Ring(0, 0)
    slotA = (128 * K, 0, 32 * K, 64 * K)
    for n in range(10): ring.add_at(slotA[n % 4], 32 * K)
    for k in range(5): ring.add_at((80 + 16 * k) * K, 16 * K, not_before=(6 if k in (1, 2) else -1))
    L_PF, WP_LDS = 96 * K, 104 * K
    def pieces(n):
        base = ring.alloc[n][0]; r = []
        if n < 10:
            for p in range(5):
                r.append([dma(f'buffer_load_dwordx4 v{V_KVD+p}, s[{SRD_W}:{SRD_W+3}], s{S_KB+n} offen offset:{(p%4)*1024} lds', (S_W5, base + (4096 if p == 4 else 0)), tag=f'w{n}')])
            for p in range(3):
                r.append([dma(f'buffer_load_dwordx4 v{V_QD+p}, s[{SRD_W}:{SRD_W+3}], s{S_KB+n} offen offset:{p*1024} lds', (S_W3, base + 20480), tag=f'w{n}')])
        else:
            for q in range(4):
                r.append([dma(f'buffer_load_dwordx4 v{V_HD+q}, s[{SRD_W2}:{SRD_W2+3}], s{S_HU+n-10} offen offset:{q*1024} lds', (S_T2, base), tag=f'w{n}')])
        return r
    stream = Stream(ring, pieces)
    A(f's_mul_i32 s{S_W5}, s{S_WAVE}, 5120'); A(f's_mul_i32 s{S_W3}, s{S_WAVE}, 3072')
    A(f's_and_b32 s{S_T0}, s{S_WAVE}, 1')
    for k in range(5):
        A(f's_cmp_eq_u32 s{S_T0}, 0'); A(f's_cselect_b32 s{S_HU+k}, s{S_KB+2*k}, s{S_KB+2*k+1}'); A(f's_mul_i32 s{S_HU+k}, s{S_HU+k}, 3456')
    A(f's_lshl_b32 s{S_T0}, s{S_G}, 2'); A(f's_add_u32 s{S_T0}, s{S_T0}, s{S_WAVE}'); A(f's_mul_i32 s{S_T0}, s{S_T0}, 800')
    A(f's_add_u32 s{SRD_PH}, s{S_WPHI}, s{S_T0}'); A(f's_addc_u32 s{SRD_PH+1}, s{S_WPHI+1}, 0')
    A(f's_mov_b32 s{SRD_PH+2}, 800'); A(f's_mov_b32 s{SRD_PH+3}, 0x00020000')
    A(f'v_lshlrev_b32 v32, 1, v{V_T}')
    A(f'v_subrev_u32 v33, 4, v32')
    A(f'v_cmp_gt_u32 vcc, 18, v{V_T}'); A('v_cndmask_b32 v33, v33, v32, vcc')
    A(f'v_and_b32 v34, 30, v{V_T}'); A('v_cmp_eq_u32 s[66:67], 20, v34'); A('s_nop 1'); A('s_or_b64 vcc, vcc, s[66:67]')
    A('v_mov_b32 v35, 0x40000000'); A('v_cndmask_b32 v33, v35, v33, vcc')
    A(f's_lshl_b32 s{S_T0}, s{S_WAVE}, 2')
    PFV = 64
    for dl in range(2):
        for eh in range(2):
            A(f'v_lshlrev_b32 v36, 2, v{V_HH}'); A(f'v_add_u32 v36, {16*dl + 8*eh}, v36'); A(f'v_subrev_u32 v36, s{S_T0}, v36')
            A('v_cmp_gt_u32 vcc, 20, v36')
            A('v_mul_u32_u24 v37, 40, v36'); A('v_add_u32 v37, v37, v33')
            A(f'v_cndmask_b32 v{56 + 2*dl + eh}, v35, v37, vcc')
    pf_loads = [I(f'buffer_load_ushort v{PFV + 8*dl + e}, v{56 + 2*dl + (e >> 2)}, s[{SRD_PH}:{SRD_PH+3}], 0 offen offset:{(e & 3)*40}', tag='pf')
                for dl in range(2) for e in range(8)]
    A(f's_cmp_lt_u32 s{S_WAVE}, 2')
    A(f's_cselect_b32 s{SRD_W2}, s{S_WG}, s{S_WU}'); A(f's_cselect_b32 s{SRD_W2+1}, s{S_WG+1}, s{S_WU+1}')
    A(f's_cmp_lt_u32 s{S_G}, 6'); A(f's_cselect_b32 s{SRD_W2+2}, {D*F*2}, 0'); A(f's_mov_b32 s{SRD_W2+3}, 0x00020000')
    A(f'v_lshrrev_b32 v32, 2, v{V_LANE}'); A('v_mul_u32_u24 v32, 3456, v32')
    A(f'v_and_b32 v33, 3, v{V_LANE}'); A('v_lshl_add_u32 v32, v33, 4, v32')
    A(f's_lshl_b32 s{S_T0}, s{S_G}, 6'); A(f's_add_u32 s{S_T0}, s{S_T0}, {1536*2}'); A(f'v_add_u32 v32, s{S_T0}, v32')
    for q in range(4): A(f'v_add_u32 v{V_HD+q}, {q*(16*3456-1024)}, v32')
    A(f'v_bfe_u32 v32, v{V_LANE}, 2, 2'); A(f'v_lshl_add_u32 v32, v{V_HH}, 3, v32')
    A(f'v_bfe_u32 v33, v{V_LANE}, 4, 1'); A('v_lshlrev_b32 v33, 5, v33')
    A(f'v_and_b32 v34, 3, v{V_LANE}'); A('v_lshl_add_u32 v33, v34, 3, v33')
    for (reg, pitch) in ((V_KVA, 320), (V_QA, 192)):
        A(f'v_mul_u32_u24 v34, {pitch}, v32'); A(f'v_add_u32 v{reg}, v34, v33')
        A(f'v_add_u32 v{reg+1}, 0x10000, v{reg}'); A(f'v_add_u32 v{reg+2}, 0x20000, v{reg}')
    A(f'v_mul_u32_u24 v34, 64, v32'); A('v_add_u32 v34, v34, v33')
    A(f'v_add_u32 v{V_HA}, 0x10000, v34'); A(f'v_add_u32 v{V_HA+1}, 0x20000, v34')
    act_lane_offset(c)
    wp_task_setup(c, 88)
    A(f's_mul_i32 s{S_T0}, s{S_G}, 20480'); A(f's_add_u32 s{S_T0}, s{S_T0}, {KVS_OFF}')
    A(f's_add_u32 s{SRD_KVS}, s{S_WS}, s{S_T0}'); A(f's_addc_u32 s{SRD_KVS+1}, s{S_WS+1}, 0')
    A(f's_cmp_eq_u32 s{S_I}, 0'); A(f's_cselect_b32 s{SRD_KVS+2}, 20480, 0'); A(f's_mov_b32 s{SRD_KVS+3}, 0x00020000')
    A(f's_lshl_b32 s{S_T0}, s{S_G}, 2')
    A(f's_add_u32 s{SRD_DBG}, s{S_DBG}, s{S_T0}'); A(f's_addc_u32 s{SRD_DBG+1}, s{S_DBG+1}, 0')
    A(f's_mov_b32 s{SRD_DBG+2}, 0'); A(f's_mov_b32 s{SRD_DBG+3}, 0x00020000')
    for k in range(4): A(f'v_mov_b32 v{80+k}, 0')
    A(f'v_lshlrev_b32 v84, 4, v{V_LANE}'); A(f's_mul_i32 s{S_ZO}, s{S_WAVE}, 5120'); A(f'v_add_u32 v84, s{S_ZO}, v84')
    A('v_add_u32 v85, 4096, v84')
    zero = [I(f'buffer_store_dwordx4 v[80:83], v84, s[{SRD_KVS}:{SRD_KVS+3}], 0 offen offset:{k*1024} sc1', tag='kz') for k in range(4)]
    zero.append(I(f'buffer_store_dwordx4 v[80:83], v85, s[{SRD_KVS}:{SRD_KVS+3}], 0 offen sc1', tag='kz'))
    alu = c
    c = c0
    A = lambda t, **k: c.append(I(t, **k))
    conv = [I(f's_mul_i32 s{S_KB+n}, s{S_KB+n}, 3840') for n in range(10)]
    stream.next = 1
    p0 = [i for g in pieces(0) for i in g]
    x_consume(c, st, alu, {2: zero, 3: pf_loads[:8], 4: pf_loads[8:], 6: conv + p0[:4], 7: p0[4:], 8: wp_task_touch(88, 92)})
    c.append(WaitTag('kz'))
    A('s_barrier')
    A(f's_cmp_eq_u32 s{S_I}, 0'); A(f's_cselect_b32 s{SRD_DBG+2}, 4, 0')
    A(f's_cmp_eq_u32 s{S_WAVE}, 0'); A(f's_cselect_b32 s{SRD_DBG+2}, s{SRD_DBG+2}, 0')
    A('v_mov_b32 v80, 0x10000'); A(f'v_lshlrev_b32 v81, 2, v{V_LANE}')
    A(f'buffer_atomic_add v80, v81, s[{SRD_DBG}:{SRD_DBG+3}], 0 offen', tag='zf')
    stream.release(0)
    c.extend(stream.take(4))
    A(f's_mov_b32 s{SRD_KVS+2}, 20480'); A(f's_cmp_eq_u32 s{S_WAVE}, 0'); A(f's_cselect_b32 s{SRD_DBG+2}, 4, 0')
    A(f's_lshl_b32 s{S_T0}, s{S_WAVE}, 11'); A(f's_add_u32 s{S_T0}, s{S_T0}, {L_PF}')
    A(f'v_lshlrev_b32 v82, 4, v{V_LANE}'); A(f'v_add_u32 v82, s{S_T0}, v82')
    for dl in range(2):
        for p in range(4): A(f'v_lshl_or_b32 v{PFV+4*dl+p}, v{PFV+8*dl+2*p+1}, 16, v{PFV+8*dl+2*p}')
    for dl in range(2): A(f'ds_write_b128 v82, {vr(PFV+4*dl)} offset:{dl*1024}')
    ln_finalize(c)
    A(f's_mov_b32 s{S_LOG2E}, 0x3fb8aa3b')
    def reads(n, sp, T, dst):
        base = ring.alloc[n][0]; r = []
        for j in range(2):
            if n < 10 and T < 5: off, reg, w0 = base + sp * 5120 + j * 1280 + T * 64, V_KVA, 0
            elif n < 10: off, reg, w0 = base + 20480 + sp * 3072 + j * 768 + (T - 5) * 64, V_QA, 0
            else: off, reg, w0 = base + (2 * T + (sp >> 2)) * 4096 + (sp & 3) * 1024 + j * 256, V_HA, 1
            assert (off >> 16) >= w0
            r.append(I(f'ds_read_b64_tr_b16 {ar(dst+2*j, 2)}, v{reg + (off >> 16) - w0} offset:{off & 0xffff}'))
        return r
    afr = lambda s, T: A_FR + 32 * (s % 2) + 4 * T
    SE = OPT.get('se', 2)
    c.extend(ln_norm(0, 32))
    c.append(WaitTag('w0', lgkm0=True)); A('s_barrier')
    st(c, 'S0')
    A(f'v_lshlrev_b32 v72, 4, v{V_LANE}'); A(f'v_add_u32 v72, {L_PF}, v72')
    for f in range(8): A(f'ds_read_b128 {ar(A_PF+4*f)}, v72 offset:{f*1024}')
    for T in range(8): c.extend(reads(0, 0, T, afr(0, T)))
    A('s_waitcnt lgkmcnt(0)')
    nxt = [i for T in range(2) for i in reads(10, 0, T, afr(0, T))]
    accA = lambda T: A_KV + 16 * T
    main = gemm_pass(stream, st, 0, 10, 4, 8, accA, afr, reads, nxt, [0, 1, 2, 3], late=True, stamp_every=SE)
    fill = []
    for s in range(39):
        for ins in ln_norm(s + 1, 32): fill.append((8 * s, ins, 8 * s + 6))
        if s == 8:
            for ins in wp_task_dma(88, WP_LDS): fill.append((8 * s + 7, ins, 8 * s + 7))
        if s == 18:
            fill.append((8 * s + 7, wp_task_finish(WP_LDS, 48), 8 * s + 7))
    c.extend(weave(main, fill)); st(c, 'PA')
    kacc = [A_KV + i for i in range(40)]
    vacc = [A_KV + 40 + i for i in range(40)]
    pre = [I(f'v_mul_u32_u24 v32, {PHI_PITCH}, v{V_T}'), I(f's_mul_i32 s{S_T0}, s{S_WAVE}, {32*PHI_PITCH}'), I(f'v_add_u32 v32, s{S_T0}, v32'),
           I(f'v_lshl_add_u32 v{V_W0}, v{V_HH}, 4, v32'), I(f'v_lshl_add_u32 v{V_W1}, v{V_HH}, 3, v32'),
           I(f'v_mul_u32_u24 v32, {V_PITCH}, v{V_T}'), I(f's_mul_i32 s{S_T0}, s{S_WAVE}, {32*V_PITCH}'), I(f's_add_u32 s{S_T0}, s{S_T0}, {LDS_V}'),
           I(f'v_add_u32 v32, s{S_T0}, v32'),
           I(f'v_lshl_add_u32 v{V_W2}, v{V_HH}, 3, v32'), I(f'v_lshl_add_u32 v{V_W3}, v{V_HH}, 4, v32'),
           I(f'v_mov_b32 v{V_M0}, 0'),
           I(f'buffer_load_dword v{V_M1}, v{V_M0}, s[{SRD_DBG}:{SRD_DBG+3}], 0 offen sc1', tag='zchk')]
    ep = [[I('s_waitcnt lgkmcnt(0)'), I('s_barrier')]]
    for b in range(10):
        t = 68 + 8 * (b % 2)
        ep += pack_acc(vacc[4*b:4*b+4], t + 4, t)
        Q0 = 2 * b
        off = 8 * Q0 + 8 * (Q0 // 5)
        reg = V_W3 if (2 * b + 1) % 5 == 0 else V_W2
        ep.append(I(f'ds_write_b64 v{reg}, v[{t+4}:{t+5}] offset:{off}'))
    ep += [I('v_mov_b32 v84, 0x3f803f80'), I('v_mov_b32 v85, 0x3f803f80'),
           I(f'v_mul_u32_u24 v86, 88, v{V_HH}'), I(f'v_add_u32 v86, v86, v{V_W2}')]
    ep += [I(f'ds_write_b64 v86, v[84:85] offset:{40}'), I(f'ds_write_b64 v86, v[84:85] offset:{88}')]
    def ksink(h, P):
        return [I(f'ds_write_b128 v{V_W0}, {vr(P)} offset:{h*80}'),
                I(f'ds_write_b128 v{V_W0}, {vr(P+4)} offset:{h*80+32}'),
                I(f'ds_write_b64 v{V_W1}, v[{P+8}:{P+9}] offset:{h*80+64}')]
    ke = pre + feature_maps(kacc, ksink, ep)
    kvpre = [I(f'v_bfe_u32 v32, v{V_LANE}, 2, 2'), I(f'v_lshl_add_u32 v32, v{V_HH}, 3, v32'),
           I(f'v_and_b32 v33, 3, v{V_LANE}'), I(f'v_bfe_u32 v34, v{V_LANE}, 4, 1'),
           I(f'v_mul_u32_u24 v35, {PHI_PITCH}, v32'), I(f's_mul_i32 s{S_T0}, s{S_WAVE}, 80'), I(f'v_add_u32 v35, s{S_T0}, v35'),
           I(f'v_lshl_add_u32 v35, v33, 3, v35'),
           I(f'v_lshl_add_u32 v36, v34, 5, v35'),
           I(f'v_add_u32 v37, 64, v35'),
           I(f'v_mul_u32_u24 v35, {V_PITCH}, v32'), I(f's_mul_i32 s{S_T0}, s{S_WAVE}, 48'), I(f's_add_u32 s{S_T0}, s{S_T0}, {LDS_V}'),
           I(f'v_add_u32 v35, s{S_T0}, v35'),
           I('v_lshlrev_b32 v38, 3, v33'),
           I('v_min_u32 v39, 1, v33'), I('v_lshlrev_b32 v39, 3, v39'), I('v_add_u32 v39, 32, v39'),
           [I('v_cmp_eq_u32 vcc, 0, v34'), I('s_nop 1'), I('v_cndmask_b32 v38, v39, v38, vcc')],
           I(f'v_add_u32 v38, v35, v38')]
    zchk = [WaitTag('zchk'), I(f'v_readfirstlane_b32 s{S_CNT}, v{V_M1}'), I(f's_cmp_lg_u32 s{S_WAVE}, 0'), I('s_cbranch_scc1 L_zok'),
            I(f's_cmp_ge_u32 s{S_CNT}, 0x10000'), I('s_cbranch_scc1 L_zok'),
            ] + offpath([I('s_mov_b32 s69, 0'), I('L_zspin:'), I('s_sleep 2'), I('s_add_u32 s69, s69, 1'), I('s_cmp_ge_u32 s69, 0x8000'), I('s_cbranch_scc1 L_zok'),
            I(f'buffer_load_dword v{V_M1}, v{V_M0}, s[{SRD_DBG}:{SRD_DBG+3}], 0 offen sc1'), I('s_waitcnt vmcnt(0)'),
            I('s_nop 0'),
            I(f'v_readfirstlane_b32 s{S_CNT}, v{V_M1}'), I(f's_cmp_ge_u32 s{S_CNT}, 0x10000'), I('s_cbranch_scc0 L_zspin')]) + [
            I('L_zok:')]
    pub = [zchk + [I('s_waitcnt lgkmcnt(0)'), I('s_barrier')],
           I(f'v_mov_b32 v{V_W0}, v36'), I(f'v_mov_b32 v{V_W1}, v37'), I(f'v_mov_b32 v{V_W2}, v38')]
    kv = []
    FA = 64
    def kvreads(k):
        b = FA + 12 * (k % 2); r = []
        for j in range(2):
            r.append(I(f'ds_read_b64_tr_b16 v[{b+2*j}:{b+2*j+1}], v{V_W0} offset:{k*16*PHI_PITCH + j*4*PHI_PITCH}'))
            r.append(I(f'ds_read_b64_tr_b16 v[{b+4+2*j}:{b+5+2*j}], v{V_W1} offset:{k*16*PHI_PITCH + j*4*PHI_PITCH}'))
            r.append(I(f'ds_read_b64_tr_b16 v[{b+8+2*j}:{b+9+2*j}], v{V_W2} offset:{k*16*V_PITCH + j*4*V_PITCH}'))
        return r
    kv += kvreads(0)
    for k in range(8):
        b = FA + 12 * (k % 2)
        if k + 1 < 8: kv += kvreads(k + 1)
        kv.append(I(f'v_mfma_f32_32x32x16_bf16 v[32:47], {vr(b)}, {vr(b+8)}, {"0" if k == 0 else "v[32:47]"}'))
        kv.append(I(f'v_mfma_f32_32x32x16_bf16 v[48:63], {vr(b+4)}, {vr(b+8)}, {"0" if k == 0 else "v[48:63]"}'))
    kv += [I(f'v_lshlrev_b32 v64, 2, v{V_T}'), I(f'v_lshl_add_u32 v64, v{V_HH}, 9, v64'),
           I(f's_mul_i32 s{S_T0}, s{S_WAVE}, 5120'), I(f'v_add_u32 v64, s{S_T0}, v64'),
           [I(f'v_cmp_ge_u32 vcc, 20, v{V_T}'), I('v_mov_b32 v65, 0x40000000'), I('s_nop 0'), I('v_cndmask_b32 v64, v65, v64, vcc')],
           I('v_add_u32 v65, 4096, v64'), I('s_nop 3')]
    at = []
    for i in range(16):
        at.append(I(f'buffer_atomic_add_f32 v{32+i}, v64, s[{SRD_KVS}:{SRD_KVS+3}], 0 offen offset:{(8*(i>>2) + (i&3))*128}', tag='kvat'))
    for i in range(4):
        at.append(I(f'buffer_atomic_add_f32 v{48+i}, v65, s[{SRD_KVS}:{SRD_KVS+3}], 0 offen offset:{i*128}', tag='kvat'))
    qacc = [A_Q + i for i in range(40)]
    def qsink(h, P):
        return [I(f'v_accvgpr_write_b32 a{A_PQ+12*h+p}, v{P+p}') for p in range(10)]
    zz = [I(f'v_accvgpr_write_b32 a{A_PQ+12*h+10+z}, 0') for h in range(4) for z in range(2)]
    qe = feature_maps(qacc, qsink, zz + [I('s_nop 3')])
    arrive = [[WaitTag('kvat'), I('s_barrier'), I('v_mov_b32 v94, 1'), I(f'v_lshlrev_b32 v95, 2, v{V_LANE}'),
               I(f'buffer_atomic_add v94, v95, s[{SRD_DBG}:{SRD_DBG+3}], 0 offen', tag='arr')]]
    cut = OPT.get('arr_cut', 330)
    main = gemm_pass(stream, st, 10, 5, 8, 2, lambda T: A_HU + 16 * T, afr, reads, [], [1], stamp_every=1 if SE else 0)
    seq = ke + kvpre + pub + kv + at + qe[:cut] + arrive + qe[cut:]
    c.extend(weave(main, [(0, ins) for ins in seq])); st(c, 'PB')
    assert stream.next == stream.n and not stream.queue
    r = []
    for i in range(0, 16, 2):
        t = 32 + 4 * ((i // 2) % 4)
        r += [I(f'v_accvgpr_read_b32 v{t}, a{A_HU+i}'), I(f'v_accvgpr_read_b32 v{t+1}, a{A_HU+i+1}'),
              I(f'v_accvgpr_read_b32 v{t+2}, a{A_HU+16+i}'), I(f'v_accvgpr_read_b32 v{t+3}, a{A_HU+16+i+1}'),
              I(f'v_max_f32 v{t}, 0, v{t}'), I(f'v_max_f32 v{t+1}, 0, v{t+1}'),
              I(f'v_mul_f32 v{t}, v{t}, v{t+2}'), I(f'v_mul_f32 v{t+1}, v{t+1}, v{t+3}'),
              I(f'v_cvt_pk_bf16_f32 v{64+i//2}, v{t}, v{t+1}')]
    A(f'v_mov_b32 v{V_M0}, 0')
    A(f'buffer_load_dword v{V_M1}, v{V_M0}, s[{SRD_DBG}:{SRD_DBG+3}], 0 offen sc1', tag='cnt0')
    A('s_nop 7')
    c.extend(r)
    A(f's_add_u32 s{S_T0}, s{S_G}, 48'); A(f's_lshl_b32 s{S_T0}, s{S_T0}, 10')
    A(f's_cmp_lt_u32 s{S_G}, 6'); A(f's_cselect_b32 s{SRD_ACT+2}, s{SRD_ACT+2}, 0')
    for ch in range(2):
        A(f'buffer_store_dwordx4 {vr(64+4*ch)}, v{V_ACTL}, s[{SRD_ACT}:{SRD_ACT+3}], s{S_T0} offen offset:{ch*512}', tag='hst')
    A(f's_mov_b32 s{SRD_ACT+2}, {2*NKS*1024}')
    c.append(WaitTag('cnt0'))
    A(f'v_readfirstlane_b32 s{S_CNT}, v{V_M1}'); A(f's_cmp_lg_u32 s{S_WAVE}, 0'); A('s_cbranch_scc1 L_kvok')
    A(f's_and_b32 s{S_CNT}, s{S_CNT}, 0xffff'); A(f's_cmp_ge_u32 s{S_CNT}, 16')
    A('s_cbranch_scc1 L_kvok')
    c.extend(offpath([I('s_mov_b32 s69, 0'), I('L_kvspin:'),
        I(f'buffer_load_dword v{V_M1}, v{V_M0}, s[{SRD_DBG}:{SRD_DBG+3}], 0 offen sc1'), I('s_waitcnt vmcnt(0)'), I('s_nop 0'),
        I(f'v_readfirstlane_b32 s{S_CNT}, v{V_M1}'), I(f's_and_b32 s{S_CNT}, s{S_CNT}, 0xffff'), I(f's_cmp_ge_u32 s{S_CNT}, 16'),
        I('s_cbranch_scc1 L_kvok'), I('s_sleep 4'), I('s_add_u32 s69, s69, 1'), I('s_cmp_lt_u32 s69, 0x8000'), I('s_cbranch_scc1 L_kvspin')]))
    A('L_kvok:')
    A('s_barrier')
    st(c, 'kvok')
    A(f'v_min_u32 v32, 20, v{V_T}'); A('v_lshlrev_b32 v32, 2, v32'); A(f's_mul_i32 s{S_T0}, s{S_WAVE}, 5120'); A(f'v_add_u32 v32, s{S_T0}, v32')
    A(f'v_lshl_add_u32 v33, v{V_HH}, 10, v32')
    A(f'v_lshl_add_u32 v34, v{V_HH}, 9, v32'); A('v_add_u32 v34, 4096, v34')
    for s in range(2):
        for e in range(8):
            A(f'buffer_load_dword v{40+8*s+e}, v33, s[{SRD_KVS}:{SRD_KVS+3}], 0 offen offset:{(16*s+e)*128} sc1')
    for e in range(4):
        A(f'buffer_load_dword v{56+e}, v34, s[{SRD_KVS}:{SRD_KVS+3}], 0 offen offset:{e*128} sc1')
    for p in range(10): A(f'v_cvt_pk_bf16_f32 v{72+p}, v{40+2*p}, v{41+2*p}')
    A('v_mov_b32 v82, 0'); A('v_mov_b32 v83, 0')
    A(f's_mul_i32 s{S_T0}, s{S_WAVE}, 3072'); A(f'v_lshlrev_b32 v35, 4, v{V_LANE}'); A(f'v_add_u32 v36, s{S_T0}, v35')
    for s in range(3): A(f'ds_write_b128 v36, {vr(72+4*s)} offset:{s*1024}')
    A('s_waitcnt lgkmcnt(0)'); A('s_barrier')
    FR = 96; DD = 160; OP = 240
    for h in range(4):
        for s in range(3): A(f'ds_read_b128 {vr(FR+12*h+4*s)}, v35 offset:{h*3072+s*1024}')
    for h in range(4):
        for s in range(3):
            dd = vr(DD + 16 * h, 16)
            A(f'v_mfma_f32_32x32x16_bf16 {dd}, {vr(FR+12*h+4*s)}, {ar(A_PQ+12*h+4*s)}, {"0" if s == 0 else dd}')
    for h in range(4):
        d = DD + 16 * h
        A(f'v_add_f32 v32, 0x358637bd, v{d+12}'); A('v_rcp_f32 v32, v32')
        for i in range(12): A(f'v_mul_f32 v{d+i}, v{d+i}, v32')
        for p in range(4): A(f'v_cvt_pk_bf16_f32 v{OP+4*h+p}, v{d+2*p}, v{d+2*p+1}')
        tl = 40 + 4 * (h >> 1) + 2 * (h & 1)
        for p in range(2): A(f'v_cvt_pk_bf16_f32 v{tl+p}, v{d+8+2*p}, v{d+9+2*p}')
    for h in range(4):
        A(f's_mul_i32 s{S_T0}, s{S_G}, 10'); A(f's_add_u32 s{S_T0}, s{S_T0}, {2*h}')
        A(f's_lshr_b32 s{S_T1}, s{S_T0}, 2'); A(f's_and_b32 s{S_T0}, s{S_T0}, 3')
        A(f's_add_u32 s{S_T1}, s{S_T1}, 54'); A(f's_lshl_b32 s{S_T1}, s{S_T1}, 10'); A(f's_lshl_b32 s{S_T0}, s{S_T0}, 8')
        A(f's_add_u32 s{S_T0}, s{S_T0}, s{S_T1}')
        A(f'buffer_store_dwordx4 {vr(OP+4*h)}, v{V_ACTL}, s[{SRD_ACT}:{SRD_ACT+3}], s{S_T0} offen')
    A(f'v_cmp_eq_u32 vcc, 0, v{V_HH}'); A('v_mov_b32 v33, 0x40000000'); A(f'v_cndmask_b32 v33, v33, v{V_ACTL}, vcc')
    for j in range(2):
        A(f's_mul_i32 s{S_T0}, s{S_G}, 10'); A(f's_add_u32 s{S_T0}, s{S_T0}, {8+j}')
        A(f's_lshr_b32 s{S_T1}, s{S_T0}, 2'); A(f's_and_b32 s{S_T0}, s{S_T0}, 3')
        A(f's_add_u32 s{S_T1}, s{S_T1}, 54'); A(f's_lshl_b32 s{S_T1}, s{S_T1}, 10'); A(f's_lshl_b32 s{S_T0}, s{S_T0}, 8')
        A(f's_add_u32 s{S_T0}, s{S_T0}, s{S_T1}')
        A(f'buffer_store_dwordx4 {vr(40+4*j)}, v33, s[{SRD_ACT}:{SRD_ACT+3}], s{S_T0} offen')
```

```python
from ir import *
from layout import *

def emit_wgmap(c, s_i, s_j, tmp):
    c += [I(f's_and_b32 s{tmp}, s2, 7'),
          I(f's_lshr_b32 s{tmp+1}, s2, 3'),
          I(f's_and_b32 s{s_i}, s{tmp}, 1'),
          I(f's_lshl_b32 s{s_i}, s{s_i}, 3'),
          I(f's_and_b32 s{s_j}, s{tmp+1}, 7'),
          I(f's_add_u32 s{s_i}, s{s_i}, s{s_j}'),
          I(f's_lshr_b32 s{s_j}, s{tmp}, 1'),
          I(f's_lshl_b32 s{s_j}, s{s_j}, 2'),
          I(f's_lshr_b32 s{tmp+1}, s{tmp+1}, 3'),
          I(f's_add_u32 s{s_j}, s{s_j}, s{tmp+1}')]

def srd(c, d, lo, hi, nrec):
    c += [I(f's_mov_b32 s{d}, s{lo}'), I(f's_mov_b32 s{d+1}, s{hi}'),
          I(f's_mov_b32 s{d+2}, {nrec}'), I(f's_mov_b32 s{d+3}, 0x00020000')]

STAMP_OFF = 0xE00000
class Stamps:
    def __init__(self, on, vreg=0, sreg=100): self.on = on; self.n = 0; self.v = vreg; self.s = sreg; self.pending = False; self.names = []
    def _commit(self, c):
        if self.pending:
            c.append(I('s_waitcnt lgkmcnt(0)'))
            c.append(I(f'v_writelane_b32 v{self.v}, s{self.s}, {self.n}')); self.n += 1; self.pending = False
    def __call__(self, c, name=''):
        if not self.on: return
        self._commit(c)
        c.append(I(f's_memtime s[{self.s}:{self.s+1}]')); self.pending = True; self.names.append(name)
    def real(self, c, name='real'):
        if not self.on: return
        self._commit(c)
        c.append(I(f's_memrealtime s[{self.s}:{self.s+1}]')); self.pending = True; self.names.append(name)
    def copy(self):
        o = Stamps(self.on, self.v, self.s); o.n = self.n; o.pending = self.pending; o.names = list(self.names); return o
    def dump(self, c, ws_lo, ws_hi, s_wave, kern_idx=0):
        if not self.on: return
        A = lambda t: c.append(I(t))
        self._commit(c)
        A('s_waitcnt vmcnt(0) lgkmcnt(0)')
        A(f's_lshl_b32 s60, s2, 2'); A(f's_add_u32 s60, s60, s{s_wave}'); A('s_lshl_b32 s60, s60, 8')
        A(f's_add_u32 s60, s60, {STAMP_OFF + kern_idx * 0x40000}')
        A(f's_add_u32 s56, s{ws_lo}, s60'); A(f's_addc_u32 s57, s{ws_hi}, 0')
        A('s_mov_b32 s58, 256'); A('s_mov_b32 s59, 0x00020000')
        A('v_mbcnt_lo_u32_b32 v1, -1, 0'); A('v_mbcnt_hi_u32_b32 v1, -1, v1'); A('v_lshlrev_b32 v1, 2, v1')
        A(f'buffer_store_dword v{self.v}, v1, s[56:59], 0 offen'); A('s_waitcnt vmcnt(0)')

def gen_k2(name='k2_kernel', sc1=False, stamps=False, NB=12, NSLOT=7, samecg=False):
    c = []
    st = Stamps(stamps, vreg=190, sreg=62)
    A = lambda t, **k: c.append(I(t, **k))
    A(f'{name}:')
    A('s_cmp_ge_u32 s2, 256')
    A(f's_cbranch_scc1 L_{name}_end')
    st.real(c); st(c, 'start')
    A('s_load_dwordx2 s[4:5], s[0:1], 0')
    A('s_load_dwordx2 s[6:7], s[0:1], 64')
    A('s_load_dwordx2 s[8:9], s[0:1], 80')
    A('v_lshrrev_b32 v1, 6, v0')
    A('v_and_b32 v2, 63, v0')
    A('v_readfirstlane_b32 s30, v1')
    emit_wgmap(c, 31, 32, 34)
    A('s_lshr_b32 s33, s32, 3')
    A('s_and_b32 s32, s32, 7')
    A('s_lshl_b32 s31, s31, 3')
    A('s_lshl_b32 s33, s33, 2')
    A('s_add_u32 s31, s31, s33')
    A('s_add_u32 s31, s31, s30')
    A('v_lshlrev_b32 v3, 4, v2')
    if samecg:
        A('s_and_b32 s31, s31, 7'); A('s_mov_b32 s32, 0')
    A('v_add_u32 v6, 0x10000, v3'); A('v_add_u32 v7, 0x20000, v3')
    A('s_waitcnt lgkmcnt(0)')
    A(f's_mul_i32 s34, s31, {NKS*1024}')
    A('s_add_u32 s12, s8, s34'); A('s_addc_u32 s13, s9, 0')
    A(f's_mov_b32 s14, {NKS*1024}'); A('s_mov_b32 s15, 0x00020000')
    A(f's_mul_i32 s34, s32, {NKS*5120}')
    A(f's_add_u32 s34, s34, {WP_OFF}')
    A('s_add_u32 s16, s8, s34'); A('s_addc_u32 s17, s9, 0')
    A(f's_mov_b32 s18, {NKS*5120}'); A('s_mov_b32 s19, 0x00020000')
    A('s_mul_i32 s36, s30, 5120')
    SLOT = 20480
    NST = (NKS + 3) // 4
    def dma_stage(n):
        slot = (n % NSLOT) * SLOT
        r = []
        r.append(I(f's_add_u32 m0, s36, {slot}'))
        r.append(I(f's_add_u32 s37, s36, {n*4*5120}'))
        for p in range(4):
            r.append(I(f'buffer_load_dwordx4 v3, s[16:19], s37 offen offset:{p*1024} lds', tag=f'st{n}'))
        r.append(I(f's_add_u32 m0, s36, {slot+4096}'))
        r.append(I(f's_add_u32 s37, s36, {n*4*5120+4096}'))
        r.append(I(f'buffer_load_dwordx4 v3, s[16:19], s37 offen lds', tag=f'st{n}'))
        return r
    BF = lambda s: 64 + 4 * (s % NB)
    mod = ' sc1' if sc1 else ''
    def bload(s):
        r = []
        if s % 4 == 0: r.append(I(f's_mov_b32 s38, {s*1024}'))
        r.append(I(f'buffer_load_dwordx4 v[{BF(s)}:{BF(s)+3}], v3, s[12:15], s38 offen offset:{(s%4)*1024}{mod}'))
        return r
    c += dma_stage(0)
    for s in range(4): c += bload(s)
    c += dma_stage(1)
    for s in range(4, NB): c += bload(s)
    for n in range(2, NSLOT - 1): c += dma_stage(n)
    A('s_lshl_b32 s34, s31, 4'); A('s_mul_i32 s34, s34, 1280'); A('s_mul_i32 s35, s32, 160'); A('s_add_u32 s34, s34, s35')
    A('s_add_u32 s20, s4, s34'); A('s_addc_u32 s21, s5, 0')
    A(f's_sub_u32 s22, {S*D*2}, s34'); A('s_mov_b32 s23, 0x00020000')
    A('s_add_u32 s24, s6, s34'); A('s_addc_u32 s25, s7, 0')
    A(f's_sub_u32 s26, {S*D*2}, s34'); A('s_mov_b32 s27, 0x00020000')
    A('v_and_b32 v4, 15, v2'); A('v_mul_u32_u24 v4, 1280, v4')
    A('v_lshrrev_b32 v5, 4, v2'); A('v_lshl_add_u32 v4, v5, 3, v4')
    XR = 40
    for ct in range(5):
        A(f'buffer_load_dwordx2 v[{XR+2*ct}:{XR+2*ct+1}], v4, s[20:23], 0 offen offset:{ct*32}')
    ACC = lambda ct: 8 + 4 * ct
    AF = lambda s, ct: 128 + 20 * (s % 2) + 4 * ct
    def areads(s):
        n = s // 4; slot = (n % NSLOT) * SLOT
        r = []
        for ct in range(5):
            off = slot + (s%4)*5120 + ct*1024
            r.append(I(f'ds_read_b128 v[{AF(s,ct)}:{AF(s,ct)+3}], v{(3,6,7)[off>>16]} offset:{off & 0xffff}'))
        return r
    st(c, 'issued')
    c.append(WaitTag('st0')); A('s_barrier')
    st(c, 'st0')
    c += areads(0)
    for s in range(NKS):
        n = s // 4
        nxt = areads(s + 1) if s + 1 < NKS else []
        boundary = (s + 1) % 4 == 0 and s + 1 < NKS
        for ct in range(5):
            cc = '0' if s == 0 else f'v[{ACC(ct)}:{ACC(ct)+3}]'
            A(f'v_mfma_f32_16x16x32_bf16 v[{ACC(ct)}:{ACC(ct)+3}], v[{AF(s,ct)}:{AF(s,ct)+3}], v[{BF(s)}:{BF(s)+3}], {cc}')
            if ct == 4 - 4 and boundary:
                c.append(WaitTag(f'st{n+1}', lgkm0=True)); A('s_barrier')
            if boundary or True:
                if nxt: c.append(nxt[ct])
            if ct == 1 and boundary:
                nn = n + NSLOT
                if nn < NST: c += dma_stage(nn)
            if ct == 4 and s + NB < NKS: c += bload(s + NB)
        if s == 0 and NSLOT - 1 < NST:
            c += dma_stage(NSLOT - 1)
        if s in (3, 19, 39, 59): st(c, f'k{s}')
    st(c, 'loop')
    for ct in range(5):
        a = ACC(ct); x = XR + 2 * ct
        A(f'v_lshlrev_b32 v50, 16, v{x}'); A(f'v_and_b32 v51, 0xffff0000, v{x}')
        A(f'v_lshlrev_b32 v52, 16, v{x+1}'); A(f'v_and_b32 v53, 0xffff0000, v{x+1}')
        for k in range(4): A(f'v_add_f32 v{50+k}, v{50+k}, v{a+k}')
        A(f'v_cvt_pk_bf16_f32 v{54+2*ct}, v50, v51'); A(f'v_cvt_pk_bf16_f32 v{55+2*ct}, v52, v53')
        A(f'buffer_store_dwordx2 v[{54+2*ct}:{55+2*ct}], v4, s[24:27], 0 offen offset:{ct*32}')
    st(c, 'end'); st.real(c)
    st.dump(c, 8, 9, 30, kern_idx=1)
    gen_k2.names = st.names
    A(f'L_{name}_end:')
    A('s_endpgm')
    return c

def finish(c, rep=None):
    c = place_m0(c)
    c = insert_waits(c, rep)
    c = insert_hazard_nops(c, rep)
    return c

def kd(name, vgpr, agpr_off, sgpr=96):
    return f""".amdhsa_kernel {name}
  .amdhsa_next_free_vgpr {vgpr}
  .amdhsa_next_free_sgpr {sgpr}
  .amdhsa_accum_offset {agpr_off}
  .amdhsa_group_segment_fixed_size 0
  .amdhsa_kernarg_size 88
  .amdhsa_user_sgpr_count 2
  .amdhsa_user_sgpr_kernarg_segment_ptr 1
  .amdhsa_system_sgpr_workgroup_id_x 1
.end_amdhsa_kernel
"""

if __name__ == '__main__':
    rep = []
    c = finish(gen_k2(), rep)
    print(render(c)[:3000])
    print(len(c), 'instrs; est cycles', est_cycles(c))
    print('\n'.join(rep[:40]))
```

```python
import sys
from k1 import *
from k2 import *
from build_util import assemble_check
NAME = 'parallel_sum__linear_kernel_hedgehog__glu_gated_reglu__prompt'
HEADER = open('cdna_kernels/' + NAME + '.s.ref').read().split('; Override launch geometry')[0]

def build(path, stamps=False, check=True):
    rep = []
    k1 = build_k1('k1_kernel', stamps=stamps, rep=rep)
    k2c = gen_k2('k2_kernel', stamps=stamps)
    k2 = finish(k2c, rep)
    if stamps:
        import json
        json.dump(dict(mlp=build_k1.names[0], att=build_k1.names[1], k2=gen_k2.names), open(path[:-2] + '.json', 'w'))
    txt = HEADER
    txt += '; @launch kernel=k1_kernel grid=(256,1,1) block=(256,1,1) lds=163840\n'
    txt += '; @launch kernel=k2_kernel grid=(256,1,1) block=(256,1,1) lds=143360\n'
    txt += '.amdgcn_target "amdgcn-amd-amdhsa--gfx950"\n.text\n'
    txt += '.globl k1_kernel\n.p2align 8\n.type k1_kernel,@function\n' + render(k1)
    txt += '.globl k2_kernel\n.p2align 8\n.type k2_kernel,@function\n' + render(k2) + 'L_code_end:\n'
    txt += '.section .rodata,"a"\n.p2align 6\n' + kd('k1_kernel', 512, 256, 102) + '.p2align 6\n' + kd('k2_kernel', 192, 192)
    open(path, 'w').write(txt)
    from collections import Counter
    print(path, 'est', build_k1.est, 'K1 instrs', len(k1), 'K2', len(k2), 'bytes', len(txt), Counter(r.split(' before')[0] for r in rep))
    if check: assemble_check(path, NAME + '_kernel', lists=True)

if __name__ == '__main__':
    build('full.s', stamps=False)
    build('full_st.s', stamps=True)
```

```python
from ir import *
from layout import *
from k2 import emit_wgmap, Stamps, finish, kd

XF0 = 96
XF = lambda s: XF0 + 4 * s
def vr(b, n=4): return f'v[{b}:{b+n-1}]'
def ar(b, n=4): return f'a[{b}:{b+n-1}]'

S_X, S_WQKV, S_WPHI, S_WO, S_BX, S_WG, S_WU, S_WD = 16, 18, 20, 22, 24, 26, 28, 30
S_DBG, S_WS = 32, 34
S_WAVE, S_I, S_J, S_T0, S_T1, S_T2 = 36, 37, 38, 39, 40, 41
SRD_X = 44
SRD_W = 48
SRD_W2 = 52
SRD_ACT = 56
S_SOFF, S_SOFF2, S_ROLE = 8, 9, 10
SRD_T = 4
SRD_T2 = 12
S_KB = 76
V_LANE, V_T, V_HH = 1, 2, 3
V_R, V_C = 4, 5
V_ACTL = 6
V_ST = 7
V_DMA = 8
V_TMP = 32

OPT = dict(rot=True, touch=True)

class Ring:
    def __init__(self, lo, hi, first_at=None):
        self.lo, self.hi = lo, hi
        self.pos = lo
        self.first_at = first_at
        self.alloc = []
        self.nb = {}
    def add(self, size):
        if not self.alloc and self.first_at is not None:
            base = self.first_at
        else:
            base = self.pos
            if base + size > self.hi: base = self.lo
        self.alloc.append((base, size))
        self.pos = base + size
        if self.pos >= self.hi: self.pos = self.lo
        return base
    def add_at(self, base, size, not_before=-1):
        self.alloc.append((base, size)); self.nb[len(self.alloc) - 1] = not_before
    def free_after(self, n):
        b, s = self.alloc[n]
        last = self.nb.get(n, -1)
        for m in range(n):
            bm, sm = self.alloc[m]
            if bm < b + s and b < bm + sm: last = m
        return last

def kb_entry(n):
    if n == 0: return []
    return [I(f's_add_u32 s{S_KB+n}, s{S_KB+n-1}, 64'), I(f's_cmp_eq_u32 s{S_KB+n}, 640'), I(f's_cselect_b32 s{S_KB+n}, 0, s{S_KB+n}')]

def x_dma(n):
    r = [I(f's_lshl_b32 s{S_SOFF}, s{S_KB+n}, 1')]
    for q in range(4):
        r.append(dma(f'buffer_load_dwordx4 v{V_DMA+q}, s[{SRD_X}:{SRD_X+3}], s{S_SOFF} offen offset:{q*1024} lds', (S_T2, (n % 8) * 16384), tag=f'x{n}'))
    return r

def code_prefetch(c, regions, vdst, nrec):
    A = lambda t, **k: c.append(I(t, **k))
    A('s_getpc_b64 s[4:5]')
    A('L_pc:')
    A('s_lshr_b32 s3, s2, 3'); A('s_lshl_b32 s3, s3, 9')
    A('v_lshrrev_b32 v33, 6, v0'); A('v_lshl_add_u32 v33, v33, 7, s3')
    A('v_and_b32 v34, 63, v0'); A('v_lshl_add_u32 v33, v34, 14, v33')
    lane = 0
    for lab, nblk in regions:
        if lane:
            A(f's_mov_b32 s3, {lab}-L_pc-{lane*16384}'); A(f'v_cmp_le_u32 vcc, {lane}, v34')
            A('v_add_u32 v35, s3, v36' if lane and False else 'v_add_u32 v35, s3, v33')
            A('v_cndmask_b32 v32, v32, v35, vcc')
        else:
            A('v_mov_b32 v32, v33')
        lane += nblk
    A(f'v_cmp_le_u32 vcc, {lane}, v34'); A('v_mov_b32 v35, 0x40000000'); A('v_cndmask_b32 v32, v32, v35, vcc')
    A(f's_mov_b32 s6, {nrec}'); A('s_mov_b32 s7, 0x00020000')
    A(f'buffer_load_dword v{vdst}, v32, s[4:7], 0 offen', tag='cpf')

def prologue(c, st):
    A = lambda t, **k: c.append(I(t, **k))
    if OPT.get('cpf', True):
        code_prefetch(c, [('L_pc', 2), ('L_k1_kernel_att', 3), ('k2_kernel', 1)], 92, 'L_code_end-L_pc')
    A('s_load_dwordx16 s[16:31], s[0:1], 0')
    A('s_load_dwordx4 s[32:35], s[0:1], 72')
    A(f'v_and_b32 v{V_LANE}, 63, v0')
    A('v_lshrrev_b32 v32, 6, v0')
    A(f'v_lshrrev_b32 v33, 3, v{V_LANE}')
    A(f'v_readfirstlane_b32 s{S_WAVE}, v32')
    A(f'v_and_b32 v34, 7, v{V_LANE}')
    A('v_lshrrev_b32 v35, 1, v33')
    A('v_xor_b32 v34, v34, v35')
    A('v_mul_u32_u24 v33, 1280, v33')
    for q in range(4):
        A(f'v_xor_b32 v35, {4*(q&1)}, v34')
        A(f'v_lshl_add_u32 v35, v35, 4, v33')
        A(f'v_add_u32 v{V_DMA+q}, {q*(8*1280-1024)}, v35')
    emit_wgmap(c, S_I, S_J, S_T0)
    if OPT['rot']:
        A(f's_and_b32 s{S_T0}, s{S_J}, 3'); A(f's_mul_i32 s{S_T0}, s{S_T0}, 5'); A(f's_lshr_b32 s{S_T0}, s{S_T0}, 1')
        A(f's_and_b32 s{S_T1}, s{S_I}, 7'); A(f's_add_u32 s{S_T0}, s{S_T0}, s{S_T1}')
        A(f's_sub_u32 s{S_T1}, s{S_T0}, 10'); A(f's_cmp_ge_u32 s{S_T0}, 10'); A(f's_cselect_b32 s{S_T0}, s{S_T1}, s{S_T0}')
        A(f's_lshl_b32 s{S_KB}, s{S_T0}, 6')
    else:
        A(f's_mov_b32 s{S_KB}, 0')
    c.extend(kb_entry(1))
    A(f's_lshl_b32 s{S_T0}, s{S_I}, 2'); A(f's_add_u32 s{S_T0}, s{S_T0}, s{S_WAVE}')
    A(f's_mul_i32 s{S_T1}, s{S_T0}, {32*1280}')
    A(f's_lshl_b32 s{S_T2}, s{S_WAVE}, 12')
    A('s_waitcnt lgkmcnt(0)')
    A(f's_add_u32 s{SRD_X}, s{S_X}, s{S_T1}'); A(f's_addc_u32 s{SRD_X+1}, s{S_X+1}, 0')
    A(f's_mov_b32 s{SRD_X+2}, {32*1280}'); A(f's_mov_b32 s{SRD_X+3}, 0x00020000')
    c.extend(x_dma(0)); c.extend(x_dma(1))
    for n in range(2, 10): c.extend(kb_entry(n))
    A(f'v_and_b32 v{V_T}, 31, v{V_LANE}')
    A(f'v_lshrrev_b32 v{V_HH}, 5, v{V_LANE}')

def x_consume(c, st, alu, extra):
    A = lambda t, **k: c.append(I(t, **k))
    A(f'v_lshrrev_b32 v32, 1, v{V_T}'); A('v_and_b32 v32, 7, v32'); A(f'v_xor_b32 v32, v{V_HH}, v32')
    A(f'v_lshlrev_b32 v33, 7, v{V_T}'); A(f'v_add_u32 v33, s{S_T2}, v33')
    for sub in range(4):
        A(f'v_xor_b32 v34, {2*sub}, v32'); A(f'v_lshl_add_u32 v{40+sub}, v34, 4, v33')
        A(f'v_add_u32 v{44+sub}, 0x10000, v{40+sub}')
    A('v_mov_b32 v38, 0x3f803f80')
    for k in range(8): A(f'v_mov_b32 v{48+k}, 0')
    c.extend(alu)
    st(c, 'setup')
    c.extend(x_dma(2)); c.extend(x_dma(3))
    for n in range(10):
        c.append(WaitTag(f'x{n}'))
        off = (n % 8) * 16384
        for sub in range(4):
            A(f'ds_read_b128 {vr(XF(4*n+sub))}, v{(40 if off < 65536 else 44)+sub} offset:{off & 0xffff}')
        if n + 4 < 10: c.extend(x_dma(n + 4))
        if n in extra: c.extend(extra[n])
        for k in range(16):
            x = XF(4 * n) + k
            A(f'v_dot2c_f32_bf16 v{48 + (k & 3)}, v{x}, v38')
            A(f'v_dot2c_f32_bf16 v{52 + (k & 3)}, v{x}, v{x}')
        if n in (0, 4, 9): st(c, f'x{n}')

def ln_finalize(c):
    A = lambda t, **k: c.append(I(t, **k))
    A('v_add_f32 v48, v48, v49'); A('v_add_f32 v50, v50, v51'); A('v_add_f32 v52, v52, v53'); A('v_add_f32 v54, v54, v55')
    A('v_add_f32 v48, v48, v50'); A('v_add_f32 v52, v52, v54')
    A('s_nop 1')
    A('v_permlane32_swap_b32 v48, v52')
    A('v_add_f32 v48, v48, v52')
    A('v_mov_b32 v49, v48')
    A('s_nop 1')
    A('v_permlane32_swap_b32 v48, v49')
    A(f'v_mul_f32 v48, {1.0/640!r}, v48')
    A(f'v_mul_f32 v49, {1.0/640!r}, v49')
    A('v_fma_f32 v49, -v48, v48, v49')
    A('v_max_f32 v49, 0, v49')
    A('v_add_f32 v49, 0x3727c5ac, v49')
    A(f'v_rsq_f32 v{V_R}, v49')
    A('s_nop 0')
    A(f'v_mul_f32 v{V_C}, v48, v{V_R}'); A(f'v_sub_f32 v{V_C}, 0, v{V_C}')

def ln_norm(s, t0):
    r = []
    for k in range(4):
        x = XF(s) + k
        r += [I(f'v_lshlrev_b32 v{t0+2*k}, 16, v{x}'), I(f'v_and_b32 v{t0+2*k+1}, 0xffff0000, v{x}')]
    for k in range(8): r.append(I(f'v_fma_f32 v{t0+k}, v{t0+k}, v{V_R}, v{V_C}'))
    for k in range(4): r.append(I(f'v_cvt_pk_bf16_f32 v{XF(s)+k}, v{t0+2*k}, v{t0+2*k+1}'))
    return r

def act_lane_offset(c):
    A = lambda t, **k: c.append(I(t, **k))
    A(f'v_lshrrev_b32 v32, 4, v{V_T}'); A(f'v_mul_u32_u24 v32, {NKS*1024}, v32')
    A(f'v_and_b32 v33, 15, v{V_T}'); A(f'v_lshl_add_u32 v33, v{V_HH}, 4, v33')
    A(f'v_lshl_add_u32 v{V_ACTL}, v33, 4, v32')
    A(f's_lshl_b32 s{S_T0}, s{S_I}, 2'); A(f's_add_u32 s{S_T0}, s{S_T0}, s{S_WAVE}')
    A(f's_mul_i32 s{S_T0}, s{S_T0}, {2*NKS*1024}')
    A(f's_add_u32 s{SRD_ACT}, s{S_WS}, s{S_T0}'); A(f's_addc_u32 s{SRD_ACT+1}, s{S_WS+1}, 0')
    A(f's_mov_b32 s{SRD_ACT+2}, {2*NKS*1024}'); A(f's_mov_b32 s{SRD_ACT+3}, 0x00020000')

def wp_task_setup(c, vbase):
    A = lambda t, **k: c.append(I(t, **k))
    A(f's_lshl_b32 s60, s2, 2'); A(f's_add_u32 s60, s60, s{S_WAVE}')
    A('s_mul_hi_u32 s61, s60, 0x1999999a')
    A('s_mul_i32 s62, s61, 10'); A('s_sub_u32 s62, s60, s62')
    A('s_cmp_lt_u32 s61, 54')
    A(f's_cselect_b32 s{SRD_T}, s{S_WD}, s{S_WO}'); A(f's_cselect_b32 s{SRD_T+1}, s{S_WD+1}, s{S_WO+1}')
    A(f's_mov_b32 s63, {D*1280}'); A(f's_cselect_b32 s{SRD_T+2}, {F*1280}, s63')
    A(f's_mov_b32 s{SRD_T+3}, 0x00020000')
    A('s_cmp_lt_u32 s61, 74'); A(f's_cselect_b32 s{SRD_T+2}, s{SRD_T+2}, 0')
    A(f'v_lshrrev_b32 v32, 3, v{V_LANE}'); A(f'v_and_b32 v33, 7, v{V_LANE}')
    A('v_lshrrev_b32 v34, 2, v32'); A('v_and_b32 v35, 3, v32')
    A('s_lshl_b32 s63, s62, 7')
    for g in range(4):
        d = vbase + g
        A(f's_lshl_b32 s64, s61, 5'); A(f's_add_u32 s64, s64, {16*(g>>1) + 4*(g&1)}')
        A(f's_sub_u32 s65, s61, 54'); A('s_lshl_b32 s65, s65, 2'); A(f's_add_u32 s65, s65, {g}')
        A('s_mul_hi_u32 s66, s65, 0x1999999a'); A('s_mul_i32 s67, s66, 10'); A('s_sub_u32 s67, s65, s67')
        A('s_mul_i32 s66, s66, 80')
        A('s_lshr_b32 s68, s67, 1'); A('s_mul_i32 s68, s68, 20'); A('s_and_b32 s69, s67, 1'); A('s_lshl_b32 s69, s69, 2'); A('s_add_u32 s68, s68, s69')
        A('s_sub_u32 s69, s67, 8'); A('s_mul_i32 s69, s69, 40'); A('s_add_u32 s69, s69, 16')
        A('s_cmp_lt_u32 s67, 8'); A('s_cselect_b32 s68, s68, s69'); A('s_cselect_b32 s69, 8, 20')
        A('s_add_u32 s68, s68, s66')
        A('s_cmp_lt_u32 s61, 54'); A('s_cselect_b32 s68, s64, s68'); A('s_cselect_b32 s69, 8, s69')
        A(f'v_mul_u32_u24 v36, s69, v34'); A('v_add_u32 v36, v36, v35'); A('v_add_u32 v36, s68, v36')
        A('v_mul_u32_u24 v36, 1280, v36'); A('v_lshl_add_u32 v36, v33, 4, v36'); A('v_add_u32 v36, s63, v36')
        A(f'v_subrev_u32 v{d}, {g*1024}, v36')
    A(f's_add_u32 s{SRD_T2}, s{S_WS}, {WP_OFF}'); A(f's_addc_u32 s{SRD_T2+1}, s{S_WS+1}, 0')
    A(f's_mov_b32 s{SRD_T2+2}, {WP_SIZE}'); A(f's_mov_b32 s{SRD_T2+3}, 0x00020000')
    A('s_cmp_lt_u32 s61, 74'); A(f's_cselect_b32 s{SRD_T2+2}, s{SRD_T2+2}, 0')
    for ctp in range(4):
        A(f's_lshl_b32 s64, s62, 2'); A(f's_add_u32 s64, s64, {ctp}')
        A('s_mul_hi_u32 s65, s64, 0x33333334'); A('s_mul_i32 s66, s65, 5'); A('s_sub_u32 s66, s64, s66')
        A(f's_mul_i32 s65, s65, {NKS*5120}'); A('s_mul_i32 s67, s61, 5120'); A('s_add_u32 s65, s65, s67')
        A('s_lshl_b32 s66, s66, 10'); A(f's_add_u32 s{70+ctp}, s65, s66')

def wp_task_touch(vbase, vdummy):
    if not OPT['touch']: return []
    return [I(f'buffer_load_dword v{vdummy}, v{vbase+g}, s[{SRD_T}:{SRD_T+3}], 0 offen offset:{g*1024}', tag='touch') for g in range(4)]

def wp_task_dma(vbase, lds_base):
    r = []
    for g in range(4):
        r.append(dma(f'buffer_load_dwordx4 v{vbase+g}, s[{SRD_T}:{SRD_T+3}], 0 offen offset:{g*1024} lds', (S_T2, lds_base), tag='wp'))
    return r

def wp_task_finish(lds_base, t0):
    r = []
    r += [I(f'v_lshrrev_b32 v{t0}, 4, v{V_LANE}'), I(f'v_lshlrev_b32 v{t0}, 10, v{t0}'),
          I(f'v_bfe_u32 v{t0+1}, v{V_LANE}, 2, 2'), I(f'v_lshl_add_u32 v{t0}, v{t0+1}, 7, v{t0}'),
          I(f'v_and_b32 v{t0+1}, 3, v{V_LANE}'), I(f'v_lshl_add_u32 v{t0}, v{t0+1}, 3, v{t0}'),
          I(f'v_add_u32 v{t0}, s{S_T2}, v{t0}'), I(f'v_add_u32 v{t0}, {lds_base}, v{t0}'),
          I(f'v_lshlrev_b32 v{t0+1}, 4, v{V_LANE}')]
    r.append(WaitTag('wp'))
    for ctp in range(4):
        d = t0 + 2 + 4 * ctp
        for j in range(2):
            r.append(I(f'ds_read_b64_tr_b16 v[{d+2*j}:{d+2*j+1}], v{t0} offset:{j*512 + ctp*32}'))
    for ctp in range(4):
        d = t0 + 2 + 4 * ctp
        r.append(I(f'buffer_store_dwordx4 {vr(d)}, v{t0+1}, s[{SRD_T2}:{SRD_T2+3}], s{70+ctp} offen'))
    return r

class Stream:
    def __init__(self, ring, pieces):
        self.ring = ring
        self.pieces = pieces
        self.next = 0
        self.queue = []
        self.n = len(ring.alloc)
    def release(self, lim):
        while self.next < self.n and self.ring.free_after(self.next) < lim:
            self.queue += self.pieces(self.next); self.next += 1
    def take(self, k):
        out = []
        for _ in range(min(k, len(self.queue))): out += self.queue.pop(0)
        return out
    def flush(self):
        return self.take(len(self.queue))

def gemm_pass(stream, st, st0, nst, ksps, ntile, accf, afr, reads, nxt_reads, dma_gaps, late=False, stamp_every=0):
    main = []
    nk = nst * ksps
    h = ntile // 2
    for s in range(nk):
        n = st0 + s // ksps
        last = (s + 1) % ksps == 0
        sync = last and n + 1 < stream.n
        rd = []
        if s + 1 < nk:
            for T in range(ntile): rd += reads(n + (1 if last else 0), (s + 1) % ksps, T, afr(s + 1, T))
        else:
            rd = nxt_reads
        sgap = h if late else 0
        rgaps = list(range(h, ntile)) if late else list(range(max(1, (ntile + 1) // 2)))
        per = (len(rd) + len(rgaps) - 1) // len(rgaps)
        for T in range(ntile):
            g = []
            if T == sgap:
                g.append(WaitTag(f'w{n+1}', lgkm0=True) if sync else I('s_waitcnt lgkmcnt(0)'))
            elif late and T == 0:
                g.append(I(f's_waitcnt lgkmcnt({ntile})'))
            cc = '0' if s == 0 else ar(accf(T), 16)
            g.append(I(f'v_mfma_f32_32x32x16_bf16 {ar(accf(T),16)}, {ar(afr(s,T))}, {vr(XF(s))}, {cc}'))
            if T == sgap and sync:
                g.append(I('s_barrier'))
                if stamp_every and (n % stamp_every == 0): st(g, f'S{n+1}')
                stream.release(n + 1)
            if T in rgaps:
                k = rgaps.index(T)
                g += rd[k * per:(k + 1) * per]
            post = []
            for _ in range(dma_gaps.count(T)): post += stream.take(1)
            main.append((g, post))
    return main

def mlp_role(c0, st):
    c = []
    A = lambda t, **k: c.append(I(t, **k))
    NU = 3
    WD, V_AF = 20, 14
    A(f's_lshr_b32 s{S_ROLE}, s{S_J}, 2'); A(f's_lshl_b32 s{S_ROLE}, s{S_ROLE}, 1')
    A(f's_and_b32 s{S_T0}, s{S_J}, 1'); A(f's_add_u32 s{S_ROLE}, s{S_ROLE}, s{S_T0}')
    A(f's_cmp_lt_u32 s{S_WAVE}, 2')
    A(f's_cselect_b32 s{SRD_W}, s{S_WG}, s{S_WU}'); A(f's_cselect_b32 s{SRD_W+1}, s{S_WG+1}, s{S_WU+1}')
    A(f's_mov_b32 s{SRD_W+2}, {D*F*2}'); A(f's_mov_b32 s{SRD_W+3}, 0x00020000')
    A(f'v_lshrrev_b32 v32, 3, v{V_LANE}'); A(f'v_and_b32 v33, 7, v{V_LANE}')
    A('v_bfe_u32 v34, v32, 1, 1'); A('v_lshlrev_b32 v34, 2, v34'); A('v_xor_b32 v33, v33, v34')
    A(f's_and_b32 s{S_T0}, s{S_WAVE}, 1'); A(f's_lshl_b32 s{S_T0}, s{S_T0}, 3')
    A(f'v_add_u32 v32, s{S_T0}, v32'); A('v_mul_u32_u24 v32, 3456, v32'); A('v_lshl_add_u32 v32, v33, 4, v32')
    A(f's_mul_i32 s{S_T0}, s{S_ROLE}, {NU*128}')
    A(f'v_add_u32 v32, s{S_T0}, v32')
    for q in range(4): A(f'v_add_u32 v{WD+q}, {q*(16*3456-1024)}, v32')
    K = 1024
    ring = Ring(0, 0)
    slotA = (128 * K, 0, 32 * K, 64 * K)
    for n in range(10): ring.add_at(slotA[n % 4], 32 * K)
    WP_LDS = 96 * K
    for k, b_ in enumerate((112, 96, 32, 48, 64, 80, 128, 144, 0, 16)):
        ring.add_at(b_ * K, 16 * K, not_before=(7 if k == 1 else -1))
    def pieces(n):
        r = []
        units = (0, 1) if n < 10 else (2,)
        k0 = n % 10
        for ui, u in enumerate(units):
            for q in range(4):
                g = []
                if q == 0: g += [I(f's_add_u32 s{S_SOFF2}, s{S_KB+k0}, {u*128}')]
                g.append(dma(f'buffer_load_dwordx4 v{WD+q}, s[{SRD_W}:{SRD_W+3}], s{S_SOFF2} offen offset:{q*1024} lds', (S_T2, ring.alloc[n][0] + ui * 16384), tag=f'w{n}'))
                r.append(g)
        return r
    stream = Stream(ring, pieces)
    A(f'v_lshrrev_b32 v32, 5, v{V_LANE}'); A('v_lshlrev_b32 v32, 12, v32')
    A(f'v_bfe_u32 v33, v{V_LANE}, 2, 2'); A('v_lshl_add_u32 v32, v33, 7, v32')
    A(f'v_bfe_u32 v34, v{V_LANE}, 4, 1'); A('v_lshl_add_u32 v32, v34, 5, v32')
    A(f'v_and_b32 v34, 3, v{V_LANE}'); A('v_lshl_add_u32 v32, v34, 3, v32')
    A('v_lshrrev_b32 v33, 1, v33'); A('v_lshlrev_b32 v33, 6, v33')
    for T in range(2):
        A(f'v_xor_b32 v34, {64*T}, v33'); A(f'v_add_u32 v{V_AF+3*T}, v32, v34')
        A(f'v_add_u32 v{V_AF+3*T+1}, 0x10000, v{V_AF+3*T}'); A(f'v_add_u32 v{V_AF+3*T+2}, 0x20000, v{V_AF+3*T}')
    act_lane_offset(c)
    wp_task_setup(c, 88)
    alu = c
    c = c0
    A = lambda t, **k: c.append(I(t, **k))
    conv = [I(f's_mul_i32 s{S_KB+n}, s{S_KB+n}, 3456') for n in range(10)]
    stream.next = 1
    p0 = [i for g in pieces(0) for i in g]
    x_consume(c, st, alu, {6: conv + p0[:5], 7: p0[5:], 8: wp_task_touch(88, 92)})
    A('s_barrier')
    stream.release(0)
    c.extend(stream.take(4))
    ln_finalize(c)
    ACC = lambda u, T: 64 * u + 16 * T
    AFB = 192
    def reads(n, sp, T, dst):
        ui, T4 = divmod(T, 4)
        M, Tt = divmod(T4, 2); r = []
        for j in range(2):
            off = ring.alloc[n][0] + ui * 16384 + M * 8192 + sp * 1024 + j * 512
            r.append(I(f'ds_read_b64_tr_b16 {ar(dst+2*j, 2)}, v{V_AF+3*Tt+(off>>16)} offset:{off & 0xffff}'))
        return r
    def epilogue(u):
        r = []
        for T in range(2):
            g, up = ACC(u, T), ACC(u, 2 + T)
            P = 64 + 8 * T
            for i in range(0, 16, 2):
                t = V_TMP + 4 * ((i // 2) % 4)
                r += [I(f'v_accvgpr_read_b32 v{t}, a{g+i}'), I(f'v_accvgpr_read_b32 v{t+1}, a{g+i+1}'),
                      I(f'v_accvgpr_read_b32 v{t+2}, a{up+i}'), I(f'v_accvgpr_read_b32 v{t+3}, a{up+i+1}'),
                      I(f'v_max_f32 v{t}, 0, v{t}'), I(f'v_max_f32 v{t+1}, 0, v{t+1}'),
                      I(f'v_mul_f32 v{t}, v{t}, v{t+2}'), I(f'v_mul_f32 v{t+1}, v{t+1}, v{t+3}'),
                      I(f'v_cvt_pk_bf16_f32 v{P+i//2}, v{t}, v{t+1}')]
            r.append(I(f's_mul_i32 s{S_T0}, s{S_ROLE}, {NU*2*1024}'))
            r.append(I(f's_add_u32 s{S_T0}, s{S_T0}, {(2*u+T)*1024}'))
            for ch in range(2):
                r.append(I(f'buffer_store_dwordx4 {vr(P+4*ch)}, v{V_ACTL}, s[{SRD_ACT}:{SRD_ACT+3}], s{S_T0} offen offset:{ch*512}', tag='hst'))
        return r
    SE = OPT.get('se', 2)
    c.extend(ln_norm(0, V_TMP))
    c.append(WaitTag('w0')); A('s_barrier')
    st(c, 'S0')
    afrA = lambda s, T: AFB + 32 * (s % 2) + 4 * T
    afrB = afrA
    for T in range(8): c.extend(reads(0, 0, T, afrA(0, T)))
    A('s_waitcnt lgkmcnt(0)')
    nxt = [i for T in range(4) for i in reads(10, 0, T, afrB(0, T))]
    main = gemm_pass(stream, st, 0, 10, 4, 8, lambda T: ACC(T // 4, T % 4), afrA, reads, nxt, [0, 1, 2, 3], late=True, stamp_every=SE)
    fill = []
    for s in range(39):
        for ins in ln_norm(s + 1, V_TMP): fill.append((8 * s, ins, 8 * s + 6))
        if s == 10:
            for ins in wp_task_dma(88, WP_LDS): fill.append((8 * s + 7, ins, 8 * s + 7))
        if s == 22:
            fill.append((8 * s + 7, wp_task_finish(WP_LDS, 48), 8 * s + 7))
    c.extend(weave(main, fill)); st(c, 'PA')
    main = gemm_pass(stream, st, 10, 10, 4, 4, lambda T: ACC(2, T), afrB, reads, [], [2, 3], stamp_every=SE)
    fill = [(3, ins) for ins in epilogue(0) + epilogue(1)]
    c.extend(weave(main, fill)); st(c, 'PB')
    assert stream.next == stream.n and not stream.queue
    c.extend(epilogue(NU - 1))

def gen_k1(name='k1_kernel', stamps=False, roles=('mlp', 'att')):
    c = []
    st = Stamps(stamps, vreg=V_ST, sreg=100)
    A = lambda t, **k: c.append(I(t, **k))
    A(f'{name}:')
    A('s_cmp_ge_u32 s2, 256')
    A(f's_cbranch_scc1 L_{name}_end')
    st.real(c); st(c, 'start')
    prologue(c, st)
    st(c, 'x01')
    if stamps: st._commit(c)
    A(f's_and_b32 s{S_T0}, s{S_J}, 2')
    A(f's_cmp_eq_u32 s{S_T0}, 0')
    A(f's_cbranch_scc1 L_{name}_att')
    cm = []; stm = st.copy()
    mlp_role(cm, stm)
    stm(cm, 'end'); stm.real(cm); stm.dump(cm, S_WS, S_WS + 1, S_WAVE)
    cm.append(I('s_endpgm'))
    ca = [I(f'L_{name}_att:')]; sta = st.copy()
    if 'att' in roles:
        from k1att import att_role
        att_role(ca, sta)
        sta(ca, 'end'); sta.real(ca); sta.dump(ca, S_WS, S_WS + 1, S_WAVE)
    ca.append(I(f'L_{name}_end:')); ca.append(I('s_endpgm'))
    return c, cm, ca, stm.names, sta.names

def build_k1(name='k1_kernel', stamps=False, roles=('mlp', 'att'), rep=None):
    c, cm, ca, nm, na = gen_k1(name, stamps, roles)
    full_m = finish(c + cm, rep)
    full_a = finish(c + ca, rep)
    pro_last = c[-1]
    im = full_m.index(pro_last); ia = full_a.index(pro_last)
    assert [x.text for x in full_m[:im+1]] == [x.text for x in full_a[:ia+1]]
    build_k1.names = (nm, na)
    build_k1.est = (est_cycles(full_m), est_cycles(full_a))
    return full_m + full_a[ia+1:]
```

```python
from common import *
from p4 import *
from mlp import wp_task_dma, wp_task_finish

PHI_PITCH, V_PITCH = 336, 208
LDS_V = 128 * PHI_PITCH
L_KVT = 68 * K
L_PF, L_WP = 128 * K, 136 * K
A_FR, A_XF, A_PF = 0, 64, 96
ACC = lambda T: 128 + 16 * T
S_G = S_ROLE
SRD_KVS, SRD_PH, SRD_DB = 24, 92, 96
S_X2 = S_X
V_C = V_MU
BMU, CSA = 32, 40

def softmax_head(Dr, E, P):
    r = []
    tm = Dr + 10
    M, N, U, SP, SN = tm, tm + 1, tm + 2, tm + 3, tm + 4
    x = [Dr + i for i in range(10)]
    r.append(I(f'v_max3_f32 v{M}, v{x[0]}, v{x[1]}, v{x[2]}'))
    r.append(I(f'v_max3_f32 v{N}, -v{x[0]}, -v{x[1]}, -v{x[2]}'))
    for k in (3, 5, 7):
        r.append(I(f'v_max3_f32 v{M}, v{M}, v{x[k]}, v{x[k+1]}'))
        r.append(I(f'v_max3_f32 v{N}, v{N}, -v{x[k]}, -v{x[k+1]}'))
    r.append(I(f'v_max_f32 v{M}, v{M}, v{x[9]}'))
    r.append(I(f'v_max_f32_e64 v{N}, v{N}, -v{x[9]}'))
    r.append(I(f'v_permlane32_swap_b32 v{M}, v{N}'))
    r.append(I(f'v_max_f32 v{M}, v{M}, v{N}'))
    r.append(I(f'v_mul_f32 v{M}, v{V_C}, v{M}'))
    r.append(I(f'v_mov_b32 v{U}, v{M}'))
    r.append(I(f'v_permlane32_swap_b32 v{M}, v{U}'))
    for i in range(10):
        r.append(I(f'v_fma_f32 v{E+i}, v{x[i]}, v{V_C}, -v{M}'))
        r.append(I(f'v_fma_f32 v{x[i]}, -v{x[i]}, v{V_C}, -v{U}'))
    for i in range(10):
        r.append(I(f'v_exp_f32 v{E+i}, v{E+i}'))
        r.append(I(f'v_exp_f32 v{x[i]}, v{x[i]}'))
    r.append(I(f'v_add_f32 v{SP}, v{E}, v{E+1}')); r.append(I(f'v_add_f32 v{SN}, v{x[0]}, v{x[1]}'))
    for i in range(2, 10):
        r.append(I(f'v_add_f32 v{SP}, v{SP}, v{E+i}')); r.append(I(f'v_add_f32 v{SN}, v{SN}, v{x[i]}'))
    r.append(I(f'v_permlane32_swap_b32 v{SP}, v{SN}'))
    r.append(I(f'v_add_f32 v{SP}, v{SP}, v{SN}'))
    r.append(I(f'v_rcp_f32 v{SP}, v{SP}'))
    r.append(I(f'v_mov_b32 v{SN}, v{SP}'))
    r.append(I(f'v_permlane32_swap_b32 v{SP}, v{SN}'))
    for i in range(10):
        r.append(I(f'v_mul_f32 v{E+i}, v{E+i}, v{SP}')); r.append(I(f'v_mul_f32 v{x[i]}, v{x[i]}, v{SN}'))
    for p in range(5): r.append(I(f'v_cvt_pk_bf16_f32 v{P+p}, v{E+2*p}, v{E+2*p+1}'))
    for p in range(5): r.append(I(f'v_cvt_pk_bf16_f32 v{P+5+p}, v{x[2*p]}, v{x[2*p+1]}'))
    return r

def feature_maps(acc0, dest, sink, between):
    KB, DV, E = 64, (84, 100), 116
    def phi(h):
        r = []
        for dl in range(2):
            d = vr(DV[h % 2], 16)
            r.append(I(f'v_mfma_f32_32x32x16_bf16 {d}, {ar(A_PF + 4*(2*h+dl))}, {vr(KB + 4*(h+dl))}, {"0" if dl == 0 else d}'))
        return r
    r = [I(f'v_cvt_pk_bf16_f32 v{KB+k}, v{acc0+2*k}, v{acc0+2*k+1}') for k in range(20)]
    r += phi(0)
    r += between
    for h in range(4):
        sm = softmax_head(DV[h % 2], E, dest(h))
        if h + 1 < 4: sm = sm[:12] + phi(h + 1) + sm[12:]
        r += sm
        r += sink(h)
    return r

def wo_task_setup(vb, t0):
    c = []
    A = lambda t: c.append(I(t))
    A(f's_lshl_b32 s64, s{S_I}, 3'); A(f's_add_u32 s64, s64, s{S_G}'); A('s_lshl_b32 s64, s64, 2'); A(f's_add_u32 s64, s64, s{S_WAVE}')
    A('s_lshr_b32 s89, s64, 3'); A('s_and_b32 s65, s64, 7')
    A('s_mul_i32 s66, s65, 160')
    srd(c, SRD_T, S_WO, 's66', None)
    A('s_cmp_lt_u32 s89, 20'); A(f's_cselect_b32 s{SRD_T+2}, {639*1280+160}, 0')
    A('s_lshl_b32 s67, s89, 2')
    for p in range(5):
        a, b, d, e = t0, t0 + 1, t0 + 2, t0 + 3
        A(f'v_add_u32 v{a}, {64*p}, v{V_LANE}')
        A(f'v_mul_u32_u24 v{b}, 6554, v{a}'); A(f'v_lshrrev_b32 v{b}, 16, v{b}')
        A(f'v_mul_u32_u24 v{d}, 10, v{b}'); A(f'v_sub_u32 v{a}, v{a}, v{d}')
        A(f'v_lshrrev_b32 v{d}, 3, v{b}'); A(f'v_add_u32 v{d}, s67, v{d}')
        A(f'v_and_b32 v{b}, 7, v{b}')
        A(f'v_mul_u32_u24 v{e}, 6554, v{d}'); A(f'v_lshrrev_b32 v{e}, 16, v{e}')
        A(f'v_mul_u32_u24 v{t0+4}, 10, v{e}'); A(f'v_sub_u32 v{d}, v{d}, v{t0+4}')
        A(f'v_mul_u32_u24 v{e}, 80, v{e}')
        A(f'v_lshrrev_b32 v{t0+4}, 1, v{d}'); A(f'v_mul_u32_u24 v{t0+4}, 20, v{t0+4}')
        A(f'v_and_b32 v{t0+5}, 1, v{d}'); A(f'v_lshl_add_u32 v{t0+4}, v{t0+5}, 2, v{t0+4}')
        A(f'v_lshrrev_b32 v{t0+5}, 2, v{b}'); A(f'v_lshl_add_u32 v{t0+4}, v{t0+5}, 3, v{t0+4}')
        A(f'v_mul_u32_u24 v{t0+5}, 20, v{t0+5}'); A(f'v_subrev_u32 v{t0+6}, 8, v{d}'); A(f'v_mul_u32_u24 v{t0+6}, 40, v{t0+6}')
        A(f'v_add_u32 v{t0+5}, v{t0+5}, v{t0+6}'); A(f'v_add_u32 v{t0+5}, 16, v{t0+5}')
        c.append([I(f'v_cmp_gt_u32 vcc, 8, v{d}'), I(f'v_and_b32 v{b}, 3, v{b}'), I(f'v_cndmask_b32 v{t0+4}, v{t0+5}, v{t0+4}, vcc')])
        A(f'v_add_u32 v{e}, v{e}, v{b}'); A(f'v_add_u32 v{e}, v{e}, v{t0+4}')
        A(f'v_mul_u32_u24 v{e}, 1280, v{e}'); A(f'v_lshl_add_u32 v{e}, v{a}, 4, v{e}')
        A(f'v_subrev_u32 v{vb+p}, {(p % 4)*1024}, v{e}')
    A(f's_mul_i32 s65, s65, {NKS}'); A('s_add_u32 s65, s65, s89'); A('s_add_u32 s65, s65, 54'); A('s_mul_i32 s65, s65, 5120'); A(f's_add_u32 s65, s65, {WP_OFF}')
    A(f's_add_u32 s90, s{S_WS}, s65'); A(f's_addc_u32 s91, s{S_WS+1}, 0')
    return c

def att_role(c0, st):
    c = c0
    A = lambda t, **k: c.append(I(t, **k))
    NM, NB = OPT['nm'], OPT['nb']
    V_KVD, V_QD = 16, 21
    V_KVA, V_QA = 24, 26
    V_CA, V_CB = 30, 31
    V_W0, V_W1, V_W2, V_W3 = 8, 9, 10, 11
    S_W3 = 74
    srd(c, SRD_W, S_WQKV, None, D * 3 * D * 2)
    A(f's_mul_i32 s{S_T0}, s{S_G}, 160'); A(f's_mul_i32 s{S_T1}, s{S_WAVE}, {16*3840}'); A(f's_add_u32 s{S_T0}, s{S_T0}, s{S_T1}')
    A(f's_mul_i32 s{S_W5K}, s{S_WAVE}, 5120'); A(f's_mul_i32 s{S_W3}, s{S_WAVE}, 3072')
    for p in range(5):
        A(f'v_add_u32 v32, {64*p}, v{V_LANE}')
        A('v_mul_u32_u24 v33, 3277, v32'); A('v_lshrrev_b32 v33, 16, v33')
        A('v_mul_u32_u24 v34, 20, v33'); A('v_sub_u32 v34, v32, v34')
        A('v_cmp_gt_u32 vcc, 10, v34')
        A('v_lshlrev_b32 v34, 4, v34')
        A('v_mul_u32_u24 v33, 3840, v33')
        A(f'v_add_u32 v35, {1280}, v34'); A(f'v_add_u32 v36, {2560-160}, v34')
        A('v_cndmask_b32 v34, v36, v35, vcc')
        A('v_add_u32 v33, v33, v34'); A(f'v_add_u32 v33, s{S_T0}, v33')
        A(f'v_subrev_u32 v{V_KVD+p}, {(p % 4)*1024}, v33')
    for p in range(3):
        A(f'v_add_u32 v32, {64*p}, v{V_LANE}')
        A('v_mul_u32_u24 v33, 5462, v32'); A('v_lshrrev_b32 v33, 16, v33')
        A('v_mul_u32_u24 v34, 12, v33'); A('v_sub_u32 v34, v32, v34')
        A('v_mul_u32_u24 v33, 3840, v33'); A('v_lshl_add_u32 v33, v34, 4, v33'); A(f'v_add_u32 v33, s{S_T0}, v33')
        A(f'v_subrev_u32 v{V_QD+p}, {p*1024}, v33')
    ring = Ring()
    for n in range(10): ring.add_at(SLOT_A[n % 3], 32 * K)
    p4stages = []
    k0 = 32 + NM
    while k0 < 54:
        p4stages.append((k0, min(4, 54 - k0))); k0 += 4
    NLATE = len(p4stages); KLATE = 54 - 32 - NM
    p4stages += [(54 + 4 * k, 4) for k in range(5)]
    qorder = (4, 5, 6, 7, 0, 1, 2, 3)
    for k in range(len(p4stages)): ring.add_at(QSLOT[qorder[k % 8]], 20 * K, not_before=9)
    def pieces(n):
        if n >= 10: return p4.pieces(n - 10)
        base = ring.alloc[n][0]; r = []
        for p in range(5):
            g = [I(f's_mul_i32 s{S_SOFF2}, s{S_KB+n}, 1920')] if p == 0 else []
            g.append(dma(f'buffer_load_dwordx4 v{V_KVD+p}, s[{SRD_W}:{SRD_W+3}], s{S_SOFF2} offen offset:{(p%4)*1024} lds', (S_W5K, base + (4096 if p == 4 else 0)), tag=f'w{n}'))
            r.append(g)
        for p in range(3):
            r.append([dma(f'buffer_load_dwordx4 v{V_QD+p}, s[{SRD_W}:{SRD_W+3}], s{S_SOFF2} offen offset:{p*1024} lds', (S_W3, base + 20480), tag=f'w{n}')])
        return r
    stream = Stream(ring, pieces)
    stream.limit = 10
    V_L16, V_B1 = 12, 15
    V_WIN = (12, 13, 14)
    SRD_WP, SRD_PA = SRD_X, SRD_W2
    PACC = lambda ct, tg: 128 + 8 * ct + 4 * tg
    p4 = P4(stream, 10, p4stages,
            BF=lambda s, tg: ar(8 * (s % NB) + 4 * tg), AF=lambda s, ct: ar(96 + 20 * (s % 2) + 4 * ct),
            ACC=lambda ct, tg: vr(PACC(ct, tg)), v_l16=V_L16, v_b0=V_L16, v_b1=V_B1, srd_wp=SRD_WP, srd_act=SRD_PA, s_ao=70, s_wo=72)
    zero_stores(c, 40)
    c.extend(flat(pieces(0)))
    c.extend(flat(x_dma(1)))
    c.extend(flat(pieces(1)))
    stream.next = 2
    st(c, 'iss')
    for n in range(2, 10): c.extend(kb_entry(n))
    stream.release(0)
    c.extend(stream.take(8))
    x_read_addrs(c)
    A(f's_mov_b32 s{S_MASK}, 0xffff0000')
    A(f'v_bfe_u32 v32, v{V_LANE}, 2, 2'); A(f'v_lshl_add_u32 v32, v{V_HH}, 3, v32')
    A(f'v_bfe_u32 v33, v{V_LANE}, 4, 1'); A('v_lshlrev_b32 v33, 5, v33')
    A(f'v_and_b32 v34, 3, v{V_LANE}'); A('v_lshl_add_u32 v33, v34, 3, v33')
    for (reg, pitch) in ((V_KVA, 320), (V_QA, 192)):
        A(f'v_mul_u32_u24 v34, {pitch}, v32'); A(f'v_add_u32 v{reg}, v34, v33'); A(f'v_add_u32 v{reg+1}, 0x10000, v{reg}')
    A(f's_lshl_b32 s{S_T0}, s{S_G}, 2'); A(f's_add_u32 s{S_T0}, s{S_T0}, s{S_WAVE}'); A(f's_mul_i32 s{S_T0}, s{S_T0}, 800')
    srd(c, SRD_PH, S_WPHI, f's{S_T0}', 800)
    A(f'v_lshlrev_b32 v32, 1, v{V_T}')
    A(f'v_subrev_u32 v33, 4, v32')
    A(f'v_cmp_gt_u32 vcc, 18, v{V_T}'); A('v_cndmask_b32 v33, v33, v32, vcc')
    A(f'v_and_b32 v34, 30, v{V_T}'); A('v_cmp_eq_u32 s[66:67], 20, v34'); A('s_nop 1'); A('s_or_b64 vcc, vcc, s[66:67]')
    A(f'v_mov_b32 v35, {OOB:#x}'); A('v_cndmask_b32 v33, v35, v33, vcc')
    A(f's_lshl_b32 s{S_T0}, s{S_WAVE}, 2')
    PFO, PFV = 108, 112
    for dl in range(2):
        for eh in range(2):
            A(f'v_lshlrev_b32 v36, 2, v{V_HH}'); A(f'v_add_u32 v36, {16*dl + 8*eh}, v36'); A(f'v_subrev_u32 v36, s{S_T0}, v36')
            A('v_cmp_gt_u32 vcc, 20, v36')
            A('v_mul_u32_u24 v37, 40, v36'); A('v_add_u32 v37, v37, v33')
            A(f'v_cndmask_b32 v{PFO + 2*dl + eh}, v35, v37, vcc')
    for dl in range(2):
        for e in range(8):
            A(f'buffer_load_ushort v{PFV + 8*dl + e}, v{PFO + 2*dl + (e >> 2)}, s[{SRD_PH}:{SRD_PH+3}], 0 offen offset:{(e & 3)*40}', tag='pf')
    act_lane_offset(c)
    srd(c, SRD_Z, S_WS, Z_OFF, Z_SIZE)
    p4_ids(c)
    A(f's_mul_i32 s{S_T0}, s{S_G}, 20480'); A(f's_add_u32 s{S_T0}, s{S_T0}, {Z_OFF + Z_KVS}')
    srd(c, SRD_KVS, S_WS, f's{S_T0}', 20480)
    ONE, V_PL, XT, STT, V_CSD, V_CF0, V_CF1 = 32, 37, 40, 56, 64, 96, 100
    V_SP, V_SA, V_CV, V_CAD = 28, 29, 104, 105
    V_A0, V_A1, V_A2 = 106, 107, 36
    S_CST = 75
    A(f's_lshl_b32 s{S_T0}, s{S_WAVE}, 6')
    A(f'v_add_u32 v{V_A0}, s{S_T0}, v{V_KVA}')
    A(f's_add_u32 s{S_T1}, s{S_T0}, {20480 - 64}')
    A(f's_mov_b32 s{S_CST}, 3072'); A('s_movk_i32 s64, 768')
    A(f's_cmp_eq_u32 s{S_WAVE}, 0'); A('s_cselect_b64 vcc, -1, 0'); A(f's_cselect_b32 s{S_CST}, 5120, s{S_CST}'); A('s_cselect_b32 s64, 1280, s64')
    A(f'v_add_u32 v32, 256, v{V_KVA}'); A(f'v_add_u32 v33, s{S_T1}, v{V_QA}')
    A(f'v_cndmask_b32 v{V_A1}, v33, v32, vcc'); A(f'v_add_u32 v{V_A2}, s64, v{V_A1}')
    for k in range(4): A(f'v_mov_b32 v{ONE+k}, 0x3f803f80')
    def reads(n, sp, T, dst):
        base = ring.alloc[n][0]; r = []
        for j in range(2):
            if T < 5: off, reg = base + sp * 5120 + j * 1280 + T * 64, V_KVA
            else: off, reg = base + 20480 + sp * 3072 + j * 768 + (T - 5) * 64, V_QA
            r.append(I(f'ds_read_b64_tr_b16 {ar(dst+2*j, 2)}, v{reg + (off >> 16)} offset:{off & 0xffff}'))
        return r
    afr = lambda s, T: A_FR + 32 * (s % 2) + 4 * T
    XA = lambda s: A_XF + 16 * ((s // 4) % 2) + 4 * (s % 4)
    st(c, 'setup')
    c.append(WaitTag(['x0', 'w0', 'zero'])); A('s_barrier')
    st(c, 'S0')
    c.append(x_read(0, 0, ar(XA(0)), tag='A0a'))
    for T in range(8):
        for ins in reads(0, 0, T, afr(0, T)):
            ins.tag = f'A0{"a" if T < 4 else "b"}'; c.append(ins)
    c.extend(zero_flag(60))
    hooks = {}
    def add(key, lst): hooks.setdefault(key, []).extend(lst)
    for n in range(10):
        for sub in range(1, 4):
            add((4 * n, sub - 1), [x_read(n, sub, ar(XA(4 * n + sub)), tag=f'A{4*n+sub}a')])
        if n + 2 < 10:
            hooks[('cb', 4 * n + 1, 0)] = (lambda nn: (lambda: stream.push_front(x_dma(nn))))(n + 2)
    for sub in range(4): add((0, sub), [x_read(0, sub, vr(XT + 4 * sub))])
    xhook = lambda s: [x_read(s // 4, 0, ar(XA(s)), tag=f'A{s}a')] if s % 4 == 0 else []
    fill = []
    for sp in range(4):
        g0 = 4 + 6 * sp
        for j in range(2): fill.append((g0, I(f'ds_read_b64_tr_b16 v[{V_CF0+2*j}:{V_CF0+2*j+1}], v{V_A0} offset:{sp*5120 + j*1280}'), 27))
        fill.append((g0, I(f'ds_read_b64_tr_b16 v[{V_CF1}:{V_CF1+1}], v{V_A1}'), 27))
        fill.append((g0, I(f'ds_read_b64_tr_b16 v[{V_CF1+2}:{V_CF1+3}], v{V_A2}'), 27))
        if sp < 3:
            fill.append((g0, I(f'v_add_u32 v{V_A1}, s{S_CST}, v{V_A1}'), 27)); fill.append((g0, I(f'v_add_u32 v{V_A2}, s{S_CST}, v{V_A2}'), 27))
        for t, f in enumerate((V_CF0, V_CF1)):
            d = V_CSD + 16 * t
            fill.append((g0 + 2, I(f'v_mfma_f32_32x32x16_bf16 {vr(d,16)}, {vr(ONE)}, {vr(f)}, {"0" if sp == 0 else vr(d,16)}'), 27))
    fill += [(32, [I(f'v_permlane32_swap_b32 v{V_CSD}, v{V_CSD+16}'), I(f'v_mov_b32 v{V_CV}, v{V_CSD}')], 50)]
    zd = [I(f'v_and_b32 v{V_CA}, 15, v{V_LANE}'), I(f'v_lshlrev_b32 v{V_CA}, 2, v{V_CA}'), I(f'v_mov_b32 v{V_CB}, 1')]
    srd(zd, SRD_DB, S_DBG, None, 64)
    zd.append(poll_load('zd', SRD_DB, V_CA, V_PL))
    fill += [(33, i, 50) for i in zd]
    fill += [(34, i, 75) for i in stat_partial(XT, STT, V_SP)]
    pfw = [I(f's_lshl_b32 s64, s{S_WAVE}, 11'), I(f's_add_u32 s64, s64, {L_PF}'), I(f'v_lshlrev_b32 v{V_A0}, 4, v{V_LANE}'), I(f'v_add_u32 v{V_A0}, s64, v{V_A0}')]
    for dl in range(2):
        for p in range(4): pfw.append(I(f'v_lshl_or_b32 v{PFV+4*dl+p}, v{PFV+8*dl+2*p+1}, 16, v{PFV+8*dl+2*p}'))
    for dl in range(2): pfw.append(I(f'ds_write_b128 v{V_A0}, {vr(PFV+4*dl)} offset:{dl*1024}'))
    fill += [(76, i, 90) for i in pfw]
    pfr = [I(f'v_lshlrev_b32 v{V_A1}, 4, v{V_LANE}'), I(f'v_add_u32 v{V_A1}, {L_PF}, v{V_A1}')]
    pfr += [I(f'ds_read_b128 {ar(A_PF+4*f)}, v{V_A1} offset:{f*1024}') for f in range(8)]
    fill += [(96, i, 112) for i in atoms(stat_addr(V_SA))]
    cad = [I(f's_lshl_b32 s64, s{S_J}, 11'), I(f's_add_u32 s64, s64, {Z_CS}'), I(f's_lshl_b32 s65, s{S_WAVE}, 8'), I('s_add_u32 s64, s64, s65'),
           [I(f's_cmp_lt_u32 s{S_I}, 10'), I(f's_cselect_b32 s64, s64, {OOB:#x}')],
           I(f'v_lshlrev_b32 v{V_CAD}, 2, v{V_LANE}'), I(f'v_add_u32 v{V_CAD}, s64, v{V_CAD}')]
    fill += [(96, i, 116) for i in cad]
    at = [I(f'buffer_atomic_add_f32 v{V_SP}, v{V_SA}, s[{SRD_Z}:{SRD_Z+3}], 0 offen', tag='sat'),
          I(f'buffer_atomic_add_f32 v{V_CV}, v{V_CAD}, s[{SRD_Z}:{SRD_Z+3}], 0 offen', tag='sat')]
    fill += [(100, i, 120) for i in at]
    fill += [(104, i, 124) for i in pfr]
    WOV = 40
    fill += [(126, i, 158) for i in atoms(wo_task_setup(WOV, 64))]
    cadd = [I(f's_lshl_b32 s64, s{S_I}, 7'), I(f's_lshr_b32 s65, 0x0aff, s{S_J}'), I('s_and_b32 s65, s65, 1'),
            [I('s_cmp_eq_u32 s65, 1'), I(f's_cselect_b32 s64, s64, {OOB:#x}')],
            I(f's_lshl_b32 s65, s{S_J}, 7'), I(f's_add_u32 s65, s65, {Z_CNT_R}'),
            [I(f's_cmp_lt_u32 s{S_I}, 10'), I(f's_cselect_b32 s65, s65, {OOB:#x}')],
            [I(f's_cmp_eq_u32 s{S_WAVE}, 0'), I(f's_cselect_b32 s64, s64, {OOB:#x}'), I(f's_cselect_b32 s65, s65, {OOB:#x}')]]
    cadd += two_lane(V_SA, 's64', 's65', other=f'{OOB:#x}') + cnt_add(V_SA, V_SP, 'c0')
    fill += [(160, i, 176) for i in cadd]
    fill += [(164, i, 184) for i in wp_task_dma(WOV, L_WP)]
    wpre, wrd, wst = wp_task_finish(L_WP, 64, True, 's_cmp_lt_u32 s89, 20')
    fill += [(186, [wpre[0], wpre[1]], 200), (186, [wpre[2], wpre[3]], 200)] + [(186, i, 203) for i in wpre[4:]]
    pl = [I(f's_lshl_b32 s64, s{S_I}, 7'), I(f's_lshl_b32 s65, s{S_J}, 7'), I(f's_add_u32 s65, s65, {Z_CNT_R}')] + two_lane(V_CA, 's64', 's65') + [I(f'v_mov_b32 v{V_CB}, 10')]
    pl.append(poll_load('f0', SRD_Z, V_CA, V_PL))
    fill += [(204, i, 212) for i in pl]
    fill += [(214, wrd, 224)]
    fill += [(224, i, 240) for i in wst]
    VS, VC = 100, 102
    ld = [I(f's_lshl_b32 s64, s{S_I}, 2'), I(f's_add_u32 s64, s64, s{S_WAVE}'), I('s_lshl_b32 s64, s64, 8'), I(f's_add_u32 s64, s64, {Z_STAT}'),
          I(f'v_lshlrev_b32 v{V_CA}, 3, v{V_T}'),
          I(f'buffer_load_dwordx2 v[{VS}:{VS+1}], v{V_CA}, s[{SRD_Z}:{SRD_Z+3}], s64 offen sc1'),
          I(f's_lshl_b32 s64, s{S_J}, 11'), I(f's_add_u32 s64, s64, {Z_CS}'), I(f'v_lshlrev_b32 v{V_CA}, 2, v{V_LANE}')]
    ld += [I(f'buffer_load_dword v{VC+p}, v{V_CA}, s[{SRD_Z}:{SRD_Z+3}], s64 offen offset:{p*256} sc1') for p in range(4)]
    fill += [(256, i, 270) for i in ld]
    woc = cnt_addr(V_SA, [I(f's_mov_b32 s64, {Z_WO}'), [I('s_cmp_lt_u32 s89, 20'), I(f's_cselect_b32 s64, s64, {OOB:#x}')]])
    fill += [(288, i, 298) for i in atoms(woc) + cnt_add(V_SA, V_SP, 'cw')]
    fin = ln_final(VS, BMU, 56)
    for p in range(4): fin += cs_frag(VC + p, CSA + 4 * p, 56) + [I(f'v_mov_b32 v{CSA+4*p+3}, 0')]
    fin.append(I(f'v_mul_f32 v{V_C}, 0x3fb8aa3b, v{V_RS}'))
    fill += [(300, i, 319) for i in fin]
    def sync_pre(n):
        if n == 2: return poll_check('zd', SRD_DB, V_CA, V_PL, V_CB)
        if n == 7: return poll_check('f0', SRD_Z, V_CA, V_PL, V_CB)
        return []
    tagsA = lambda n: {4: ['sat'], 8: ['wps']}.get(n, [])
    main = gemm(stream, st, 0, 10, 8, lambda T: vr(ACC(T), 16), afr, lambda s: ar(XA(s)), reads, [], 'A',
                hooks=hooks, sync_pre=sync_pre, sync_tags=tagsA, xhook=xhook, final_sync=False)
    c.extend(weave(main, fill)); st(c, 'PA')
    for T in (0, 1, 2, 3, 4, 5, 6, 7):
        A(f'v_mfma_f32_32x32x16_bf16 {vr(ACC(T),16)}, {vr(CSA + 4*(T % 4))}, {vr(BMU + 4*(T // 4))}, {vr(ACC(T),16)}')
    KACC, VACC, QACC = ACC(0), ACC(0) + 40, ACC(5)
    pre = [I(f'v_mul_u32_u24 v60, {PHI_PITCH}, v{V_T}'), I(f's_mul_i32 s{S_T0}, s{S_WAVE}, {32*PHI_PITCH}'), I(f'v_add_u32 v60, s{S_T0}, v60'),
           I(f'v_lshl_add_u32 v{V_W0}, v{V_HH}, 4, v60'), I(f'v_lshl_add_u32 v{V_W1}, v{V_HH}, 3, v60'),
           I(f'v_mul_u32_u24 v60, {V_PITCH}, v{V_T}'), I(f's_mul_i32 s{S_T0}, s{S_WAVE}, {32*V_PITCH}'), I(f's_add_u32 s{S_T0}, s{S_T0}, {LDS_V}'),
           I(f'v_add_u32 v60, s{S_T0}, v60'),
           I(f'v_lshl_add_u32 v{V_W2}, v{V_HH}, 3, v60'), I(f'v_lshl_add_u32 v{V_W3}, v{V_HH}, 4, v60')]
    c.extend(pre)
    A(f's_mov_b32 s64, {Z_WD}'); A(f's_mov_b32 s65, {Z_WO}')
    c.extend(two_lane(V_CA, 's64', 's65'))
    A('s_movk_i32 s64, 108'); A(f'v_mov_b32 v{V_CB}, s64'); A(f'v_writelane_b32 v{V_CB}, 40, 1')
    c.append(poll_load('wd', SRD_Z, V_CA, 63))
    ep = [I('s_waitcnt lgkmcnt(0)'), I('s_barrier')]
    for b in range(10):
        a = VACC + 4 * b; t = 56 + 2 * (b % 2)
        ep += [I(f'v_mul_f32 v{a+k}, v{V_RS}, v{a+k}') for k in range(4)]
        ep += [I(f'v_cvt_pk_bf16_f32 v{t}, v{a}, v{a+1}'), I(f'v_cvt_pk_bf16_f32 v{t+1}, v{a+2}, v{a+3}')]
        Q0 = 2 * b
        off = 8 * Q0 + 8 * (Q0 // 5)
        reg = V_W3 if (2 * b + 1) % 5 == 0 else V_W2
        ep.append(I(f'ds_write_b64 v{reg}, v[{t}:{t+1}] offset:{off}'))
    ep += [I('v_mov_b32 v60, 0x3f803f80'), I('v_mov_b32 v61, 0x3f803f80'),
           I(f'v_mul_u32_u24 v62, 88, v{V_HH}'), I(f'v_add_u32 v62, v62, v{V_W2}')]
    ep += [I(f'ds_write_b64 v62, v[60:61] offset:{40}'), I(f'ds_write_b64 v62, v[60:61] offset:{88}')]
    KP = 44
    def ksink(h):
        return [I(f'ds_write_b128 v{V_W0}, {vr(KP)} offset:{h*80}'),
                I(f'ds_write_b128 v{V_W0}, {vr(KP+4)} offset:{h*80+32}'),
                I(f'ds_write_b64 v{V_W1}, v[{KP+8}:{KP+9}] offset:{h*80+64}')]
    c.extend(feature_maps(KACC, lambda h: KP, ksink, ep)); st(c, 'kphi')
    kvpre = [I(f'v_bfe_u32 v32, v{V_LANE}, 2, 2'), I(f'v_lshl_add_u32 v32, v{V_HH}, 3, v32'),
           I(f'v_and_b32 v33, 3, v{V_LANE}'), I(f'v_bfe_u32 v34, v{V_LANE}, 4, 1'),
           I(f'v_mul_u32_u24 v35, {PHI_PITCH}, v32'), I(f's_mul_i32 s{S_T0}, s{S_WAVE}, 80'), I(f'v_add_u32 v35, s{S_T0}, v35'),
           I(f'v_lshl_add_u32 v35, v33, 3, v35'),
           I(f'v_lshl_add_u32 v36, v34, 5, v35'),
           I(f'v_add_u32 v37, 64, v35'),
           I(f'v_mul_u32_u24 v35, {V_PITCH}, v32'), I(f's_mul_i32 s{S_T0}, s{S_WAVE}, 48'), I(f's_add_u32 s{S_T0}, s{S_T0}, {LDS_V}'),
           I(f'v_add_u32 v35, s{S_T0}, v35'),
           I('v_lshlrev_b32 v38, 3, v33'),
           I('v_min_u32 v39, 1, v33'), I('v_lshlrev_b32 v39, 3, v39'), I('v_add_u32 v39, 32, v39'),
           I('v_cmp_eq_u32 vcc, 0, v34'), I('s_nop 1'), I('v_cndmask_b32 v38, v39, v38, vcc'),
           I(f'v_add_u32 v38, v35, v38')]
    c.extend(kvpre)
    c.extend(poll_check('wd', SRD_Z, V_CA, 63, V_CB))
    A('s_waitcnt lgkmcnt(0)'); A('s_barrier')
    FA = 64
    def kvreads(k):
        b = FA + 12 * (k % 2); r = []
        for j in range(2):
            r.append(I(f'ds_read_b64_tr_b16 v[{b+2*j}:{b+2*j+1}], v36 offset:{k*16*PHI_PITCH + j*4*PHI_PITCH}'))
            r.append(I(f'ds_read_b64_tr_b16 v[{b+4+2*j}:{b+5+2*j}], v37 offset:{k*16*PHI_PITCH + j*4*PHI_PITCH}'))
            r.append(I(f'ds_read_b64_tr_b16 v[{b+8+2*j}:{b+9+2*j}], v38 offset:{k*16*V_PITCH + j*4*V_PITCH}'))
        return r
    KV0, KV1 = 96, 112
    c.extend(kvreads(0))
    for k in range(8):
        b = FA + 12 * (k % 2)
        if k + 1 < 8: c.extend(kvreads(k + 1))
        A(f'v_mfma_f32_32x32x16_bf16 {vr(KV0,16)}, {vr(b)}, {vr(b+8)}, {"0" if k == 0 else vr(KV0,16)}')
        A(f'v_mfma_f32_32x32x16_bf16 {vr(KV1,16)}, {vr(b+4)}, {vr(b+8)}, {"0" if k == 0 else vr(KV1,16)}')
    A(f'v_lshlrev_b32 v40, 2, v{V_T}'); A(f'v_lshl_add_u32 v40, v{V_HH}, 9, v40')
    A(f's_mul_i32 s{S_T0}, s{S_WAVE}, 5120'); A(f'v_add_u32 v40, s{S_T0}, v40')
    A(f'v_cmp_ge_u32 vcc, 20, v{V_T}'); A(f'v_mov_b32 v41, {OOB:#x}'); A('v_cndmask_b32 v40, v41, v40, vcc')
    A('v_add_u32 v41, 4096, v40')
    for i in range(16):
        A(f'buffer_atomic_add_f32 v{KV0+i}, v40, s[{SRD_KVS}:{SRD_KVS+3}], 0 offen offset:{(8*(i>>2) + (i&3))*128}', tag='kvat')
    for i in range(4):
        A(f'buffer_atomic_add_f32 v{KV1+i}, v41, s[{SRD_KVS}:{SRD_KVS+3}], 0 offen offset:{i*128}', tag='kvat')
    st(c, 'kvat')
    PQ = 128
    zz = [I(f'v_mov_b32 v{PQ+12*h+10+z}, 0') for h in range(4) for z in range(2)]
    qe = feature_maps(QACC, lambda h: PQ + 12 * h, lambda h: [], zz)
    kvc = cnt_addr(42, [I(f's_lshl_b32 s64, s{S_J}, 7'), I(f's_add_u32 s64, s64, {Z_CNT_R + 4}')])
    arrive = kvc + [WaitTag('kvat'), I('s_barrier')] + cnt_add(42, 43, 'arr')
    cut = OPT.get('arr_cut', 250)
    c.extend(qe[:cut] + arrive + qe[cut:]); st(c, 'qphi')
    A(f's_lshl_b32 s64, s{S_J}, 7'); A(f's_add_u32 s64, s64, {Z_CNT_R + 4}')
    A(f'v_mov_b32 v{V_CA}, s64'); A(f'v_mov_b32 v{V_CB}, 16')
    c.append(poll_load('kv', SRD_Z, V_CA, 44))
    pa = [I(f'v_lshlrev_b32 v{V_L16}, 4, v{V_LANE}'), I(f'v_add_u32 v13, 0x10000, v{V_L16}'), I(f'v_add_u32 v14, 0x20000, v{V_L16}'),
          I(f'v_add_u32 v{V_B1}, {NKS*1024}, v{V_L16}'),
          I(f's_mul_i32 s64, s{S_PC}, {NKS*5120}'), I(f's_add_u32 s64, s64, {WP_OFF}')]
    srd(pa, SRD_WP, S_WS, 's64', NKS * 5120)
    pa += [I(f's_lshl_b32 s64, s{S_PT}, 2'), I(f's_add_u32 s64, s64, s{S_WAVE}'), I(f's_mul_i32 s64, s64, {2*NKS*1024}')]
    srd(pa, SRD_PA, S_WS, 's64', 2 * NKS * 1024)
    c.extend(pa)
    stream.limit = 14; stream.release(10)
    c.extend(stream.flush())
    c.extend(poll_check('kv', SRD_Z, V_CA, 44, V_CB))
    A('s_barrier')
    st(c, 'kvok')
    A(f'v_min_u32 v32, 20, v{V_T}'); A('v_lshlrev_b32 v32, 2, v32'); A(f's_mul_i32 s{S_T0}, s{S_WAVE}, 5120'); A(f'v_add_u32 v32, s{S_T0}, v32')
    A(f'v_lshl_add_u32 v33, v{V_HH}, 10, v32')
    A(f'v_lshl_add_u32 v34, v{V_HH}, 9, v32'); A('v_add_u32 v34, 4096, v34')
    KL = 88
    for s in range(2):
        for e in range(8):
            A(f'buffer_load_dword v{KL+8*s+e}, v33, s[{SRD_KVS}:{SRD_KVS+3}], 0 offen offset:{(16*s+e)*128} sc1')
    for e in range(4):
        A(f'buffer_load_dword v{KL+16+e}, v34, s[{SRD_KVS}:{SRD_KVS+3}], 0 offen offset:{e*128} sc1')
    A(f's_lshl_b32 s64, s{S_PT}, 7'); A('s_add_u32 s64, s64, 8'); A(f'v_mov_b32 v{V_CA}, s64'); A(f'v_mov_b32 v{V_CB}, 8')
    c.append(poll_load('h2', SRD_Z, V_CA, 44))
    KC = 108
    for p in range(10): A(f'v_cvt_pk_bf16_f32 v{KC+p}, v{KL+2*p}, v{KL+2*p+1}')
    A(f'v_mov_b32 v{KC+10}, 0'); A(f'v_mov_b32 v{KC+11}, 0')
    A(f's_mul_i32 s{S_T0}, s{S_WAVE}, 3072'); A(f's_add_u32 s{S_T0}, s{S_T0}, {L_KVT - 65536}')
    A(f'v_add_u32 v120, s{S_T0}, v13'); A(f'v_add_u32 v121, {L_KVT - 65536}, v13')
    for s in range(3): A(f'ds_write_b128 v120, {vr(KC+4*s)} offset:{s*1024}')
    c.extend(poll_check('h2', SRD_Z, V_CA, 44, V_CB))
    A('s_waitcnt lgkmcnt(0)'); A('s_barrier')
    nb0 = min(NB, KLATE)
    p4.nb_issued = nb0
    FR, DD, OP, TL = 32, 176, 240, 80
    for h in range(4):
        for s in range(3): A(f'ds_read_b128 {vr(FR+12*h+4*s)}, v121 offset:{h*3072+s*1024}')
    for s in range(nb0): c.extend(p4.bload(s))
    for h in range(4):
        for s in range(3):
            dd = vr(DD + 16 * h, 16)
            A(f'v_mfma_f32_32x32x16_bf16 {dd}, {vr(FR+12*h+4*s)}, {vr(PQ+12*h+4*s)}, {"0" if s == 0 else dd}')
    for h in range(4):
        d = DD + 16 * h
        A(f'v_add_f32 v122, 0x358637bd, v{d+12}'); A('v_rcp_f32 v122, v122')
        for i in range(12): A(f'v_mul_f32 v{d+i}, v{d+i}, v122')
        for p in range(4): A(f'v_cvt_pk_bf16_f32 v{OP+4*h+p}, v{d+2*p}, v{d+2*p+1}')
        tl = TL + 4 * (h >> 1) + 2 * (h & 1)
        for p in range(2): A(f'v_cvt_pk_bf16_f32 v{tl+p}, v{d+8+2*p}, v{d+9+2*p}')
    def okstep(q):
        return [I(f's_mul_i32 s{S_T0}, s{S_G}, 10'), I(f's_add_u32 s{S_T0}, s{S_T0}, {q}'),
                I(f's_lshr_b32 s{S_T1}, s{S_T0}, 2'), I(f's_and_b32 s{S_T0}, s{S_T0}, 3'),
                I(f's_add_u32 s{S_T1}, s{S_T1}, 54'), I(f's_lshl_b32 s{S_T1}, s{S_T1}, 10'), I(f's_lshl_b32 s{S_T0}, s{S_T0}, 8'),
                I(f's_add_u32 s{S_T0}, s{S_T0}, s{S_T1}')]
    for h in range(4):
        c.extend(okstep(2 * h))
        A(f'buffer_store_dwordx4 {vr(OP+4*h)}, v{V_ACTL}, s[{SRD_ACT}:{SRD_ACT+3}], s{S_T0} offen sc1', tag='o')
    A(f'v_cmp_eq_u32 vcc, 0, v{V_HH}'); A(f'v_mov_b32 v122, {OOB:#x}'); A(f'v_cndmask_b32 v122, v122, v{V_ACTL}, vcc')
    for j in range(2):
        c.extend(okstep(8 + j))
        A(f'buffer_store_dwordx4 {vr(TL+4*j)}, v122, s[{SRD_ACT}:{SRD_ACT+3}], s{S_T0} offen sc1', tag='o')
    st(c, 'o')
    c.append(WaitTag('w10', lgkm0=True)); A('s_barrier')
    stream.limit = stream.n; stream.release(10)
    c.extend(p4.areads(0, V_WIN))
    XR, PR = 208, 168
    fillP = []
    oc = cnt_addr(42, [I(f's_lshl_b32 s64, s{S_I}, 7'), I('s_add_u32 s64, s64, 12')])
    fillP += [(40, i, 50) for i in atoms(oc) + cnt_add(42, 43, 'co')]
    OCHK = 3
    po = [I(f's_lshl_b32 s64, s{S_PT}, 7'), I('s_add_u32 s64, s64, 12'), I(f'v_mov_b32 v{V_CA}, s64'), I(f'v_mov_b32 v{V_CB}, 8'), poll_load('oc', SRD_Z, V_CA, 44)]
    g_o = 10 * (4 * OCHK - 2)
    fillP += [(g_o, i, g_o + 9) for i in po]
    nst = len(p4stages); nk = p4.nk
    xs = [I(f's_lshl_b32 s64, s{S_PT}, 7'), I(f's_lshl_b32 s65, s{S_WAVE}, 5'), I('s_add_u32 s64, s64, s65'), I('s_mul_i32 s64, s64, 1280'),
          I(f's_mul_i32 s65, s{S_PC}, 160'), I('s_add_u32 s64, s64, s65')]
    SRD_XR, SRD_O = SRD_T, SRD_T2
    srd(xs, SRD_XR, S_X2, 's64', None); xs.append(I(f's_sub_u32 s{SRD_XR+2}, {S*D*2}, s64'))
    srd(xs, SRD_O, S_OUT, 's64', None); xs.append(I(f's_sub_u32 s{SRD_O+2}, {S*D*2}, s64'))
    xs += [I(f'v_and_b32 v45, 15, v{V_LANE}'), I('v_mul_u32_u24 v45, 1280, v45'), I(f'v_lshrrev_b32 v46, 4, v{V_LANE}'), I('v_lshl_add_u32 v45, v46, 3, v45'),
           I(f'v_add_u32 v46, {16*1280}, v45')]
    for ct in range(5):
        for tg in range(2):
            k = 2 * ct + tg
            xs.append(I(f'buffer_load_dwordx2 v[{XR+2*k}:{XR+2*k+1}], v{45+tg}, s[{SRD_XR}:{SRD_XR+3}], 0 offen offset:{ct*32}'))
    g_x = 10 * (nk - 16)
    fillP += [(g_x, i, g_x + 40) for i in atoms(xs)]
    PCHK = nst - 3
    kp = [s for s, (n, k) in enumerate(p4.ks) if n == PCHK][-1]
    pp = [I(f's_lshl_b32 s64, s{S_PT}, 7'), I(f's_lshl_b32 s65, s{S_PC}, 2'), I('s_add_u32 s64, s64, s65'), I('s_add_u32 s64, s64, 16'),
          I(f'v_mov_b32 v{V_CA}, s64'), I(f'v_mov_b32 v{V_CB}, 1'), poll_load('pc', SRD_Z, V_CA, 44)]
    fillP += [(10 * (kp - 5), i, 10 * (kp - 4)) for i in pp]
    pld = [I(f's_lshl_b32 s64, s{S_PT}, 3'), I(f's_add_u32 s64, s64, s{S_PC}'), I(f's_mul_i32 s64, s64, {PART_ONE}'),
           I(f's_mul_i32 s65, s{S_WAVE}, 10240'), I('s_add_u32 s64, s64, s65'), I(f's_add_u32 s64, s64, {PART_OFF}')]
    srd(pld, SRD_W, S_WS, 's64', 10240)
    for k in range(10):
        if k % 4 == 0: pld.append(I(f's_mov_b32 s65, {k*1024}'))
        pld.append(I(f'buffer_load_dwordx4 {vr(PR+4*k)}, v{V_L16}, s[{SRD_W}:{SRD_W+3}], s65 offen offset:{(k%4)*1024} sc1'))
    fillP += [(10 * kp + 2, i, 10 * kp + 35) for i in atoms(pld)]
    def spre(n):
        if n == OCHK: return poll_check('oc', SRD_Z, V_CA, 44, V_CB)
        if n == PCHK: return poll_check('pc', SRD_Z, V_CA, 44, V_CB)
        return []
    gate = lambda k, s: k < KLATE or s >= 4 * OCHK + 3
    mainP = p4.loop(st, V_WIN, NB, gate_b=gate, sync_pre=spre, sync_tags=lambda n: ['o'] if n == 0 else [], stamp_at=(7, 19))
    c.extend(weave(mainP, sorted(fillP, key=lambda f: f[0]))); st(c, 'P4')
    assert stream.next == stream.n and not stream.queue
    for ct in range(5):
        for tg in range(2):
            k = 2 * ct + tg
            a, x, p = PACC(ct, tg), XR + 2 * k, PR + 4 * k
            A(f'v_lshlrev_b32 v50, 16, v{x}'); A(f'v_and_b32 v51, s{S_MASK}, v{x}')
            A(f'v_lshlrev_b32 v52, 16, v{x+1}'); A(f'v_and_b32 v53, s{S_MASK}, v{x+1}')
            for j in range(4): A(f'v_add_f32 v{a+j}, v{a+j}, v{p+j}')
            for j in range(4): A(f'v_add_f32 v{50+j}, v{50+j}, v{a+j}')
            A(f'v_cvt_pk_bf16_f32 v{54+2*(k%4)}, v50, v51'); A(f'v_cvt_pk_bf16_f32 v{55+2*(k%4)}, v52, v53')
            A(f'buffer_store_dwordx2 v[{54+2*(k%4)}:{55+2*(k%4)}], v{45+tg}, s[{SRD_O}:{SRD_O+3}], 0 offen offset:{ct*32}')
```

```python
from ir import *
from layout4 import *

def vr(b, n=4): return f'v[{b}:{b+n-1}]'
def ar(b, n=4): return f'a[{b}:{b+n-1}]'
K = 1024
OOB = 0x40000000

S_X, S_WQKV, S_WPHI, S_WO, S_BX, S_WG, S_WU, S_WD = 16, 18, 20, 22, 24, 26, 28, 30
S_OUT, S_DBG, S_WS = 32, 34, 36
S_WAVE, S_I, S_J, S_T0, S_T1, S_W4K = 38, 39, 40, 41, 42, 43
SRD_X, SRD_W, SRD_W2, SRD_ACT, SRD_Z = 44, 48, 52, 56, 60
SRD_T, SRD_T2 = 4, 12
S_SOFF, S_SOFF2, S_ROLE, S_MASK = 8, 9, 10, 11
S_KB = 76
S_PT, S_PC = 86, 87
S_W5K = 3
V_LANE, V_T, V_HH = 1, 2, 3
V_RS, V_MU = 4, 5
V_ACTL, V_ST = 6, 7
V_DMA, V_XR = 8, 12
XBASE = 96 * K
SLOT_A = (0, 32 * K, 64 * K)

OPT = dict(cpf=True, se=2, nm=4, nb=12)

class Ring:
    def __init__(self): self.alloc = []; self.nb = {}
    def add_at(self, base, size, not_before=-1):
        self.alloc.append((base, size)); self.nb[len(self.alloc) - 1] = not_before
    def free_after(self, n):
        b, s = self.alloc[n]
        last = self.nb.get(n, -1)
        for m in range(n):
            bm, sm = self.alloc[m]
            if bm < b + s and b < bm + sm: last = max(last, m)
        return last

class Stream:
    def __init__(self, ring, pieces):
        self.ring = ring; self.pieces = pieces
        self.next = 0; self.queue = []; self.n = len(ring.alloc); self.limit = self.n
    def release(self, lim):
        self.lim = lim
        while self.next < min(self.n, self.limit) and self.ring.free_after(self.next) < lim:
            self.queue += self.pieces(self.next); self.next += 1
    def push_front(self, groups): self.queue = list(groups) + self.queue
    def take(self, k):
        out = []
        for _ in range(min(k, len(self.queue))): out += self.queue.pop(0)
        return out
    def flush(self): return self.take(len(self.queue))

class Stamps:
    def __init__(self, on, vreg=0, sreg=100): self.on = on; self.n = 0; self.v = vreg; self.s = sreg; self.pending = False; self.names = []
    def _commit(self, c):
        if self.pending:
            c.append(I('s_waitcnt lgkmcnt(0)'))
            c.append(I(f'v_writelane_b32 v{self.v}, s{self.s}, {self.n}')); self.n += 1; self.pending = False
    def __call__(self, c, name=''):
        if not self.on: return
        self._commit(c)
        c.append(I(f's_memtime s[{self.s}:{self.s+1}]')); self.pending = True; self.names.append(name)
    def real(self, c, name='real'):
        if not self.on: return
        self._commit(c)
        c.append(I(f's_memrealtime s[{self.s}:{self.s+1}]')); self.pending = True; self.names.append(name)
    def copy(self):
        o = Stamps(self.on, self.v, self.s); o.n = self.n; o.pending = self.pending; o.names = list(self.names); return o
    def dump(self, c):
        if not self.on: return
        A = lambda t: c.append(I(t))
        self._commit(c)
        A('s_waitcnt vmcnt(0) lgkmcnt(0)')
        A(f's_lshl_b32 s64, s2, 2'); A(f's_add_u32 s64, s64, s{S_WAVE}'); A('s_lshl_b32 s64, s64, 8')
        A(f's_add_u32 s64, s64, {STAMP_OFF}')
        A(f's_add_u32 s4, s{S_WS}, s64'); A(f's_addc_u32 s5, s{S_WS+1}, 0')
        A('s_mov_b32 s6, 256'); A('s_mov_b32 s7, 0x00020000')
        A('v_mbcnt_lo_u32_b32 v1, -1, 0'); A('v_mbcnt_hi_u32_b32 v1, -1, v1'); A('v_lshlrev_b32 v1, 2, v1')
        A(f'buffer_store_dword v{self.v}, v1, s[4:7], 0 offen'); A('s_waitcnt vmcnt(0)')

def srd(c, d, base, off, nrec):
    if off is None:
        c += [I(f's_mov_b32 s{d}, s{base}'), I(f's_mov_b32 s{d+1}, s{base+1}')]
    else:
        c += [I(f's_add_u32 s{d}, s{base}, {off}'), I(f's_addc_u32 s{d+1}, s{base+1}, 0')]
    if nrec is not None: c.append(I(f's_mov_b32 s{d+2}, {nrec}'))
    c.append(I(f's_mov_b32 s{d+3}, 0x00020000'))

def code_prefetch(c, regions, vdst):
    A = lambda t, **k: c.append(I(t, **k))
    A('s_getpc_b64 s[4:5]')
    A('L_pc:')
    A('s_lshr_b32 s3, s2, 3'); A('s_lshl_b32 s3, s3, 9')
    A('v_lshrrev_b32 v33, 6, v0'); A('v_lshl_add_u32 v33, v33, 7, s3')
    A('v_and_b32 v34, 63, v0'); A('v_lshl_add_u32 v32, v34, 14, v33')
    lane = 0
    for lab, nblk in regions:
        if lane:
            A(f's_mov_b32 s3, {lab}-L_pc-{lane*16384}'); A(f'v_cmp_le_u32 vcc, {lane}, v34')
            A('v_lshl_add_u32 v35, v34, 14, v33'); A('v_add_u32 v35, s3, v35')
            A('v_cndmask_b32 v32, v32, v35, vcc')
        lane += nblk
    A('s_mov_b32 s6, L_code_end-L_pc'); A('s_mov_b32 s7, 0x00020000')
    A(f'v_cmp_le_u32 vcc, {lane}, v34'); A(f'v_mov_b32 v35, {OOB:#x}'); A('v_cndmask_b32 v32, v32, v35, vcc')
    A(f'buffer_load_dword v{vdst}, v32, s[4:7], 0 offen', tag='cpf')

def emit_wgmap(c):
    c += [I(f's_and_b32 s{S_T0}, s2, 7'), I(f's_lshr_b32 s{S_T1}, s2, 3'),
          I(f's_and_b32 s{S_I}, s{S_T0}, 1'), I(f's_lshl_b32 s{S_I}, s{S_I}, 3'),
          I(f's_and_b32 s{S_J}, s{S_T1}, 7'), I(f's_add_u32 s{S_I}, s{S_I}, s{S_J}'),
          I(f's_lshr_b32 s{S_J}, s{S_T0}, 1'), I(f's_lshl_b32 s{S_J}, s{S_J}, 2'),
          I(f's_lshr_b32 s{S_T1}, s{S_T1}, 3'), I(f's_add_u32 s{S_J}, s{S_J}, s{S_T1}')]

def kb_entry(n):
    if n == 0: return []
    return [I(f's_add_u32 s{S_KB+n}, s{S_KB+n-1}, 128'), I(f's_cmp_eq_u32 s{S_KB+n}, 1280'), I(f's_cselect_b32 s{S_KB+n}, 0, s{S_KB+n}')]

def x_dma(n):
    return [[dma(f'buffer_load_dwordx4 v{V_DMA+q}, s[{SRD_X}:{SRD_X+3}], s{S_KB+n} offen offset:{q*1024} lds',
                 (S_W4K, XBASE + (n % 2) * 16384), tag=f'x{n}')] for q in range(4)]

def x_read(n, sub, dst, tag=None):
    return I(f'ds_read_b128 {dst}, v{V_XR+sub} offset:{XBASE - 65536 + (n % 2) * 16384}', tag=tag)

def flat(groups): return [i for g in groups for i in g]

def prologue(c, st, regions):
    A = lambda t, **k: c.append(I(t, **k))
    A('s_load_dwordx16 s[16:31], s[0:1], 0')
    A('s_load_dwordx4 s[32:35], s[0:1], 64')
    A('s_load_dwordx2 s[36:37], s[0:1], 80')
    if OPT['cpf']: code_prefetch(c, regions, 63)
    A(f'v_and_b32 v{V_LANE}, 63, v0')
    A('v_lshrrev_b32 v32, 6, v0')
    A(f'v_lshrrev_b32 v33, 3, v{V_LANE}')
    A(f'v_readfirstlane_b32 s{S_WAVE}, v32')
    A(f'v_and_b32 v34, 7, v{V_LANE}')
    A('v_lshrrev_b32 v35, 1, v33')
    A('v_xor_b32 v34, v34, v35')
    A('v_mul_u32_u24 v33, 1280, v33')
    for q in range(4):
        A(f'v_xor_b32 v35, {4*(q&1)}, v34')
        A(f'v_lshl_add_u32 v35, v35, 4, v33')
        A(f'v_add_u32 v{V_DMA+q}, {q*(8*1280-1024)}, v35')
    emit_wgmap(c)
    A(f's_and_b32 s{S_T0}, s{S_J}, 3'); A(f's_mul_i32 s{S_T0}, s{S_T0}, 5'); A(f's_lshr_b32 s{S_T0}, s{S_T0}, 1')
    A(f's_lshr_b32 s{S_T1}, s{S_J}, 2'); A(f's_add_u32 s{S_T0}, s{S_T0}, s{S_T1}'); A(f's_add_u32 s{S_T0}, s{S_T0}, s{S_I}')
    for _ in range(2):
        A(f's_sub_u32 s{S_T1}, s{S_T0}, 10'); A(f's_cmp_ge_u32 s{S_T0}, 10'); A(f's_cselect_b32 s{S_T0}, s{S_T1}, s{S_T0}')
    A(f's_lshl_b32 s{S_KB}, s{S_T0}, 7')
    A(f's_lshl_b32 s{S_T0}, s{S_I}, 2'); A(f's_add_u32 s{S_T0}, s{S_T0}, s{S_WAVE}')
    A(f's_mul_i32 s{S_T1}, s{S_T0}, {32*1280}')
    A(f's_lshl_b32 s{S_W4K}, s{S_WAVE}, 12')
    A('s_waitcnt lgkmcnt(0)')
    srd(c, SRD_X, S_X, f's{S_T1}', 32 * 1280)
    c.extend(flat(x_dma(0)))
    A(f'v_and_b32 v{V_T}, 31, v{V_LANE}')
    A(f'v_lshrrev_b32 v{V_HH}, 5, v{V_LANE}')
    A(f's_lshr_b32 s{S_ROLE}, s{S_J}, 2'); A(f's_lshl_b32 s{S_ROLE}, s{S_ROLE}, 1')
    A(f's_and_b32 s{S_T0}, s{S_J}, 1'); A(f's_add_u32 s{S_ROLE}, s{S_ROLE}, s{S_T0}')
    c.extend(kb_entry(1))

def zero_stores(c, vt):
    A = lambda t, **k: c.append(I(t, **k))
    A(f's_mul_i32 s{S_T0}, s{S_J}, {Z_SHARE}'); A(f's_add_u32 s{S_T0}, s{S_T0}, {Z_OFF}')
    srd(c, SRD_T2, S_WS, f's{S_T0}', None)
    A(f's_cmp_eq_u32 s{S_I}, 0'); A(f's_cselect_b32 s{SRD_T2+2}, {Z_SHARE}, 0')
    for k in range(4): A(f'v_mov_b32 v{vt+k}, 0')
    A(f'v_lshlrev_b32 v{vt+4}, 4, v{V_LANE}'); A(f'v_add_u32 v{vt+4}, s{S_W4K}, v{vt+4}')
    for k in range(4):
        A(f'buffer_store_dwordx4 {vr(vt)}, v{vt+4}, s[{SRD_T2}:{SRD_T2+3}], 0 offen offset:{k*1024} sc1', tag='zero')

def zero_flag(vt):
    return [I(f's_or_b32 s{S_T0}, s{S_I}, s{S_WAVE}'), I(f's_cmp_eq_u32 s{S_T0}, 0'), I(f's_cselect_b32 s{SRD_T2+2}, 64, 0'),
            I(f's_mov_b32 s{SRD_T2}, s{S_DBG}'), I(f's_mov_b32 s{SRD_T2+1}, s{S_DBG+1}'),
            I(f's_lshl_b32 s{S_T0}, s{S_J}, 2'),
            I(f'v_mov_b32 v{vt}, 1'), I(f'v_lshlrev_b32 v{vt+1}, 6, v{V_LANE}'),
            I(f'buffer_store_dword v{vt}, v{vt+1}, s[{SRD_T2}:{SRD_T2+3}], s{S_T0} offen sc1', tag='zf')]

_lab = [0]
def poll_check(name, srd_, va, vp, ve, soff='0'):
    _lab[0] += 1
    L = f'L_{name}_{_lab[0]}'
    r = [WaitTag(name), I(f'v_cmp_le_u32 vcc, v{ve}, v{vp}'), I('s_nop 1'), I('s_cmp_eq_u64 vcc, -1'), I(f's_cbranch_scc1 {L}_ok'),
         I(f's_cmp_lg_u32 s{S_WAVE}, 0'), I(f's_cbranch_scc1 {L}_ok')]
    r += offpath([I('s_mov_b32 s69, 0'), I(f'{L}_spin:'),
                  I(f'buffer_load_dword v{vp}, v{va}, s[{srd_}:{srd_+3}], {soff} offen sc1'), I('s_waitcnt vmcnt(0)'),
                  I(f'v_cmp_le_u32 vcc, v{ve}, v{vp}'), I('s_nop 1'), I('s_cmp_eq_u64 vcc, -1'), I(f's_cbranch_scc1 {L}_ok'),
                  I('s_sleep 2'), I('s_add_u32 s69, s69, 1'), I('s_cmp_lt_u32 s69, 0x4000'), I(f's_cbranch_scc1 {L}_spin')])
    r.append(I(f'{L}_ok:'))
    return r

def poll_load(name, srd_, va, vp, soff='0'):
    return I(f'buffer_load_dword v{vp}, v{va}, s[{srd_}:{srd_+3}], {soff} offen sc1', tag=name)

def two_lane(vd, sa, sb, other=None):
    r = [I(f'v_mov_b32 v{vd}, {sa if other is None else other}')]
    if other is not None: r.append(I(f'v_writelane_b32 v{vd}, {sa}, 0'))
    r.append(I(f'v_writelane_b32 v{vd}, {sb}, 1'))
    return r

def cnt_add(va, vone, tag):
    return [I(f'v_mov_b32 v{vone}, 1'), I(f'buffer_atomic_add v{vone}, v{va}, s[{SRD_Z}:{SRD_Z+3}], 0 offen', tag=tag)]

def cnt_addr(va, off_sreg_expr_code, cond_code=None):
    r = flat([x if isinstance(x, list) else [x] for x in off_sreg_expr_code])
    r += [I(f's_cmp_eq_u32 s{S_WAVE}, 0'), I(f's_cselect_b32 s64, s64, {OOB:#x}'),
          I(f'v_mov_b32 v{va}, {OOB:#x}'), I(f'v_writelane_b32 v{va}, s64, 0')]
    return r

def act_lane_offset(c):
    A = lambda t, **k: c.append(I(t, **k))
    A(f'v_lshrrev_b32 v32, 4, v{V_T}'); A(f'v_mul_u32_u24 v32, {NKS*1024}, v32')
    A(f'v_and_b32 v33, 15, v{V_T}'); A(f'v_lshl_add_u32 v33, v{V_HH}, 4, v33')
    A(f'v_lshl_add_u32 v{V_ACTL}, v33, 4, v32')
    A(f's_lshl_b32 s{S_T0}, s{S_I}, 2'); A(f's_add_u32 s{S_T0}, s{S_T0}, s{S_WAVE}')
    A(f's_mul_i32 s{S_T0}, s{S_T0}, {2*NKS*1024}')
    srd(c, SRD_ACT, S_WS, f's{S_T0}', 2 * NKS * 1024)

def x_read_addrs(c):
    A = lambda t, **k: c.append(I(t, **k))
    A(f'v_lshrrev_b32 v32, 1, v{V_T}'); A('v_and_b32 v32, 7, v32'); A(f'v_xor_b32 v32, v{V_HH}, v32')
    A(f'v_lshlrev_b32 v33, 7, v{V_T}'); A(f'v_add_u32 v33, s{S_W4K}, v33'); A('v_add_u32 v33, 0x10000, v33')
    for sub in range(4):
        A(f'v_xor_b32 v34, {2*sub}, v32'); A(f'v_lshl_add_u32 v{V_XR+sub}, v34, 4, v33')

def p4_ids(c):
    A = lambda t, **k: c.append(I(t, **k))
    A(f's_and_b32 s{S_PT}, s{S_I}, 11'); A(f's_and_b32 s{S_T0}, s{S_J}, 4'); A(f's_add_u32 s{S_PT}, s{S_PT}, s{S_T0}')
    A(f's_lshr_b32 s{S_PC}, s{S_J}, 3'); A(f's_lshl_b32 s{S_PC}, s{S_PC}, 2')
    A(f's_and_b32 s{S_T0}, s{S_J}, 1'); A(f's_lshl_b32 s{S_T0}, s{S_T0}, 1'); A(f's_add_u32 s{S_PC}, s{S_PC}, s{S_T0}')
    A(f's_bfe_u32 s{S_T0}, s{S_I}, 0x10002'); A(f's_add_u32 s{S_PC}, s{S_PC}, s{S_T0}')

def stat_partial(xt, t0, dst):
    r = [I(f'v_mov_b32 v{t0+4+k}, 0') for k in range(4)]
    for k in range(16):
        lo, hi = t0 + 2 * (k & 1), t0 + 2 * (k & 1) + 1
        r += [I(f'v_lshlrev_b32 v{lo}, 16, v{xt+k}'), I(f'v_and_b32 v{hi}, s{S_MASK}, v{xt+k}'),
              I(f'v_add_f32 v{t0+4}, v{t0+4}, v{lo}'), I(f'v_add_f32 v{t0+5}, v{t0+5}, v{hi}'),
              I(f'v_fmac_f32 v{t0+6}, v{lo}, v{lo}'), I(f'v_fmac_f32 v{t0+7}, v{hi}, v{hi}')]
    r += [I(f'v_add_f32 v{dst}, v{t0+4}, v{t0+5}'), I(f'v_add_f32 v{t0+6}, v{t0+6}, v{t0+7}'),
          I(f'v_permlane32_swap_b32 v{dst}, v{t0+6}'), I(f'v_add_f32 v{dst}, v{dst}, v{t0+6}')]
    return r

def stat_addr(va):
    return [I(f's_lshl_b32 s64, s{S_I}, 2'), I(f's_add_u32 s64, s64, s{S_WAVE}'), I('s_lshl_b32 s64, s64, 8'), I(f's_add_u32 s64, s64, {Z_STAT}'),
            I(f's_lshr_b32 s65, 0x0aff, s{S_J}'), I('s_and_b32 s65, s65, 1'), I('s_cmp_eq_u32 s65, 1'), I(f's_cselect_b32 s64, s64, {OOB:#x}'),
            I(f'v_lshlrev_b32 v{va}, 3, v{V_T}'), I(f'v_lshl_add_u32 v{va}, v{V_HH}, 2, v{va}'), I(f'v_add_u32 v{va}, s64, v{va}')]

def ln_final(vs, bmu, t0):
    A = []
    a = lambda t: A.append(I(t))
    a(f'v_mul_f32 v{V_MU}, {1.0/640!r}, v{vs}'); a(f'v_mul_f32 v{t0}, {1.0/640!r}, v{vs+1}')
    a(f'v_fma_f32 v{t0}, -v{V_MU}, v{V_MU}, v{t0}'); a(f'v_max_f32 v{t0}, 0, v{t0}'); a(f'v_add_f32 v{t0}, 0x3727c5ac, v{t0}')
    a(f'v_rsq_f32 v{V_RS}, v{t0}')
    n, hf, r1, mf, r2 = t0, t0 + 1, t0 + 2, t0 + 3, t0 + 4
    a(f'v_sub_f32 v{n}, 0, v{V_MU}')
    a(f'v_cvt_pk_bf16_f32 v{bmu}, v{n}, v{n}')
    a(f'v_and_b32 v{hf}, s{S_MASK}, v{bmu}'); a(f'v_sub_f32 v{r1}, v{n}, v{hf}')
    a(f'v_cvt_pk_bf16_f32 v{bmu+1}, v{r1}, v{n}')
    a(f'v_lshlrev_b32 v{mf}, 16, v{bmu+1}'); a(f'v_sub_f32 v{r2}, v{r1}, v{mf}')
    a(f'v_cvt_pk_bf16_f32 v{bmu+2}, v{r2}, v{r1}')
    a(f'v_cmp_eq_u32 vcc, 0, v{V_HH}')
    a(f'v_mov_b32 v{bmu+3}, 0'); a(f'v_mov_b32 v{bmu+7}, 0')
    for k in range(3): a(f'v_cndmask_b32 v{bmu+4+k}, v{bmu+k}, v{bmu+3}, vcc')
    for k in range(3): a(f'v_cndmask_b32 v{bmu+k}, v{bmu+3}, v{bmu+k}, vcc')
    return A

def cs_frag(vc, dst, t0):
    return [I(f'v_cvt_pk_bf16_f32 v{t0}, v{vc}, v{vc}'), I(f'v_and_b32 v{t0}, s{S_MASK}, v{t0}'), I(f'v_sub_f32 v{t0}, v{vc}, v{t0}'),
            I(f'v_cvt_pk_bf16_f32 v{dst}, v{vc}, v{t0}'), I(f'v_and_b32 v{t0+1}, s{S_MASK}, v{dst}'), I(f'v_sub_f32 v{t0}, v{t0}, v{t0+1}'),
            I(f'v_cvt_pk_bf16_f32 v{dst+1}, v{vc}, v{t0}'), I(f'v_mov_b32 v{dst+2}, v{dst}')]

def gemm(stream, st, st0, nst, ntile, acc, afr, bfr, reads, nxt_reads, pfx, hooks=None, sync_pre=None, sync_post=None,
         sync_tags=None, final_sync=True, xhook=None, gaps=None):
    main = []
    hooks = hooks or {}
    nk = nst * 4
    h = ntile // 2
    gaps = gaps if gaps is not None else list(range(h))
    SE = OPT['se']
    for s in range(nk):
        n = st0 + s // 4
        last = (s + 1) % 4 == 0
        sync = last and (s + 1 < nk or final_sync)
        rd = []
        if s + 1 < nk:
            if xhook: rd += xhook(s + 1)
            for T in range(ntile):
                for ins in reads(n + (1 if last else 0), (s + 1) % 4, T, afr(s + 1, T)):
                    ins.tag = f'{pfx}{s+1}{"a" if T < h else "b"}'; rd.append(ins)
        else:
            rd = nxt_reads
        rgaps = list(range(h, ntile))
        per = (len(rd) + len(rgaps) - 1) // len(rgaps)
        for T in range(ntile):
            g = []
            if T == h:
                if sync:
                    if sync_pre: g += sync_pre(n)
                    g.append(WaitTag([f'w{n+1}', f'x{n+1}'] + (sync_tags(n) if sync_tags else []), lgkm0=True))
                else:
                    g.append(WaitLg(f'{pfx}{s}b'))
            elif T == 0:
                g.append(WaitLg(f'{pfx}{s}a'))
            cc = '0' if s == 0 else acc(T)
            g.append(I(f'v_mfma_f32_32x32x16_bf16 {acc(T)}, {ar(afr(s,T))}, {bfr(s)}, {cc}'))
            if T == h and sync:
                g.append(I('s_barrier'))
                if SE and (n % SE == 0): st(g, f'S{n+1}')
                stream.release(n + 1)
                if sync_post: g += sync_post(n)
            g += hooks.get((s, T), [])
            if T in rgaps:
                k = rgaps.index(T)
                g += rd[k * per:(k + 1) * per]
            cb = hooks.get(('cb', s, T))
            if cb: cb()
            post = []
            for _ in range(gaps.count(T)): post += stream.take(1)
            main.append((g, post))
    return main

def finish(c, rep=None):
    c = place_m0(c)
    c = insert_waits(c, rep)
    c = insert_hazard_nops(c, rep)
    return c

def kd(name, vgpr, agpr_off, sgpr=96):
    return f""".amdhsa_kernel {name}
  .amdhsa_next_free_vgpr {vgpr}
  .amdhsa_next_free_sgpr {sgpr}
  .amdhsa_accum_offset {agpr_off}
  .amdhsa_group_segment_fixed_size 0
  .amdhsa_kernarg_size 88
  .amdhsa_user_sgpr_count 2
  .amdhsa_user_sgpr_kernarg_segment_ptr 1
  .amdhsa_system_sgpr_workgroup_id_x 1
.end_amdhsa_kernel
"""

def atoms(code):
    out = []
    for x in code:
        if isinstance(x, list): out.append(x); continue
        op = getattr(x, 'op', '')
        reads_scc = op in ('s_cselect_b32', 's_cselect_b64', 's_addc_u32', 's_subb_u32') or op.startswith('s_cbranch_scc')
        if reads_scc and out:
            prev = out[-1] if isinstance(out[-1], list) else [out[-1]]
            out[-1] = prev + [x]
        else:
            out.append(x)
    return out
```

```python
import re

REG_RE = re.compile(r'^(-|abs\(|\|)?([vas])(\d+)\)?\|?$')
RNG_RE = re.compile(r'^(-)?([vas])\[(\d+):(\d+)\]$')

def regs_of(op):
    op = op.strip()
    m = RNG_RE.match(op)
    if m:
        return [(m.group(2), i) for i in range(int(m.group(3)), int(m.group(4)) + 1)]
    m = REG_RE.match(op)
    if m:
        return [(m.group(2), int(m.group(3)))]
    if op in ('vcc',):
        return [('x', 'vcc')]
    if op in ('exec',):
        return [('x', 'exec')]
    if op == 'm0':
        return [('x', 'm0')]
    return []

TRANS = ('v_exp_f32', 'v_rcp_f32', 'v_rsq_f32', 'v_sqrt_f32', 'v_log_f32')
DLOPS = ('v_dot2c_f32_bf16', 'v_dot2_f32_bf16')

class I:
    __slots__ = ('text', 'op', 'kind', 'rd', 'wr', 'tag', 'passes', 'waitfor', 'cost', 'meta', 'offpath')
    def __init__(self, text, tag=None, waitfor=None, cost=None):
        self.text = text.strip()
        self.tag = tag
        self.waitfor = waitfor
        self.meta = None
        self.offpath = False
        t = self.text.split(';')[0].strip()
        self.passes = 0
        if t.endswith(':') or t.startswith('.') or t == '':
            self.op = ''
            self.kind = 'label'
            self.rd = []; self.wr = []; self.cost = 0
            return
        parts = t.split(None, 1)
        op = parts[0]
        op = re.sub(r'_(e32|e64|dpp|sdwa)$', '', op)
        self.op = op
        rest = parts[1] if len(parts) > 1 else ''
        rest = re.sub(r'\s+(op_sel|op_sel_hi|neg_lo|neg_hi|quad_perm):\[[^\]]*\]', '', rest)
        ops = [o.strip() for o in rest.split(',')] if rest else []
        mods = ''
        if ops:
            last = ops[-1].split()
            if last:
                ops[-1] = last[0]
                mods = ' '.join(last[1:])
        R = lambda idxs: [r for i in idxs if i < len(ops) for r in regs_of(ops[i])]
        allidx = list(range(len(ops)))
        rd, wr = [], []
        c = 4
        if op.startswith('v_mfma'):
            self.kind = 'mfma'
            self.passes = 8 if '32x32' in op else 4
            wr = R([0]); rd = R([1, 2, 3]); c = 8
        elif op.startswith('v_cmp'):
            self.kind = 'valu'; wr = R([0]); rd = R(allidx[1:])
        elif op.startswith('v_permlane'):
            self.kind = 'valu'; wr = R([0, 1]); rd = R([0, 1])
        elif op == 'v_writelane_b32':
            self.kind = 'valu'; wr = R([0]); rd = R(allidx)
        elif op in ('v_fmac_f32',):
            self.kind = 'valu'; wr = R([0]); rd = R(allidx)
        elif op in ('v_dot2c_f32_bf16',):
            self.kind = 'dl'; wr = R([0]); rd = R(allidx)
        elif op in DLOPS:
            self.kind = 'dl'; wr = R([0]); rd = R(allidx[1:])
        elif op in ('v_add_co_u32', 'v_sub_co_u32'):
            self.kind = 'valu'; wr = R([0, 1]); rd = R(allidx[2:])
        elif op in ('v_addc_co_u32',):
            self.kind = 'valu'; wr = R([0, 1]); rd = R(allidx[2:])
        elif op.startswith('v_'):
            self.kind = 'trans' if op in TRANS else 'valu'
            wr = R([0]); rd = R(allidx[1:])
            if op in TRANS: c = 8
        elif op.startswith('ds_read'):
            self.kind = 'ds_read'; wr = R([0]); rd = R([1])
        elif op.startswith('ds_'):
            self.kind = 'ds_write'; rd = R(allidx)
        elif op.startswith('buffer_load') or op.startswith('global_load'):
            if ' lds' in ' ' + mods or op.startswith('global_load_lds'):
                self.kind = 'dma'; rd = R(allidx) + [('x', 'm0')]; c = 14
            else:
                self.kind = 'vload'; wr = R([0]); rd = R(allidx[1:]); c = 8
        elif op.startswith('buffer_store') or op.startswith('global_store'):
            self.kind = 'vstore'; rd = R(allidx); c = 8
        elif op.startswith('buffer_atomic') or op.startswith('global_atomic'):
            if 'sc0' in mods.split():
                self.kind = 'vload'; wr = R([0]); rd = R(allidx)
            else:
                self.kind = 'vstore'; rd = R(allidx)
            c = 8
        elif op in ('buffer_inv', 'buffer_wbl2'):
            self.kind = 'vstore'
        elif op == 's_waitcnt':
            self.kind = 'wait'
        elif op == 's_barrier':
            self.kind = 'barrier'
        elif op == 's_nop':
            self.kind = 'nop'; c = 4 * (int(ops[0], 0) + 1)
        elif op.startswith('s_cbranch') or op in ('s_branch', 's_endpgm', 's_setpc_b64'):
            self.kind = 'branch'; rd = R(allidx)
        elif op.startswith('s_load') or op in ('s_memtime', 's_memrealtime'):
            self.kind = 'smem'; wr = R([0]); rd = R(allidx[1:])
        elif op == 's_getpc_b64':
            self.kind = 'salu'; wr = R([0]); rd = []
        elif op == 's_getreg_b32':
            self.kind = 'salu'; wr = R([0]); rd = []
        elif op.startswith('s_cmp') or op in ('s_sleep', 's_setprio'):
            self.kind = 'salu'; rd = R(allidx)
        elif op.startswith('s_'):
            self.kind = 'salu'; wr = R([0]); rd = R(allidx[1:])
            if 'saveexec' in op:
                wr = wr + [('x', 'exec')]; rd = rd + [('x', 'exec')]
        else:
            raise ValueError('unknown op ' + self.text)
        self.rd = rd; self.wr = wr
        self.cost = c if cost is None else cost
    def __repr__(self):
        return self.text

class WaitTag:
    def __init__(self, tags, lgkm0=False):
        self.tags = set(tags) if not isinstance(tags, str) else {tags}
        self.lgkm0 = lgkm0
        self.kind = 'waittag'; self.cost = 4; self.rd = []; self.wr = []; self.op = ''; self.passes = 0
        self.text = f'; waittag {self.tags}'
        self.offpath = False
        self.tag = None

class WaitLg(WaitTag):
    def __init__(self, tags):
        WaitTag.__init__(self, tags); self.lg = True; self.text = f'; waitlg {self.tags}'

VM_KINDS = ('vload', 'vstore', 'dma')
LG_KINDS = ('ds_read', 'ds_write')

def insert_waits(code, report=None):
    out = []
    vm = []
    lg = []
    smem_pending = set()
    def emit_wait(vmn=None, lgn=None):
        parts = []
        if vmn is not None:
            vmn = min(vmn, 63); parts.append(f'vmcnt({vmn})')
            del vm[:max(0, len(vm) - vmn)]
        if lgn is not None:
            lgn = min(lgn, 15); parts.append(f'lgkmcnt({lgn})')
            del lg[:max(0, len(lg) - lgn)]
            if lgn == 0: smem_pending.clear()
        w = I('s_waitcnt ' + ' '.join(parts))
        out.append(w)
    for ins in code:
        if ins.offpath:
            out.append(ins); continue
        if isinstance(ins, WaitLg):
            need = None
            for k, o in enumerate(lg):
                if o.tag in ins.tags: need = k
            if need is not None: emit_wait(None, len(lg) - 1 - need)
            continue
        if isinstance(ins, WaitTag):
            need = None
            for k, o in enumerate(vm):
                if o.tag in ins.tags: need = k
            vmn = None if need is None else len(vm) - 1 - need
            lgn = 0 if (ins.lgkm0 and (lg or smem_pending)) else None
            if vmn is not None or lgn is not None:
                emit_wait(vmn, lgn)
            continue
        if ins.kind == 'wait':
            m = re.search(r'vmcnt\((\d+)\)', ins.text)
            if m: del vm[:max(0, len(vm) - int(m.group(1)))]
            m = re.search(r'lgkmcnt\((\d+)\)', ins.text)
            if m:
                n = int(m.group(1)); del lg[:max(0, len(lg) - n)]
                if n == 0: smem_pending.clear()
            out.append(ins); continue
        if ins.kind in ('label', 'branch') :
            out.append(ins); continue
        touched = set(ins.rd) | set(ins.wr)
        vmn = lgn = None
        for k, o in enumerate(vm):
            if o.kind == 'vload' and touched & set(o.wr):
                if ins.kind == 'vload' and not (set(ins.rd) & set(o.wr)): continue
                vmn = len(vm) - 1 - k
        for k, o in enumerate(lg):
            if o.kind == 'ds_read' and touched & set(o.wr):
                if ins.kind == 'ds_read' and not (set(ins.rd) & set(o.wr)): continue
                lgn = len(lg) - 1 - k
        if touched & smem_pending: lgn = 0
        if ins.kind in LG_KINDS and len(lg) >= 15: lgn = 14 if lgn is None else min(lgn, 14)
        if ins.kind in VM_KINDS and len(vm) >= 63: vmn = 62 if vmn is None else min(vmn, 62)
        if vmn is not None or lgn is not None:
            emit_wait(vmn, lgn)
        out.append(ins)
        if ins.kind in VM_KINDS: vm.append(ins)
        elif ins.kind in LG_KINDS:
            lg.append(ins)
            if len(lg) > 15 and report is not None: report.append(f'lgkm overflow at {ins.text}')
        elif ins.kind == 'smem': smem_pending |= set(ins.wr)
        if len(vm) > 63 and report is not None: report.append(f'vmcnt overflow at {ins.text}')
    return out

def states(ins):
    if ins.kind == 'label': return 0
    if ins.kind == 'nop': return ins.cost // 4
    return 1

def insert_hazard_nops(code, report=None):
    out = []
    hist = []
    pos = 0
    def need_between(p, c):
        n = 0
        pw = set(p.wr); cr = set(c.rd); cw = set(c.wr)
        vw = {r for r in pw if r[0] in 'va'}
        if p.kind == 'mfma':
            big = {2: 5, 4: 8, 8: 12, 16: 20}[p.passes]
            if c.kind == 'mfma':
                ops = c.text.split(None, 1)[1].split(',')
                a = set(regs_of(ops[1])) | set(regs_of(ops[2])); cc = regs_of(ops[3].split()[0])
                if vw & a: n = max(n, big)
                if vw & set(cc):
                    same = (cc == list(p.wr)) and c.passes == p.passes
                    n = max(n, 0 if same else {2: 4, 4: 6, 8: 10, 16: 18}[p.passes])
            else:
                if vw & (cr | cw): n = max(n, big)
        if p.kind == 'mfma' and c.kind in ('valu', 'trans', 'dl'):
            ops = p.text.split(None, 1)[1].split(',')
            cc = set(regs_of(ops[3].split()[0]))
            if cc & cw: n = max(n, {2: 1, 4: 3, 8: 7, 16: 15}[p.passes])
        if p.kind in ('valu', 'trans', 'dl'):
            if c.kind == 'mfma' and vw & cr: n = max(n, 2)
            if c.op.startswith('v_permlane') and vw & cr: n = max(n, 2)
            if c.op in ('v_readfirstlane_b32', 'v_readlane_b32') and vw & cr: n = max(n, 1)
            if p.kind == 'trans' and c.kind in ('valu', 'dl', 'mfma') and vw & cr: n = max(n, 1)
            if p.kind == 'dl' and vw & (cr | cw):
                if not (c.op == p.op and c.op == 'v_dot2c_f32_bf16' and vw & cw and not (vw & (cr - cw))): n = max(n, 3)
            sw = {r for r in pw if r[0] == 's' or r == ('x', 'vcc')}
            if sw:
                if c.kind in VM_KINDS and sw & cr: n = max(n, 5)
                if c.kind in ('valu', 'trans', 'dl') and sw & cr: n = max(n, 2)
                if c.op in ('v_readlane_b32', 'v_writelane_b32') and sw & cr: n = max(n, 4)
            if ('x', 'exec') in pw and c.kind == 'mfma': n = max(n, 4)
        if p.kind == 'vstore' and 'x4' in p.op or (p.kind == 'vstore' and 'x3' in p.op):
            ops = p.text.split(None, 1)[1].split(',')
            data = set(regs_of(ops[0].strip()))
            if data & cw: n = max(n, 2 if c.kind in ('valu', 'trans', 'dl') else 1)
        if p.kind == 'salu' and ('x', 'm0') in pw and c.kind == 'dma': n = max(n, 1)
        if p.kind == 'salu' and ('x', 'exec') in pw and c.kind in ('valu', 'trans', 'dl', 'mfma') and False: n = max(n, 0)
        return n
    for ins in code:
        if ins.kind == 'label':
            out.append(ins); continue
        req = 0
        for (p, ppos) in reversed(hist):
            d = pos - ppos - 1
            if d >= 20: break
            n = need_between(p, ins)
            if n > d: req = max(req, n - d)
        if req:
            if report is not None: report.append(f'nop {req} before: {ins.text}')
            r = req
            while r > 0:
                k = min(r, 16)
                nop = I(f's_nop {k-1}')
                out.append(nop); pos += k; r -= k
        out.append(ins)
        hist.append((ins, pos))
        pos += states(ins)
        if len(hist) > 64: del hist[:32]
    return out

def _cost(it):
    return sum(x.cost for x in it) if isinstance(it, list) else it.cost

def weave(main, fillers):
    ng = len(main)
    post = [g[1] if isinstance(g, tuple) else [] for g in main]
    main = [g[0] if isinstance(g, tuple) else g for g in main]
    base = [sum(i.cost for i in g) + sum(i.cost for i in p) for g, p in zip(main, post)]
    items = [(f[0], f[1], f[2] if len(f) > 2 and f[2] is not None else ng - 1) for f in fillers]
    n = len(items)
    cost = [_cost(it[1]) for it in items]
    eff = [0] * n
    m = ng - 1
    for q in range(n - 1, -1, -1):
        m = min(m, items[q][2]); eff[q] = m
    pre = [0]
    for x in cost: pre.append(pre[-1] + x)
    bpre = [0]
    for x in base: bpre.append(bpre[-1] + x)
    out = []
    k = 0
    for g in range(ng):
        out.extend(main[g])
        gap = base[g]
        while k < n:
            mn, it, mx = items[k]
            if mn > g: break
            D = max(eff[k], g)
            j = k
            while j + 1 < n and eff[j + 1] <= D and items[j + 1][0] <= D: j += 1
            if D > g:
                target = (bpre[D + 1] - bpre[g] + (gap - base[g]) + pre[j + 1] - pre[k]) / (D - g + 1)
                if gap + cost[k] / 2 > target: break
            if g > mx: raise AssertionError(f'filler missed its deadline: gap {g} > {mx}: {it}')
            out.extend(it if isinstance(it, list) else [it]); gap += cost[k]; k += 1
        out.extend(post[g])
    assert k == n, f'fillers left over: {items[k]}'
    return out

def chunk_atoms(code, nparts):
    nocut = [False] * (len(code) + 1)
    lastw = None
    for i, ins in enumerate(code):
        op = getattr(ins, 'op', '')
        reads = op in ('s_cselect_b32', 's_cselect_b64', 's_addc_u32', 's_subb_u32') or op.startswith('s_cbranch_scc')
        if reads and lastw is not None:
            for k in range(lastw + 1, i + 1): nocut[k] = True
        if op.startswith('s_') and op not in ('s_cselect_b32', 's_cselect_b64', 's_mov_b32', 's_mov_b64', 's_nop', 's_waitcnt', 's_mul_i32', 's_mul_hi_u32') and ins.kind == 'salu': lastw = i
    parts = []; start = 0
    for p in range(1, nparts):
        cut = len(code) * p // nparts
        while cut < len(code) and nocut[cut]: cut += 1
        if cut < start: cut = start
        parts.append(code[start:cut]); start = cut
    parts.append(code[start:])
    return parts

def est_cycles(code):
    t = 0; mf_free = 0
    for i in code:
        if i.kind == 'label': continue
        if i.kind == 'mfma':
            t = max(t, mf_free); mf_free = t + 4 * i.passes; t += 8
        else:
            t += i.cost
    return max(t, mf_free)

def render(code):
    lines = []
    for i in code:
        if i.kind == 'label': lines.append(i.text)
        else: lines.append('    ' + i.text)
    return '\n'.join(lines) + '\n'

def offpath(lst):
    for i in lst: i.offpath = True
    return lst

def dma(text, m0, tag=None):
    i = I(text, tag=tag); i.meta = ('m0', m0[0], m0[1]); return i

def place_m0(code):
    out = []
    cur = None
    for ins in code:
        if ins.kind in ('label', 'branch') : cur = None
        if ins.kind == 'dma' and ins.meta and ins.meta[0] == 'm0':
            need = ins.meta[1:]
            if cur != need:
                w = I(f's_add_u32 m0, s{need[0]}, {need[1]}')
                k = len(out)
                if k > 0 and (out[k-1].kind in ('valu', 'trans', 'ds_read', 'ds_write', 'mfma', 'wait') or out[k-1].op in ('s_add_u32', 's_lshl_b32')): k -= 1
                out.insert(k, w); cur = need
        elif ('x', 'm0') in ins.wr: cur = None
        out.append(ins)
    return out
```

```python
import numpy as np
S, D, F, H, DH = 2048, 640, 1728, 32, 20
NKS = 74
ACT_OFF = 0
ACT_SIZE = 128 * NKS * 1024
WP_OFF = 0xA00000
WP_SIZE = 8 * NKS * 5 * 1024
PART_OFF = 0xD00000
PART_ONE = 40960
Z_OFF = 0x1200000
Z_CNT_T = 0
T_WD, T_WO = 48, 52
Z_CNT_R = 2048
Z_WD, Z_WO = 4096, 4224
Z_STAT = 8192
Z_CS = 24576
Z_KVS = 57344
Z_SIZE = Z_KVS + 8 * 20480
Z_SHARE = Z_SIZE // 16
assert Z_SHARE * 16 == Z_SIZE and Z_SHARE % 16 == 0 and Z_SHARE <= 16 * 1024
STAMP_OFF = 0x1300000

def ftile(s):
    if s < 32: return 6 * (s >> 2) + (s & 3)
    if s < 48: return 6 * ((s - 32) >> 1) + 4 + (s & 1)
    return s

def krow(s, g, e):
    if s < 54:
        return 32 * ftile(s) + 16 * (g >> 1) + 8 * (e >> 2) + 4 * (g & 1) + (e & 3)
    J = 4 * (s - 54) + g
    G, q = divmod(J, 10)
    if q < 8:
        hp, hh = q >> 1, q & 1
        r = 20 * (4 * G + hp) + 4 * hh + 8 * (e >> 2) + (e & 3)
    else:
        j = q - 8
        r = 20 * (4 * G + 2 * j + (e >> 2)) + 16 + (e & 3)
    return F + r

KROW = np.array([[[krow(s, g, e) for e in range(8)] for g in range(4)] for s in range(NKS)])
assert sorted(KROW.reshape(-1).tolist()) == list(range(F + D))

def pack_act(act):
    l = np.arange(64)
    tok = (np.arange(128)[:, None] * 16 + (l & 15)[None, :])
    kr = KROW[:, l >> 4, :]
    return act[tok[:, None, :, None], kr[None, :, :, :]]

def pack_wp(wcat):
    l = np.arange(64)
    col = (80 * np.arange(8)[:, None, None] + 16 * np.arange(5)[None, :, None] + (l & 15)[None, None, :])
    kr = KROW[:, l >> 4, :]
    return wcat[kr[None, :, None, :, :], col[:, None, :, :, None]]

def wg_map(wg):
    xcd, q = wg & 7, wg >> 3
    i = 8 * (xcd & 1) + (q & 7)
    j = 4 * (xcd >> 1) + (q >> 3)
    return i, j

def role_index(j):
    return 2 * (j >> 2) + (j & 1)

def p4_map(i, j):
    return 8 * (i >> 3) + 4 * ((j >> 2) & 1) + (i & 3), 4 * (j >> 3) + 2 * (j & 1) + ((i >> 2) & 1)

def rot_of(i, j):
    return (i + (0, 2, 5, 7)[j & 3] + (j >> 2)) % 10

if __name__ == '__main__':
    for typ in (0, 2):
        seen = set()
        for wg in range(256):
            i, j = wg_map(wg)
            if (j & 2) == typ: seen.add(p4_map(i, j))
        assert len(seen) == 128
    for i in range(16):
        des = [0, 1, 2, 3, 4, 5, 6, 7, 9, 11]
        assert sorted(rot_of(i, j) for j in des) == list(range(10))
    for j in range(16):
        assert sorted(rot_of(i, j) for i in range(10)) == list(range(10))
    print('ok', Z_SIZE, Z_SHARE)
```

```python
from common import *
from p4 import *

XA = lambda s: 4 * s
AFB = 160
A_HU = 224
ACC = lambda u, T: 64 + 64 * u + 16 * T
V_WD, V_HD = 16, 20
V_AF, V_HA = 21, 27
V_CA, V_CB = 30, 31
BMU = 32
TT = 40
S_TK = 89

def wd_task_setup(c, vb):
    A = lambda t, **k: c.append(I(t, **k))
    A(f's_lshl_b32 s64, s{S_I}, 3'); A(f's_add_u32 s64, s64, s{S_ROLE}'); A('s_lshl_b32 s64, s64, 2'); A(f's_add_u32 s64, s64, s{S_WAVE}')
    A(f's_lshr_b32 s{S_TK}, s64, 3'); A('s_and_b32 s65, s64, 7')
    A(f's_lshr_b32 s66, s{S_TK}, 2'); A('s_mul_i32 s66, s66, 6'); A(f's_and_b32 s67, s{S_TK}, 3'); A('s_add_u32 s66, s66, s67')
    A(f's_sub_u32 s67, s{S_TK}, 32'); A('s_lshr_b32 s67, s67, 1'); A('s_mul_i32 s67, s67, 6'); A(f's_and_b32 s68, s{S_TK}, 1')
    A('s_add_u32 s67, s67, s68'); A('s_add_u32 s67, s67, 4')
    A(f's_cmp_lt_u32 s{S_TK}, 32'); A('s_cselect_b32 s66, s66, s67')
    A(f's_cmp_lt_u32 s{S_TK}, 48'); A(f's_cselect_b32 s66, s66, s{S_TK}')
    A(f's_mul_i32 s66, s66, {32*1280}'); A('s_mul_i32 s67, s65, 160'); A('s_add_u32 s66, s66, s67')
    srd(c, SRD_T, S_WD, 's66', None)
    A(f's_cmp_lt_u32 s{S_TK}, 54'); A(f's_cselect_b32 s{SRD_T+2}, {31*1280+160}, 0')
    for p in range(5):
        A(f'v_add_u32 v32, {64*p}, v{V_LANE}')
        A('v_mul_u32_u24 v33, 6554, v32'); A('v_lshrrev_b32 v33, 16, v33')
        A('v_mul_u32_u24 v34, 10, v33'); A('v_sub_u32 v34, v32, v34')
        A('v_mul_u32_u24 v33, 1280, v33'); A('v_lshl_add_u32 v33, v34, 4, v33')
        A(f'v_subrev_u32 v{vb+p}, {(p % 4)*1024}, v33')
    A(f's_mul_i32 s65, s65, {NKS}'); A(f's_add_u32 s65, s65, s{S_TK}'); A('s_mul_i32 s65, s65, 5120'); A(f's_add_u32 s65, s65, {WP_OFF}')
    A(f's_add_u32 s90, s{S_WS}, s65'); A(f's_addc_u32 s91, s{S_WS+1}, 0')

def wp_task_dma(vb, lds):
    return [dma(f'buffer_load_dwordx4 v{vb+p}, s[{SRD_T}:{SRD_T+3}], 0 offen offset:{(p % 4)*1024} lds',
                (S_W5K, lds + (4096 if p == 4 else 0)), tag='wp') for p in range(5)]

def wp_task_finish(lds, t0, dest_order, valid_cmp):
    r = [I(f's_mov_b32 s{SRD_T2}, s90'), I(f's_mov_b32 s{SRD_T2+1}, s91'), I(valid_cmp), I(f's_cselect_b32 s{SRD_T2+2}, 5120, 0')]
    if dest_order:
        r += [I(f'v_lshrrev_b32 v{t0}, 4, v{V_LANE}'), I(f'v_lshlrev_b32 v{t0}, 3, v{t0}')]
        jstep = 4 * 160
    else:
        r += [I(f'v_lshrrev_b32 v{t0}, 5, v{V_LANE}'), I(f'v_lshlrev_b32 v{t0}, 4, v{t0}'),
              I(f'v_bfe_u32 v{t0+1}, v{V_LANE}, 4, 1'), I(f'v_lshl_add_u32 v{t0}, v{t0+1}, 2, v{t0}')]
        jstep = 8 * 160
    r += [I(f'v_bfe_u32 v{t0+1}, v{V_LANE}, 2, 2'), I(f'v_add_u32 v{t0}, v{t0}, v{t0+1}'), I(f'v_mul_u32_u24 v{t0}, 160, v{t0}'),
          I(f'v_and_b32 v{t0+1}, 3, v{V_LANE}'), I(f'v_lshl_add_u32 v{t0}, v{t0+1}, 3, v{t0}'),
          I(f'v_add_u32 v{t0}, s{S_W5K}, v{t0}'), I(f'v_add_u32 v{t0}, {lds}, v{t0}'),
          I(f'v_lshlrev_b32 v{t0+1}, 4, v{V_LANE}')]
    rd = [WaitTag('wp')]
    for ct in range(5):
        d = t0 + 4 + 4 * ct
        for j in range(2):
            rd.append(I(f'ds_read_b64_tr_b16 v[{d+2*j}:{d+2*j+1}], v{t0} offset:{j*jstep + ct*32}'))
    stv = []
    for ct in range(5):
        d = t0 + 4 + 4 * ct
        off = f'offset:{ct*1024}' if ct < 4 else 'offset:0'
        so = '0' if ct < 4 else 's69'
        if ct == 4: stv.append(I('s_mov_b32 s69, 4096'))
        stv.append(I(f'buffer_store_dwordx4 {vr(d)}, v{t0+1}, s[{SRD_T2}:{SRD_T2+3}], {so} offen {off} sc1', tag='wps'))
    return r, rd, stv

def mlp_role(c0, st):
    c = c0
    A = lambda t, **k: c.append(I(t, **k))
    NM, NB = OPT['nm'], OPT['nb']
    S_T2K, SRD_DB = 92, 96
    A(f's_cmp_lt_u32 s{S_WAVE}, 2')
    A(f's_cselect_b32 s{SRD_W}, s{S_WG}, s{S_WU}'); A(f's_cselect_b32 s{SRD_W+1}, s{S_WG+1}, s{S_WU+1}')
    A(f's_cselect_b32 s{SRD_W2}, s{S_WG}, s{S_WU}'); A(f's_cselect_b32 s{SRD_W2+1}, s{S_WG+1}, s{S_WU+1}')
    A(f's_mov_b32 s{SRD_W+2}, {D*F*2}'); A(f's_mov_b32 s{SRD_W+3}, 0x00020000')
    A(f'v_lshrrev_b32 v32, 3, v{V_LANE}'); A(f'v_and_b32 v33, 7, v{V_LANE}')
    A('v_bfe_u32 v34, v32, 1, 1'); A('v_lshlrev_b32 v34, 2, v34'); A('v_xor_b32 v33, v33, v34')
    A(f's_and_b32 s{S_T0}, s{S_WAVE}, 1'); A(f's_lshl_b32 s{S_T0}, s{S_T0}, 3')
    A(f'v_add_u32 v32, s{S_T0}, v32'); A('v_mul_u32_u24 v32, 3456, v32'); A('v_lshl_add_u32 v32, v33, 4, v32')
    A(f's_mul_i32 s{S_T0}, s{S_ROLE}, 384')
    A(f'v_add_u32 v32, s{S_T0}, v32')
    for q in range(4): A(f'v_add_u32 v{V_WD+q}, {q*(16*3456-1024)}, v32')
    ring = Ring()
    for n in range(10): ring.add_at(SLOT_A[n % 3], 32 * K)
    SCR = 128 * K
    for k in range(10):
        ring.add_at((128, 32, 64, 96, 0)[k % 5] * K, 24 * K, not_before={0: 6, 3: 9}.get(k, -1))
    nst4 = 8 + (NM + 3) // 4
    qorder = (6, 7, 2, 3, 4, 5, 0, 1)
    for k in range(nst4): ring.add_at(QSLOT[qorder[k % 8]], 20 * K)
    p4stages = [(('rot', n), 4) for n in range(8)] + [(32 + 4 * k, min(4, NM - 4 * k)) for k in range((NM + 3) // 4)]
    V_L16, V_B1 = 8, 11
    V_WIN = (8, 9, 10)
    SRD_WP, SRD_PA = SRD_X, SRD_T
    def wpieces(n, base, tag):
        r = []
        units = (0, 1) if n < 10 else (2,)
        k0 = n % 10
        for ui, u in enumerate(units):
            for q in range(4):
                g = []
                if q == 0: g += [I(f's_mul_i32 s{S_SOFF2}, s{S_KB+k0}, 1728'), I(f's_add_u32 s{S_SOFF2}, s{S_SOFF2}, {u*128}')]
                g.append(dma(f'buffer_load_dwordx4 v{V_WD+q}, s[{SRD_W}:{SRD_W+3}], s{S_SOFF2} offen offset:{q*1024} lds', (S_W4K, base + ui * 16384), tag=tag))
                r.append(g)
        if n >= 10:
            for q in range(2):
                g = [I(f's_mul_i32 s{S_SOFF}, s{S_KB+k0}, 1728')] if q == 0 else [I(f's_add_u32 s{S_SOFF}, s{S_SOFF}, {16*3456-1024}')]
                g.append(dma(f'buffer_load_dwordx4 v{V_HD}, s[{SRD_W2}:{SRD_W2+3}], s{S_SOFF} offen offset:{q*1024} lds', (S_T2K, base + 16384), tag=tag))
                r.append(g)
        return r
    def pieces(n):
        if n >= 20: return p4.pieces(n - 20)
        return wpieces(n, ring.alloc[n][0], f'w{n}')
    stream = Stream(ring, pieces)
    stream.limit = 20
    p4 = P4(stream, 20, p4stages,
            BF=lambda s, tg: vr(64 + 8 * (s % NB) + 4 * tg), AF=lambda s, ct: ar(40 + 20 * (s % 2) + 4 * ct),
            ACC=lambda ct, tg: ar(8 * ct + 4 * tg), v_l16=V_L16, v_b0=V_L16, v_b1=V_B1, srd_wp=SRD_WP, srd_act=SRD_PA, s_ao=94, s_wo=93)
    zero_stores(c, 40)
    c.extend(flat(pieces(0)))
    c.extend(flat(x_dma(1)))
    c.extend(flat(pieces(1)))
    stream.next = 2
    st(c, 'iss')
    for n in range(2, 10): c.extend(kb_entry(n))
    stream.release(0)
    c.extend(stream.take(8))
    A(f's_lshl_b32 s{S_T2K}, s{S_WAVE}, 11')
    A(f's_cmp_lt_u32 s{S_ROLE}, 6'); A(f's_cselect_b32 s{SRD_W2+2}, {D*F*2}, 0'); A(f's_mov_b32 s{SRD_W2+3}, 0x00020000')
    A(f'v_lshrrev_b32 v32, 2, v{V_LANE}'); A(f's_and_b32 s{S_T0}, s{S_WAVE}, 1'); A(f's_lshl_b32 s{S_T0}, s{S_T0}, 5')
    A(f'v_add_u32 v32, s{S_T0}, v32'); A('v_mul_u32_u24 v32, 3456, v32')
    A(f'v_and_b32 v33, 3, v{V_LANE}'); A('v_lshl_add_u32 v32, v33, 4, v32')
    A(f's_lshl_b32 s{S_T0}, s{S_ROLE}, 6'); A(f's_add_u32 s{S_T0}, s{S_T0}, {1536*2}'); A(f'v_add_u32 v{V_HD}, s{S_T0}, v32')
    c.extend(flat(wpieces(10, SCR, 'wb')))
    x_read_addrs(c)
    A(f's_mov_b32 s{S_MASK}, 0xffff0000')
    A(f's_mul_i32 s{S_W5K}, s{S_WAVE}, 5120')
    A(f'v_lshrrev_b32 v32, 5, v{V_LANE}'); A('v_lshlrev_b32 v32, 12, v32')
    A(f'v_bfe_u32 v33, v{V_LANE}, 2, 2'); A('v_lshl_add_u32 v32, v33, 7, v32')
    A(f'v_bfe_u32 v34, v{V_LANE}, 4, 1'); A('v_lshl_add_u32 v32, v34, 5, v32')
    A(f'v_and_b32 v34, 3, v{V_LANE}'); A('v_lshl_add_u32 v32, v34, 3, v32')
    A('v_lshrrev_b32 v33, 1, v33'); A('v_lshlrev_b32 v33, 6, v33')
    for T in range(2):
        A(f'v_xor_b32 v34, {64*T}, v33'); A(f'v_add_u32 v{V_AF+3*T}, v32, v34')
        A(f'v_add_u32 v{V_AF+3*T+1}, 0x10000, v{V_AF+3*T}'); A(f'v_add_u32 v{V_AF+3*T+2}, 0x20000, v{V_AF+3*T}')
    A(f'v_bfe_u32 v32, v{V_LANE}, 2, 2'); A(f'v_lshl_add_u32 v32, v{V_HH}, 3, v32'); A('v_lshlrev_b32 v32, 6, v32')
    A(f'v_bfe_u32 v33, v{V_LANE}, 4, 1'); A('v_lshl_add_u32 v32, v33, 5, v32')
    A(f'v_and_b32 v33, 3, v{V_LANE}'); A(f'v_lshl_add_u32 v{V_HA}, v33, 3, v32')
    A(f'v_add_u32 v{V_HA+1}, 0x10000, v{V_HA}'); A(f'v_add_u32 v{V_HA+2}, 0x20000, v{V_HA}')
    WDV = 192
    V_PL, V_SP, V_SA, V_CV, V_CAD, V_CV2 = 197, 198, 199, 200, 201, 202
    V_CS0, V_CS1, V_ONE, V_CSD, V_CSF = 203, 204, 244, 208, 240
    V_C2 = 252
    A(f's_lshl_b32 s{S_T0}, s{S_WAVE}, 13')
    A(f'v_add_u32 v{V_CS0}, s{S_T0}, v{V_AF}'); A(f'v_add_u32 v{V_CS1}, s{S_T0}, v{V_AF+3}')
    for k in range(4): A(f'v_mov_b32 v{V_ONE+k}, 0x3f803f80')
    alu = []
    act_lane_offset(alu)
    srd(alu, SRD_Z, S_WS, Z_OFF, Z_SIZE)
    p4_ids(alu)
    wd_task_setup(alu, WDV)
    a2 = lambda t: alu.append(I(t))
    a2(f's_lshl_b32 s{S_T0}, s{S_WAVE}, 13'); a2(f's_add_u32 s{S_T0}, s{S_T0}, {SCR}')
    a2(f's_cmp_ge_u32 s{S_WAVE}, 2'); a2('s_cselect_b64 vcc, -1, 0')
    for t in range(2):
        for j in range(2):
            a2(f'v_add_u32 v32, s{S_T0}, v{V_AF+3*t}'); a2(f'v_add_u32 v32, {512*j}, v32')
            a2(f'v_add_u32 v33, {SCR + 16384 + 4096*t + 256*j}, v{V_HA}')
            a2(f'v_cndmask_b32 v{V_C2+2*t+j}, v32, v33, vcc')
    c.extend(alu)
    def reads(n, sp, T, dst):
        base = ring.alloc[n][0]; r = []
        for j in range(2):
            if n < 10 or T < 4:
                ui, T4 = divmod(T, 4)
                M, Tt = divmod(T4, 2)
                off = base + ui * 16384 + M * 8192 + sp * 1024 + j * 512
                r.append(I(f'ds_read_b64_tr_b16 {ar(dst+2*j, 2)}, v{V_AF+3*Tt+(off>>16)} offset:{off & 0xffff}'))
            else:
                off = base + 16384 + (T - 4) * 4096 + sp * 1024 + j * 256
                r.append(I(f'ds_read_b64_tr_b16 {ar(dst+2*j, 2)}, v{V_HA+(off>>16)} offset:{off & 0xffff}'))
        return r
    afr = lambda s, T: AFB + 32 * (s % 2) + 4 * T
    st(c, 'setup')
    c.append(WaitTag(['x0', 'w0', 'zero'])); A('s_barrier')
    st(c, 'S0')
    c.append(x_read(0, 0, ar(XA(0)), tag='A0a'))
    for T in range(8):
        for ins in reads(0, 0, T, afr(0, T)):
            ins.tag = f'A0{"a" if T < 4 else "b"}'; c.append(ins)
    c.extend(zero_flag(56))
    hooks = {}
    def add(key, lst): hooks.setdefault(key, []).extend(lst)
    for n in range(10):
        for sub in range(1, 4):
            add((4 * n, sub - 1), [x_read(n, sub, ar(XA(4 * n + sub)), tag=f'A{4*n+sub}a')])
        if n + 2 < 10:
            hooks[('cb', 4 * n + 1, 0)] = (lambda nn: (lambda: stream.push_front(x_dma(nn))))(n + 2)
    XT = TT
    for sub in range(4): add((0, sub), [x_read(0, sub, vr(XT + 4 * sub))])
    xhook = lambda s: [x_read(s // 4, 0, ar(XA(s)), tag=f'A{s}a')] if s % 4 == 0 else []
    fill = []
    def cs_block(g0, gmax, addr):
        r = []
        for sp in range(4):
            for t in range(2):
                f = V_CSF + 8 * t
                for j in range(2):
                    va, off = addr(t, j)
                    r.append((g0 + 6 * sp, I(f'ds_read_b64_tr_b16 v[{f+2*j}:{f+2*j+1}], v{va} offset:{off + sp*1024}'), gmax))
            for t in range(2):
                d = V_CSD + 16 * t
                r.append((g0 + 6 * sp + 2, I(f'v_mfma_f32_32x32x16_bf16 {vr(d,16)}, {vr(V_ONE)}, {vr(V_CSF + 8*t)}, {"0" if sp == 0 else vr(d,16)}'), gmax))
        return r
    fill += cs_block(4, 27, lambda t, j: ((V_CS0, V_CS1)[t], ring.alloc[0][0] + j * 512))
    fill += [(32, [I(f'v_permlane32_swap_b32 v{V_CSD}, v{V_CSD+16}'), I(f'v_mov_b32 v{V_CV}, v{V_CSD}')], 60)]
    zd = [I(f'v_and_b32 v{V_CA}, 15, v{V_LANE}'), I(f'v_lshlrev_b32 v{V_CA}, 2, v{V_CA}'), I(f'v_mov_b32 v{V_CB}, 1')]
    srd(zd, SRD_DB, S_DBG, None, 64)
    zd.append(poll_load('zd', SRD_DB, V_CA, V_PL))
    fill += [(33, i, 50) for i in zd]
    fill += [(34, i, 95) for i in stat_partial(XT, 56, V_SP)]
    fill += cs_block(64, 91, lambda t, j: (V_C2 + 2 * t + j, 0))
    fill += [(93, [I(f'v_permlane32_swap_b32 v{V_CSD}, v{V_CSD+16}'), I(f'v_mov_b32 v{V_CV2}, v{V_CSD}')], 110)]
    fill += [(94, i, 110) for i in atoms(stat_addr(V_SA))]
    cad = [I(f's_lshl_b32 s64, s{S_J}, 11'), I(f's_add_u32 s64, s64, {Z_CS}'), I(f's_lshl_b32 s65, s{S_WAVE}, 8'), I('s_add_u32 s64, s64, s65'),
           [I(f's_cmp_lt_u32 s{S_I}, 10'), I(f's_cselect_b32 s64, s64, {OOB:#x}')],
           I(f'v_lshlrev_b32 v{V_CAD}, 2, v{V_LANE}'), I(f'v_add_u32 v{V_CAD}, s64, v{V_CAD}')]
    fill += [(95, i, 112) for i in cad]
    fill += [(96, i, 125) for i in wp_task_dma(WDV, SCR)]
    at = [I(f'buffer_atomic_add_f32 v{V_SP}, v{V_SA}, s[{SRD_Z}:{SRD_Z+3}], 0 offen', tag='sat'),
          I(f'buffer_atomic_add_f32 v{V_CV}, v{V_CAD}, s[{SRD_Z}:{SRD_Z+3}], 0 offen', tag='sat'),
          [I(f's_cmp_lt_u32 s{S_WAVE}, 3'), I(f's_cselect_b32 s64, 1024, {OOB:#x}')], I(f'v_add_u32 v{V_CAD}, s64, v{V_CAD}'),
          I(f'buffer_atomic_add_f32 v{V_CV2}, v{V_CAD}, s[{SRD_Z}:{SRD_Z+3}], 0 offen', tag='sat')]
    fill += [(112, i, 127) for i in at]
    wpre, wrd, wst = wp_task_finish(SCR, 208, False, f's_cmp_lt_u32 s{S_TK}, 54')
    fill += [(128, [wpre[0], wpre[1]], 150), (128, [wpre[2], wpre[3]], 150)] + [(128, i, 155) for i in wpre[4:]]
    cadd = [I(f's_lshl_b32 s64, s{S_I}, 7'), I(f's_lshr_b32 s65, 0x0aff, s{S_J}'), I('s_and_b32 s65, s65, 1'),
            [I('s_cmp_eq_u32 s65, 1'), I(f's_cselect_b32 s64, s64, {OOB:#x}')],
            I(f's_lshl_b32 s65, s{S_J}, 7'), I(f's_add_u32 s65, s65, {Z_CNT_R}'),
            [I(f's_cmp_lt_u32 s{S_I}, 10'), I(f's_cselect_b32 s65, s65, {OOB:#x}')],
            [I(f's_cmp_eq_u32 s{S_WAVE}, 0'), I(f's_cselect_b32 s64, s64, {OOB:#x}'), I(f's_cselect_b32 s65, s65, {OOB:#x}')]]
    cadd += two_lane(V_SA, 's64', 's65', other=f'{OOB:#x}') + cnt_add(V_SA, V_SP, 'c0')
    fill += [(160, i, 180) for i in cadd]
    fill += [(164, wrd, 184)]
    fill += [(186, i, 200) for i in wst]
    pl = [I(f's_lshl_b32 s64, s{S_I}, 7'), I(f's_lshl_b32 s65, s{S_J}, 7'), I(f's_add_u32 s65, s65, {Z_CNT_R}')] + two_lane(V_CA, 's64', 's65') + [I(f'v_mov_b32 v{V_CB}, 10')]
    pl.append(poll_load('f0', SRD_Z, V_CA, V_PL))
    fill += [(212, i, 222) for i in pl]
    VS, VC = 198, 200
    ld = [I(f's_lshl_b32 s64, s{S_I}, 2'), I(f's_add_u32 s64, s64, s{S_WAVE}'), I('s_lshl_b32 s64, s64, 8'), I(f's_add_u32 s64, s64, {Z_STAT}'),
          I(f'v_lshlrev_b32 v{V_CA}, 3, v{V_T}'),
          I(f'buffer_load_dwordx2 v[{VS}:{VS+1}], v{V_CA}, s[{SRD_Z}:{SRD_Z+3}], s64 offen sc1'),
          I(f's_lshl_b32 s64, s{S_J}, 11'), I(f's_add_u32 s64, s64, {Z_CS}'), I(f'v_lshlrev_b32 v{V_CA}, 2, v{V_LANE}')]
    ld += [I(f'buffer_load_dword v{(VC+p) if p < 4 else (61+p-4)}, v{V_CA}, s[{SRD_Z}:{SRD_Z+3}], s64 offen offset:{p*256} sc1') for p in range(7)]
    fill += [(256, i, 272) for i in ld]
    wdc = cnt_addr(197, [I(f's_mov_b32 s64, {Z_WD}'), [I(f's_cmp_lt_u32 s{S_TK}, 54'), I(f's_cselect_b32 s64, s64, {OOB:#x}')]])
    fill += [(273, i, 290) for i in atoms(wdc) + cnt_add(197, 205, 'cw')]
    CSA = 40
    fin = ln_final(VS, BMU, 56)
    for p in range(4): fin += cs_frag(VC + p, CSA + 4 * p, 56) + [I(f'v_mov_b32 v{CSA+4*p+3}, 0')]
    fin.append(I(f'v_mul_f32 v{V_RS}, v{V_RS}, v{V_RS}'))
    fill += [(300, i, 319) for i in fin]
    def sync_pre(n):
        if n == 2: return poll_check('zd', SRD_DB, V_CA, V_PL, V_CB)
        if n == 7: return poll_check('f0', SRD_Z, V_CA, V_PL, V_CB)
        return []
    tagsA = lambda n: {4: ['sat'], 7: ['wps']}.get(n, [])
    afrB = lambda s, T: AFB + 24 * (s % 2) + 4 * T
    nxt = []
    for T in range(6):
        for ins in reads(10, 0, T, afrB(0, T)):
            ins.tag = f'B0{"a" if T < 3 else "b"}'; nxt.append(ins)
    main = gemm(stream, st, 0, 10, 8, lambda T: vr(ACC(T // 4, T % 4), 16), afr, lambda s: ar(XA(s)), reads, nxt, 'A',
                hooks=hooks, sync_pre=sync_pre, sync_tags=tagsA, xhook=xhook)
    c.extend(weave(main, fill)); st(c, 'PA')
    def correction(regs, pair):
        return [I(f'v_mfma_f32_32x32x16_bf16 {rg}, {vr(pair)}, {vr(BMU + 4*t)}, {rg}') for t, rg in enumerate(regs)]
    def glu(g, up, ks, tag):
        r = []
        for i in range(0, 16, 2):
            r += [I(f'v_max_f32 v{g+i}, 0, v{g+i}'), I(f'v_max_f32 v{g+i+1}, 0, v{g+i+1}'),
                  I(f'v_mul_f32 v{up+i}, v{V_RS}, v{up+i}'), I(f'v_mul_f32 v{up+i+1}, v{V_RS}, v{up+i+1}'),
                  I(f'v_mul_f32 v{g+i}, v{g+i}, v{up+i}'), I(f'v_mul_f32 v{g+i+1}, v{g+i+1}, v{up+i+1}'),
                  I(f'v_cvt_pk_bf16_f32 v{g+i//2}, v{g+i}, v{g+i+1}')]
        r += ks
        for ch in range(2):
            r.append(I(f'buffer_store_dwordx4 {vr(g+4*ch)}, v{V_ACTL}, s[{SRD_ACT}:{SRD_ACT+3}], s{S_T0} offen offset:{ch*512} sc1', tag=tag))
        return r
    def epilogue(u, tag):
        r = []
        for T in range(2):
            if u < 2: ks = [I(f's_lshl_b32 s{S_T0}, s{S_ROLE}, 12'), I(f's_add_u32 s{S_T0}, s{S_T0}, {(2*u+T)*1024}')]
            else: ks = [I(f's_lshl_b32 s{S_T0}, s{S_ROLE}, 11'), I(f's_add_u32 s{S_T0}, s{S_T0}, {(32+T)*1024}')]
            r += glu(ACC(u, T), ACC(u, 2 + T), ks, tag)
        return r
    fillB = []
    for p in range(4):
        u, M = divmod(p, 2)
        fillB += [(1 + 2 * p, i, 24) for i in correction([vr(ACC(u, 2*M), 16), vr(ACC(u, 2*M+1), 16)], CSA + 4 * p)]
    fillB += [(10, i, 100) for i in epilogue(0, 'h01') + epilogue(1, 'h01')]
    pa = [I(f'v_lshlrev_b32 v{V_L16}, 4, v{V_LANE}'), I(f'v_add_u32 v9, 0x10000, v{V_L16}'), I(f'v_add_u32 v10, 0x20000, v{V_L16}'),
          I(f'v_add_u32 v{V_B1}, {NKS*1024}, v{V_L16}'),
          I(f's_mul_i32 s64, s{S_PC}, {NKS*5120}'), I(f's_add_u32 s64, s64, {WP_OFF}')]
    srd(pa, SRD_WP, S_WS, 's64', NKS * 5120)
    pa += [I(f's_lshl_b32 s64, s{S_PT}, 2'), I(f's_add_u32 s64, s64, s{S_WAVE}'), I(f's_mul_i32 s64, s64, {2*NKS*1024}')]
    srd(pa, SRD_PA, S_WS, 's64', 2 * NKS * 1024)
    pa += [I(f's_and_b32 s64, s{S_PC}, 3'), I('s_lshl_b32 s64, s64, 1'), I(f's_and_b32 s65, s{S_PT}, 3'), I(f's_add_u32 s{S_ROT8}, s64, s65')]
    fillB += [(106, i, 126) for i in atoms(pa)]
    pw = [I(f'v_mov_b32 v{V_CA}, {Z_WD}'), I(f'v_mov_b32 v{V_CB}, 108'), poll_load('wd', SRD_Z, V_CA, 40)]
    fillB += [(101, i, 105) for i in pw]
    hc = cnt_addr(41, [I(f's_lshl_b32 s64, s{S_I}, 7'), I('s_add_u32 s64, s64, 4')])
    fillB += [(130, i, 140) for i in atoms(hc)] + [(142, i, 145) for i in cnt_add(41, 42, 'ch')]
    ph = [I(f's_lshl_b32 s64, s{S_PT}, 7'), I('s_add_u32 s64, s64, 4'), I(f'v_mov_b32 v{V_CA}, s64'), I(f'v_mov_b32 v{V_CB}, 8'), poll_load('h01', SRD_Z, V_CA, 40)]
    fillB += [(184, i, 190) for i in ph]
    CSB = 44
    fb = []
    for p in range(3): fb += cs_frag(61 + p, CSB + 4 * p, 56) + [I(f'v_mov_b32 v{CSB+4*p+3}, 0')]
    fillB += [(150, i, 182) for i in fb]
    def syncB_pre(n):
        if n == 15: return poll_check('wd', SRD_Z, V_CA, 40, V_CB)
        if n == 18: return poll_check('h01', SRD_Z, V_CA, 40, V_CB)
        return []
    def syncB_post(n):
        if n == 15:
            stream.limit = stream.n; stream.release(16)
        return []
    accB = lambda T: vr(ACC(2, T), 16) if T < 4 else ar(A_HU + 16 * (T - 4), 16)
    nxtp = p4.areads(0, V_WIN)
    mainB = gemm(stream, st, 10, 10, 6, accB, afrB, lambda s: ar(XA(s)), reads, nxtp, 'B',
                 sync_pre=syncB_pre, sync_post=syncB_post, sync_tags=lambda n: ['h01'] if n == 15 else [], gaps=[0, 1, 2])
    nb0 = min(NB, 8)
    bl = []
    for s in range(nb0): bl += p4.bload(s)
    p4.nb_issued = nb0
    fillB += [(216, i, 239) for i in bl]
    c.extend(weave(mainB, sorted(fillB, key=lambda f: f[0]))); st(c, 'PB')
    fe = correction([vr(ACC(2, 0), 16), vr(ACC(2, 1), 16)], CSB) + correction([vr(ACC(2, 2), 16), vr(ACC(2, 3), 16)], CSB + 4)
    fe += correction([ar(A_HU, 16), ar(A_HU + 16, 16)], CSB + 8)
    fillP = [(0, i, 6) for i in fe]
    ee = epilogue(2, 'h2')
    hu = [I(f'v_accvgpr_read_b32 v{224+k}, a{A_HU+k}') for k in range(32)]
    hk = [I(f's_add_u32 s{S_T0}, s{S_ROLE}, 48'), I(f's_lshl_b32 s{S_T0}, s{S_T0}, 10'),
          [I(f's_cmp_lt_u32 s{S_ROLE}, 6'), I(f's_cselect_b32 s{SRD_ACT+2}, s{SRD_ACT+2}, 0')]]
    hu += glu(224, 240, flat([[x] if not isinstance(x, list) else x for x in hk]), 'h2')
    fillP += [(8, i, 110) for i in atoms(ee + hu)]
    h2c = cnt_addr(41, [I(f's_lshl_b32 s64, s{S_I}, 7'), I('s_add_u32 s64, s64, 8')])
    fillP += [(140, i, 150) for i in atoms(h2c)] + [(151, i, 156) for i in cnt_add(41, 42, 'ch2')]
    if NM:
        p2 = [I(f's_lshl_b32 s64, s{S_PT}, 7'), I('s_add_u32 s64, s64, 8'), I(f'v_mov_b32 v{V_CA}, s64'), I(f'v_mov_b32 v{V_CB}, 8'), poll_load('h2', SRD_Z, V_CA, 40)]
        fillP += [(215, i, 225) for i in p2]
    CHK = 6
    spre = lambda n: poll_check('h2', SRD_Z, V_CA, 40, V_CB) if (NM and n == CHK) else []
    gate = lambda k, s: k < 32 or s >= 4 * CHK + 3
    mainP = p4.loop(st, V_WIN, NB, gate_b=gate, sync_pre=spre, sync_tags=lambda n: ['h2'] if n == 3 else [], stamp_at=(7, 19))
    c.extend(weave(mainP, sorted(fillP, key=lambda f: f[0]))); st(c, 'P4')
    assert stream.next == stream.n and not stream.queue
    A(f's_lshl_b32 s64, s{S_PT}, 3'); A(f's_add_u32 s64, s64, s{S_PC}'); A(f's_mul_i32 s64, s64, {PART_ONE}')
    A(f's_mul_i32 s65, s{S_WAVE}, 10240'); A('s_add_u32 s64, s64, s65'); A(f's_add_u32 s64, s64, {PART_OFF}')
    srd(c, SRD_T2, S_WS, 's64', 10240)
    for k in range(10):
        if k % 4 == 0: A(f's_mov_b32 s65, {k*1024}')
        A(f'buffer_store_dwordx4 {ar(4*k)}, v{V_L16}, s[{SRD_T2}:{SRD_T2+3}], s65 offen offset:{(k%4)*1024} sc1', tag='part')
    c.extend(flat([[x] if not isinstance(x, list) else x for x in cnt_addr(41, [I(f's_lshl_b32 s64, s{S_PT}, 7'), I(f's_lshl_b32 s65, s{S_PC}, 2'),
                                                                              I('s_add_u32 s64, s64, s65'), I('s_add_u32 s64, s64, 16')])]))
    c.append(WaitTag('part')); A('s_barrier')
    c.extend(cnt_add(41, 42, 'cp'))
```

```python
from common import *

QSLOT = [20 * K * q for q in range(8)]

class P4:
    def __init__(self, stream, st0, stages, BF, AF, ACC, v_l16, v_b0, v_b1, srd_wp, srd_act, s_ao, s_wo, modb=' sc1'):
        self.stream, self.st0, self.stages = stream, st0, stages
        self.BF, self.AF, self.ACC = BF, AF, ACC
        self.v_l16, self.v_b0, self.v_b1 = v_l16, v_b0, v_b1
        self.srd_wp, self.srd_act, self.s_ao, self.s_wo = srd_wp, srd_act, s_ao, s_wo
        self.ks = [(n, k) for n, (f, cnt) in enumerate(stages) for k in range(cnt)]
        self.nk = len(self.ks)
        self.modb = modb
        self.ao_done = set()
    def first(self, n, dst, mul):
        f = self.stages[n][0]
        if isinstance(f, int): return [I(f's_mov_b32 s{dst}, {f * mul}')]
        return [I(f's_add_u32 s{dst}, s{S_ROT8}, {f[1]}'), I(f's_and_b32 s{dst}, s{dst}, 7'), I(f's_mul_i32 s{dst}, s{dst}, {4 * mul}')]
    def pieces(self, n):
        base = self.stream.ring.alloc[self.st0 + n][0]
        r = []
        for p in range(5):
            g = []
            if p == 0:
                g += self.first(n, self.s_wo, 5120) + [I(f's_add_u32 s{self.s_wo}, s{self.s_wo}, s{S_W5K}')]
                if self.stages[n][1] < 4:
                    g += [I(f's_cmp_lt_u32 s{S_WAVE}, {self.stages[n][1]}'), I(f's_cselect_b32 s{self.s_wo}, s{self.s_wo}, {OOB:#x}')]
            if p == 4: g += [I(f's_add_u32 s{self.s_wo}, s{self.s_wo}, 4096')]
            g.append(dma(f'buffer_load_dwordx4 v{self.v_l16}, s[{self.srd_wp}:{self.srd_wp+3}], s{self.s_wo} offen offset:{(p % 4)*1024} sc1 lds',
                         (S_W5K, base + (4096 if p == 4 else 0)), tag=f'w{self.st0+n}'))
            r.append(g)
        return r
    def bload(self, s):
        n, k = self.ks[s]
        r = []
        so = self.s_ao + (n % 2)
        if n not in self.ao_done:
            self.ao_done.add(n); r += self.first(n, so, 1024)
        for tg, v in enumerate((self.v_b0, self.v_b1)):
            r.append(I(f'buffer_load_dwordx4 {self.BF(s, tg)}, v{v}, s[{self.srd_act}:{self.srd_act+3}], s{so} offen offset:{k*1024}{self.modb}', tag=f'pb{s}'))
        return r
    def areads(self, s, v_win):
        n, k = self.ks[s]
        base = self.stream.ring.alloc[self.st0 + n][0]
        r = []
        for ct in range(5):
            off = base + k * 5120 + ct * 1024
            r.append(I(f'ds_read_b128 {self.AF(s, ct)}, v{v_win[off >> 16]} offset:{off & 0xffff}', tag=f'pa{s}'))
        return r
    def loop(self, st, v_win, NB, gate_b=None, sync_pre=None, sync_post=None, sync_tags=None, hooks=None, stamp_at=()):
        main = []
        hooks = hooks or {}
        pend = list(range(self.nb_issued, self.nk))
        for s in range(self.nk):
            n, k = self.ks[s]
            lastk = s + 1 < self.nk and self.ks[s + 1][0] != n
            nxt = self.areads(s + 1, v_win) if s + 1 < self.nk else []
            for j in range(10):
                ct, tg = j // 2, j % 2
                g = []
                if j == 0 and not lastk: g.append(WaitLg(f'pa{s}'))
                if j == 0 and lastk:
                    if sync_pre: g += sync_pre(n)
                    g.append(WaitTag([f'w{self.st0+n+1}'] + (sync_tags(n) if sync_tags else []), lgkm0=True))
                if j == 0: g.append(WaitTag(f'pb{s}'))
                cc = '0' if s == 0 else self.ACC(ct, tg)
                g.append(I(f'v_mfma_f32_16x16x32_bf16 {self.ACC(ct, tg)}, {self.AF(s, ct)}, {self.BF(s, tg)}, {cc}'))
                if j == 0 and lastk:
                    g.append(I('s_barrier'))
                    self.stream.release(self.st0 + n + 1)
                    if sync_post: g += sync_post(n)
                g += hooks.get((s, j), [])
                if j % 2 == 1 and nxt: g.append(nxt[j // 2])
                post = []
                if j in (2, 6): post += self.stream.take(1)
                if j == 9:
                    cnt = 0
                    while pend and pend[0] - NB <= s and cnt < 2 and (gate_b is None or gate_b(pend[0], s)):
                        post += self.bload(pend.pop(0)); cnt += 1
                main.append((g, post))
            if s in stamp_at: st(main[-1][0], f'k{s}')
        assert not pend
        return main

S_ROT8 = 88
```

```python
import sys, json
from common import *
import common
import importlib
from layout4 import MLPV
mlp_role = importlib.import_module({'old': 'mlp', '5': 'mlp5', '6': 'mlp6', '7': 'mlp7'}[MLPV]).mlp_role
from att import att_role
from build_util import assemble_check
NAME = 'parallel_sum__linear_kernel_hedgehog__glu_gated_reglu__prompt'
KN = NAME + '_kernel'
HEADER = open('cdna_kernels/' + NAME + '.s.ref').read().split('; Override launch geometry')[0]

def gen(stamps):
    common._lab[0] = 0
    c = []
    st = Stamps(stamps, vreg=V_ST, sreg=100)
    A = lambda t, **k: c.append(I(t, **k))
    A(f'{KN}:')
    A('s_cmp_ge_u32 s2, 256')
    A('s_cbranch_scc1 L_end')
    if stamps: A(f'v_mov_b32 v{V_ST}, 0')
    st.real(c); st(c, 'start')
    prologue(c, st, [('L_pc', OPT.get('blk_m', 3)), ('L_att', OPT.get('blk_a', 3))])
    st(c, 'x0')
    if stamps: st._commit(c)
    A(f's_and_b32 s{S_T0}, s{S_J}, 2')
    A(f's_cmp_eq_u32 s{S_T0}, 0')
    A('s_cbranch_scc1 L_att')
    cm = []; stm = st.copy()
    mlp_role(cm, stm)
    stm(cm, 'end'); stm.real(cm); stm.dump(cm, OPT.get('sel_m'))
    cm.append(I('s_endpgm'))
    ca = [I('L_att:')]; sta = st.copy()
    att_role(ca, sta)
    sta(ca, 'end'); sta.real(ca); sta.dump(ca, OPT.get('sel_a'))
    ca.append(I('L_end:')); ca.append(I('s_endpgm'))
    return c, cm, ca, stm.names, sta.names

def build(path, stamps=False, check=True):
    rep = []
    c, cm, ca, nm, na = gen(stamps)
    full_m = finish(c + cm, rep)
    full_a = finish(c + ca, rep)
    last = c[-1]
    im = full_m.index(last); ia = full_a.index(last)
    assert [x.text for x in full_m[:im+1]] == [x.text for x in full_a[:ia+1]]
    code = full_m + full_a[ia+1:]
    if stamps: json.dump(dict(mlp=nm, att=na), open(path[:-2] + '.json', 'w'))
    txt = HEADER
    txt += '; @launch grid=(256,1,1) block=(256,1,1) lds=163840\n'
    txt += '.amdgcn_target "amdgcn-amd-amdhsa--gfx950"\n.text\n'
    txt += f'.globl {KN}\n.p2align 8\n.type {KN},@function\n' + render(code) + 'L_code_end:\n'
    txt += '.section .rodata,"a"\n.p2align 6\n' + kd(KN, 512, 256, 102)
    open(path, 'w').write(txt)
    from collections import Counter
    print(path, 'est', est_cycles(full_m), est_cycles(full_a), 'instrs', len(full_m), len(full_a), 'bytes', len(txt), Counter(r.split(' before')[0] for r in rep))
    if check: assemble_check(path, KN, lists=False)
    return full_m, full_a

if __name__ == '__main__':
    build('v4.s', stamps=False)
    OPT['se'] = int(sys.argv[1]) if len(sys.argv) > 1 else 2
    OPT['spin'] = 1
    build('v4_st.s', stamps=True)
```

```python
from common import *
from p4 import *
from mlp import wp_task_dma, wp_task_finish

PHI_PITCH, V_PITCH = 336, 208
LDS_V = 128 * PHI_PITCH
L_KVT = 68 * K
L_PF, L_WP = 128 * K, 136 * K
A_FR, A_XF, A_PF = 0, 64, 96
ACC = lambda T: 128 + 16 * T
S_G = S_ROLE
SRD_KVS, SRD_PH, SRD_DB = 24, 92, 96
S_X2 = S_X
V_C = V_MU
BMU, CSA = 32, 40

def softmax_head(Dr, E, P):
    r = []
    tm = Dr + 10
    M, N, U, SP, SN = tm, tm + 1, tm + 2, tm + 3, tm + 4
    x = [Dr + i for i in range(10)]
    r.append(I(f'v_max3_f32 v{M}, v{x[0]}, v{x[1]}, v{x[2]}'))
    r.append(I(f'v_max3_f32 v{N}, -v{x[0]}, -v{x[1]}, -v{x[2]}'))
    for k in (3, 5, 7):
        r.append(I(f'v_max3_f32 v{M}, v{M}, v{x[k]}, v{x[k+1]}'))
        r.append(I(f'v_max3_f32 v{N}, v{N}, -v{x[k]}, -v{x[k+1]}'))
    r.append(I(f'v_max_f32 v{M}, v{M}, v{x[9]}'))
    r.append(I(f'v_max_f32_e64 v{N}, v{N}, -v{x[9]}'))
    r.append(I(f'v_permlane32_swap_b32 v{M}, v{N}'))
    r.append(I(f'v_max_f32 v{M}, v{M}, v{N}'))
    r.append(I(f'v_mul_f32 v{M}, v{V_C}, v{M}'))
    r.append(I(f'v_mov_b32 v{U}, v{M}'))
    r.append(I(f'v_permlane32_swap_b32 v{M}, v{U}'))
    for i in range(10):
        r.append(I(f'v_fma_f32 v{E+i}, v{x[i]}, v{V_C}, -v{M}'))
        r.append(I(f'v_fma_f32 v{x[i]}, -v{x[i]}, v{V_C}, -v{U}'))
    for i in range(10):
        r.append(I(f'v_exp_f32 v{E+i}, v{E+i}'))
        r.append(I(f'v_exp_f32 v{x[i]}, v{x[i]}'))
    r.append(I(f'v_add_f32 v{SP}, v{E}, v{E+1}')); r.append(I(f'v_add_f32 v{SN}, v{x[0]}, v{x[1]}'))
    for i in range(2, 10):
        r.append(I(f'v_add_f32 v{SP}, v{SP}, v{E+i}')); r.append(I(f'v_add_f32 v{SN}, v{SN}, v{x[i]}'))
    r.append(I(f'v_permlane32_swap_b32 v{SP}, v{SN}'))
    r.append(I(f'v_add_f32 v{SP}, v{SP}, v{SN}'))
    r.append(I(f'v_rcp_f32 v{SP}, v{SP}'))
    r.append(I(f'v_mov_b32 v{SN}, v{SP}'))
    r.append(I(f'v_permlane32_swap_b32 v{SP}, v{SN}'))
    for i in range(10):
        r.append(I(f'v_mul_f32 v{E+i}, v{E+i}, v{SP}')); r.append(I(f'v_mul_f32 v{x[i]}, v{x[i]}, v{SN}'))
    for p in range(5): r.append(I(f'v_cvt_pk_bf16_f32 v{P+p}, v{E+2*p}, v{E+2*p+1}'))
    for p in range(5): r.append(I(f'v_cvt_pk_bf16_f32 v{P+5+p}, v{x[2*p]}, v{x[2*p+1]}'))
    return r

def feature_maps(acc0, dest, sink, between):
    KB, DV, E = 64, (84, 100), 116
    def phi(h):
        r = []
        for dl in range(2):
            d = vr(DV[h % 2], 16)
            r.append(I(f'v_mfma_f32_32x32x16_bf16 {d}, {ar(A_PF + 4*(2*h+dl))}, {vr(KB + 4*(h+dl))}, {"0" if dl == 0 else d}'))
        return r
    r = [I(f'v_cvt_pk_bf16_f32 v{KB+k}, v{acc0+2*k}, v{acc0+2*k+1}') for k in range(20)]
    r += phi(0)
    r += between
    for h in range(4):
        sm = softmax_head(DV[h % 2], E, dest(h))
        if h + 1 < 4: sm = sm[:12] + phi(h + 1) + sm[12:]
        r += sm
        r += sink(h)
    return r

def wo_task_setup(vb, t0):
    c = []
    A = lambda t: c.append(I(t))
    A(f's_lshl_b32 s64, s{S_I}, 3'); A(f's_add_u32 s64, s64, s{S_G}'); A('s_lshl_b32 s64, s64, 2'); A(f's_add_u32 s64, s64, s{S_WAVE}')
    A('s_lshr_b32 s89, s64, 3'); A('s_and_b32 s65, s64, 7')
    A('s_mul_i32 s66, s65, 160')
    srd(c, SRD_T, S_WO, 's66', None)
    A('s_cmp_lt_u32 s89, 20'); A(f's_cselect_b32 s{SRD_T+2}, {639*1280+160}, 0')
    A('s_lshl_b32 s67, s89, 2')
    for p in range(5):
        a, b, d, e = t0, t0 + 1, t0 + 2, t0 + 3
        A(f'v_add_u32 v{a}, {64*p}, v{V_LANE}')
        A(f'v_mul_u32_u24 v{b}, 6554, v{a}'); A(f'v_lshrrev_b32 v{b}, 16, v{b}')
        A(f'v_mul_u32_u24 v{d}, 10, v{b}'); A(f'v_sub_u32 v{a}, v{a}, v{d}')
        A(f'v_lshrrev_b32 v{d}, 3, v{b}'); A(f'v_add_u32 v{d}, s67, v{d}')
        A(f'v_and_b32 v{b}, 7, v{b}')
        A(f'v_mul_u32_u24 v{e}, 6554, v{d}'); A(f'v_lshrrev_b32 v{e}, 16, v{e}')
        A(f'v_mul_u32_u24 v{t0+4}, 10, v{e}'); A(f'v_sub_u32 v{d}, v{d}, v{t0+4}')
        A(f'v_mul_u32_u24 v{e}, 80, v{e}')
        A(f'v_lshrrev_b32 v{t0+4}, 1, v{d}'); A(f'v_mul_u32_u24 v{t0+4}, 20, v{t0+4}')
        A(f'v_and_b32 v{t0+5}, 1, v{d}'); A(f'v_lshl_add_u32 v{t0+4}, v{t0+5}, 2, v{t0+4}')
        A(f'v_lshrrev_b32 v{t0+5}, 2, v{b}'); A(f'v_lshl_add_u32 v{t0+4}, v{t0+5}, 3, v{t0+4}')
        A(f'v_mul_u32_u24 v{t0+5}, 20, v{t0+5}'); A(f'v_subrev_u32 v{t0+6}, 8, v{d}'); A(f'v_mul_u32_u24 v{t0+6}, 40, v{t0+6}')
        A(f'v_add_u32 v{t0+5}, v{t0+5}, v{t0+6}'); A(f'v_add_u32 v{t0+5}, 16, v{t0+5}')
        c.append([I(f'v_cmp_gt_u32 vcc, 8, v{d}'), I(f'v_and_b32 v{b}, 3, v{b}'), I(f'v_cndmask_b32 v{t0+4}, v{t0+5}, v{t0+4}, vcc')])
        A(f'v_add_u32 v{e}, v{e}, v{b}'); A(f'v_add_u32 v{e}, v{e}, v{t0+4}')
        A(f'v_mul_u32_u24 v{e}, 1280, v{e}'); A(f'v_lshl_add_u32 v{e}, v{a}, 4, v{e}')
        A(f'v_subrev_u32 v{vb+p}, {(p % 4)*1024}, v{e}')
    A(f's_mul_i32 s65, s65, {NKS}'); A('s_add_u32 s65, s65, s89'); A('s_add_u32 s65, s65, 54'); A('s_mul_i32 s65, s65, 5120'); A(f's_add_u32 s65, s65, {WP_OFF}')
    A(f's_add_u32 s90, s{S_WS}, s65'); A(f's_addc_u32 s91, s{S_WS+1}, 0')
    return c

def att_role(c0, st):
    c = c0
    A = lambda t, **k: c.append(I(t, **k))
    NM, NB = OPT['nm'], OPT['nb']
    V_KVD, V_QD = 16, 21
    V_KVA, V_QA = 24, 26
    V_CA, V_CB = 30, 31
    V_W0, V_W1, V_W2, V_W3 = 8, 9, 10, 11
    S_W3 = 74
    srd(c, SRD_W, S_WQKV, None, D * 3 * D * 2)
    A(f's_mul_i32 s{S_T0}, s{S_G}, 160'); A(f's_mul_i32 s{S_T1}, s{S_WAVE}, {16*3840}'); A(f's_add_u32 s{S_T0}, s{S_T0}, s{S_T1}')
    A(f's_mul_i32 s{S_W5K}, s{S_WAVE}, 5120'); A(f's_mul_i32 s{S_W3}, s{S_WAVE}, 3072')
    for p in range(5):
        A(f'v_add_u32 v32, {64*p}, v{V_LANE}')
        A('v_mul_u32_u24 v33, 3277, v32'); A('v_lshrrev_b32 v33, 16, v33')
        A('v_mul_u32_u24 v34, 20, v33'); A('v_sub_u32 v34, v32, v34')
        A('v_cmp_gt_u32 vcc, 10, v34')
        A('v_lshlrev_b32 v34, 4, v34')
        A('v_mul_u32_u24 v33, 3840, v33')
        A(f'v_add_u32 v35, {1280}, v34'); A(f'v_add_u32 v36, {2560-160}, v34')
        A('v_cndmask_b32 v34, v36, v35, vcc')
        A('v_add_u32 v33, v33, v34'); A(f'v_add_u32 v33, s{S_T0}, v33')
        A(f'v_subrev_u32 v{V_KVD+p}, {(p % 4)*1024}, v33')
    for p in range(3):
        A(f'v_add_u32 v32, {64*p}, v{V_LANE}')
        A('v_mul_u32_u24 v33, 5462, v32'); A('v_lshrrev_b32 v33, 16, v33')
        A('v_mul_u32_u24 v34, 12, v33'); A('v_sub_u32 v34, v32, v34')
        A('v_mul_u32_u24 v33, 3840, v33'); A('v_lshl_add_u32 v33, v34, 4, v33'); A(f'v_add_u32 v33, s{S_T0}, v33')
        A(f'v_subrev_u32 v{V_QD+p}, {p*1024}, v33')
    TOUCH = OPT.get('touch', 0)
    V_TX, V_TW, V_TD, SRD_TX = 4, 5, 0, 28
    def touch(n):
        return [I(f's_mul_i32 s72, s{S_KB+n}, 1920'),
                I(f'buffer_load_dword v{V_TD}, v{V_TW}, s[{SRD_W}:{SRD_W+3}], s72 offen', tag='tch'),
                I(f'buffer_load_dword v{V_TD}, v{V_TX}, s[{SRD_TX}:{SRD_TX+3}], s{S_KB+n} offen', tag='tch')]
    if TOUCH:
        A(f's_and_b32 s64, s{S_I}, 7'); A('s_lshl_b32 s64, s64, 3'); A(f's_lshl_b32 s65, s{S_WAVE}, 1'); A('s_add_u32 s64, s64, s65')
        A(f'v_lshrrev_b32 v34, 4, v{V_LANE}'); A('v_and_b32 v35, 1, v34'); A('v_add_u32 v35, s64, v35'); A('v_mul_u32_u24 v35, 3840, v35')
        A(f'v_and_b32 v36, 3, v{V_LANE}'); A('v_lshl_add_u32 v35, v36, 6, v35')
        A(f'v_bfe_u32 v36, v{V_LANE}, 2, 2'); A('v_mul_u32_u24 v37, 1280, v36'); A('v_add_u32 v35, v35, v37')
        A(f's_mul_i32 s64, s{S_G}, 160'); A('s_and_b32 s64, s64, 0xffffff80'); A('v_add_u32 v35, s64, v35')
        A('v_cmp_gt_u32 vcc, 3, v36'); A(f'v_mov_b32 v37, {OOB:#x}'); A('v_cndmask_b32 v35, v37, v35, vcc')
        A(f'v_cmp_gt_u32 vcc, 32, v{V_LANE}'); A(f'v_cndmask_b32 v{V_TW}, v37, v35, vcc')
        c.extend(touch_x_setup(V_TX, 34))
        A(f's_mul_i32 s64, s{S_I}, {128*1280}')
        srd(c, SRD_TX, S_X, 's64', 128 * 1280)
        for n in range(2, 10): c.extend(kb_entry(n))
        for n in range(TOUCH): c.extend(touch(n))
    ring = Ring()
    for n in range(10): ring.add_at(SLOT_A[n % 3], 32 * K)
    p4stages = []
    k0 = 32 + NM
    while k0 < 54:
        p4stages.append((k0, min(4, 54 - k0))); k0 += 4
    NLATE = len(p4stages); KLATE = 54 - 32 - NM
    p4stages += [(54 + 4 * k, 4) for k in range(5)]
    qorder = (4, 5, 6, 7, 0, 1, 2, 3)
    for k in range(len(p4stages)): ring.add_at(QSLOT[qorder[k % 8]], 20 * K, not_before=9)
    def pieces(n):
        if n >= 10: return p4.pieces(n - 10)
        base = ring.alloc[n][0]; r = []
        for p in range(5):
            g = [I(f's_mul_i32 s{S_SOFF2}, s{S_KB+n}, 1920')] if p == 0 else []
            g.append(dma(f'buffer_load_dwordx4 v{V_KVD+p}, s[{SRD_W}:{SRD_W+3}], s{S_SOFF2} offen offset:{(p%4)*1024} lds', (S_W5K, base + (4096 if p == 4 else 0)), tag=f'w{n}'))
            r.append(g)
        for p in range(3):
            r.append([dma(f'buffer_load_dwordx4 v{V_QD+p}, s[{SRD_W}:{SRD_W+3}], s{S_SOFF2} offen offset:{p*1024} lds', (S_W3, base + 20480), tag=f'w{n}')])
        return r
    stream = Stream(ring, pieces)
    stream.limit = 10
    V_L16, V_B1 = 12, 15
    V_WIN = (12, 13, 14)
    SRD_WP, SRD_PA = SRD_X, SRD_W2
    PACC = lambda ct, tg: 128 + 8 * ct + 4 * tg
    p4 = P4(stream, 10, p4stages,
            BF=lambda s, tg: ar(8 * (s % NB) + 4 * tg), AF=lambda s, ct: ar(96 + 20 * (s % 2) + 4 * ct),
            ACC=lambda ct, tg: vr(PACC(ct, tg)), v_l16=V_L16, v_b0=V_L16, v_b1=V_B1, srd_wp=SRD_WP, srd_act=SRD_PA, s_ao=70, s_wo=72)
    p0 = pieces(0)
    c.extend(flat(p0[:4]))
    st(c, 'iss')
    zero_stores(c, 40)
    if not TOUCH:
        for n in range(2, 10): c.extend(kb_entry(n))
    x_read_addrs(c)
    A(f's_mov_b32 s{S_MASK}, 0xffff0000')
    A(f'v_bfe_u32 v32, v{V_LANE}, 2, 2'); A(f'v_lshl_add_u32 v32, v{V_HH}, 3, v32')
    A(f'v_bfe_u32 v33, v{V_LANE}, 4, 1'); A('v_lshlrev_b32 v33, 5, v33')
    A(f'v_and_b32 v34, 3, v{V_LANE}'); A('v_lshl_add_u32 v33, v34, 3, v33')
    for (reg, pitch) in ((V_KVA, 320), (V_QA, 192)):
        A(f'v_mul_u32_u24 v34, {pitch}, v32'); A(f'v_add_u32 v{reg}, v34, v33'); A(f'v_add_u32 v{reg+1}, 0x10000, v{reg}')
    A(f's_lshl_b32 s{S_T0}, s{S_G}, 2'); A(f's_add_u32 s{S_T0}, s{S_T0}, s{S_WAVE}'); A(f's_mul_i32 s{S_T0}, s{S_T0}, 800')
    srd(c, SRD_PH, S_WPHI, f's{S_T0}', 800)
    A(f'v_lshlrev_b32 v32, 1, v{V_T}')
    A(f'v_subrev_u32 v33, 4, v32')
    A(f'v_cmp_gt_u32 vcc, 18, v{V_T}'); A('v_cndmask_b32 v33, v33, v32, vcc')
    A(f'v_and_b32 v34, 30, v{V_T}'); A('v_cmp_eq_u32 s[66:67], 20, v34'); A('s_nop 1'); A('s_or_b64 vcc, vcc, s[66:67]')
    A(f'v_mov_b32 v35, {OOB:#x}'); A('v_cndmask_b32 v33, v35, v33, vcc')
    A(f's_lshl_b32 s{S_T0}, s{S_WAVE}, 2')
    PFO, PFV = 108, 112
    for dl in range(2):
        for eh in range(2):
            A(f'v_lshlrev_b32 v36, 2, v{V_HH}'); A(f'v_add_u32 v36, {16*dl + 8*eh}, v36'); A(f'v_subrev_u32 v36, s{S_T0}, v36')
            A('v_cmp_gt_u32 vcc, 20, v36')
            A('v_mul_u32_u24 v37, 40, v36'); A('v_add_u32 v37, v37, v33')
            A(f'v_cndmask_b32 v{PFO + 2*dl + eh}, v35, v37, vcc')
    pf_loads = [I(f'buffer_load_ushort v{PFV + 8*dl + e}, v{PFO + 2*dl + (e >> 2)}, s[{SRD_PH}:{SRD_PH+3}], 0 offen offset:{(e & 3)*40}', tag='pf')
                for dl in range(2) for e in range(8)]
    act_lane_offset(c)
    srd(c, SRD_Z, S_WS, Z_OFF, Z_SIZE)
    p4_ids(c)
    A(f's_mul_i32 s{S_T0}, s{S_G}, 20480'); A(f's_add_u32 s{S_T0}, s{S_T0}, {Z_OFF + Z_KVS}')
    srd(c, SRD_KVS, S_WS, f's{S_T0}', 20480)
    ONE, V_PL, XT, STT, V_CSD, V_CF0, V_CF1 = 32, 37, 40, 56, 64, 96, 100
    V_SP, V_SA, V_CV, V_CAD = 28, 29, 104, 105
    V_A0, V_A1, V_A2 = 106, 107, 36
    S_CST = 75
    A(f's_lshl_b32 s{S_T0}, s{S_WAVE}, 6')
    A(f'v_add_u32 v{V_A0}, s{S_T0}, v{V_KVA}')
    A(f's_add_u32 s{S_T1}, s{S_T0}, {20480 - 64}')
    A(f's_mov_b32 s{S_CST}, 3072'); A('s_movk_i32 s64, 768')
    A(f's_cmp_eq_u32 s{S_WAVE}, 0'); A('s_cselect_b64 vcc, -1, 0'); A(f's_cselect_b32 s{S_CST}, 5120, s{S_CST}'); A('s_cselect_b32 s64, 1280, s64')
    A(f'v_add_u32 v32, 256, v{V_KVA}'); A(f'v_add_u32 v33, s{S_T1}, v{V_QA}')
    A(f'v_cndmask_b32 v{V_A1}, v33, v32, vcc'); A(f'v_add_u32 v{V_A2}, s64, v{V_A1}')
    for k in range(4): A(f'v_mov_b32 v{ONE+k}, 0x3f803f80')
    def reads(n, sp, T, dst):
        base = ring.alloc[n][0]; r = []
        for j in range(2):
            if T < 5: off, reg = base + sp * 5120 + j * 1280 + T * 64, V_KVA
            else: off, reg = base + 20480 + sp * 3072 + j * 768 + (T - 5) * 64, V_QA
            r.append(I(f'ds_read_b64_tr_b16 {ar(dst+2*j, 2)}, v{reg + (off >> 16)} offset:{off & 0xffff}'))
        return r
    afr = lambda s, T: A_FR + 32 * (s % 2) + 4 * T
    XA = lambda s: A_XF + 16 * ((s // 4) % 2) + 4 * (s % 4)
    st(c, 'setup')
    c.extend(flat(p0[4:]))
    c.extend(flat(x_dma(1)))
    p1 = pieces(1)
    c.extend(flat(p1[:OPT['p1']]))
    stream.next = 2
    stream.release(0)
    stream.push_front(p1[OPT['p1']:])
    stream.queue += [pf_loads[4*k:4*k+4] for k in range(4)]
    c.append(WaitTag(['x0', 'w0', 'zero'])); A('s_barrier')
    st(c, 'S0')
    c.append(x_read(0, 0, ar(XA(0)), tag='A0a'))
    for T in range(8):
        for ins in reads(0, 0, T, afr(0, T)):
            ins.tag = f'A0{"a" if T < 4 else "b"}'; c.append(ins)
    c.extend(zero_flag(60))
    hooks = {}
    def add(key, lst): hooks.setdefault(key, []).extend(lst)
    for n in range(10):
        for sub in range(1, 4):
            add((4 * n, sub - 1), [x_read(n, sub, ar(XA(4 * n + sub)), tag=f'A{4*n+sub}a')])
        if n + 2 < 10:
            if n == 0: hooks[('cb', 1, 0)] = lambda: stream.insert_after('w1', x_dma(2))
            else: hooks[('cb', 4 * n + 1, 0)] = (lambda nn: (lambda: stream.push_front(x_dma(nn))))(n + 2)
    if TOUCH:
        for n in range(10):
            if n + TOUCH < 10: add((4 * n + 3, 4), touch(n + TOUCH))
    for sub in range(4): add((0, sub), [x_read(0, sub, vr(XT + 4 * sub))])
    xhook = lambda s: [x_read(s // 4, 0, ar(XA(s)), tag=f'A{s}a')] if s % 4 == 0 else []
    fill = []
    for sp in range(4):
        g0 = 4 + 6 * sp
        for j in range(2): fill.append((g0, I(f'ds_read_b64_tr_b16 v[{V_CF0+2*j}:{V_CF0+2*j+1}], v{V_A0} offset:{sp*5120 + j*1280}'), 25))
        fill.append((g0, I(f'ds_read_b64_tr_b16 v[{V_CF1}:{V_CF1+1}], v{V_A1}'), 25))
        fill.append((g0, I(f'ds_read_b64_tr_b16 v[{V_CF1+2}:{V_CF1+3}], v{V_A2}'), 25))
        if sp < 3:
            fill.append((g0, I(f'v_add_u32 v{V_A1}, s{S_CST}, v{V_A1}'), 25)); fill.append((g0, I(f'v_add_u32 v{V_A2}, s{S_CST}, v{V_A2}'), 25))
        for t, f in enumerate((V_CF0, V_CF1)):
            d = V_CSD + 16 * t
            fill.append((g0 + 2, I(f'v_mfma_f32_32x32x16_bf16 {vr(d,16)}, {vr(ONE)}, {vr(f)}, {"0" if sp == 0 else vr(d,16)}'), 25))
    fill += [(32, [I(f'v_permlane32_swap_b32 v{V_CSD}, v{V_CSD+16}'), I(f'v_mov_b32 v{V_CV}, v{V_CSD}')], 50)]
    zd = [I(f'v_and_b32 v{V_CA}, 15, v{V_LANE}'), I(f'v_lshlrev_b32 v{V_CA}, 2, v{V_CA}'), I(f'v_mov_b32 v{V_CB}, 1')]
    srd(zd, SRD_DB, S_DBG, OPT.get('dbgoff', 0), 64); zd = atoms(zd)
    zd.append(poll_load('zd', SRD_DB, V_CA, V_PL))
    fill += [(33, i, 50) for i in zd]
    fill += [(34, i, 72) for i in stat_partial(XT, STT, V_SP)]
    fill += [(62, i, 80) for i in atoms(stat_addr(V_SA))]
    cad = [I(f's_lshl_b32 s64, s{S_J}, 11'), I(f's_add_u32 s64, s64, {Z_CS}'), I(f's_lshl_b32 s65, s{S_WAVE}, 8'), I('s_add_u32 s64, s64, s65'),
           [I(f's_cmp_lt_u32 s{S_I}, 10'), I(f's_cselect_b32 s64, s64, {OOB:#x}')],
           I(f'v_lshlrev_b32 v{V_CAD}, 2, v{V_LANE}'), I(f'v_add_u32 v{V_CAD}, s64, v{V_CAD}')]
    fill += [(62, i, 86) for i in cad]
    fill += [(91, I(f'buffer_atomic_add_f32 v{V_SP}, v{V_SA}, s[{SRD_Z}:{SRD_Z+3}], 0 offen', tag='sat'), 93),
             (91, I(f'buffer_atomic_add_f32 v{V_CV}, v{V_CAD}, s[{SRD_Z}:{SRD_Z+3}], 0 offen', tag='sat'), 94)]
    pfw = [I(f's_lshl_b32 s64, s{S_WAVE}, 11'), I(f's_add_u32 s64, s64, {L_PF}'), I(f'v_lshlrev_b32 v{V_A0}, 4, v{V_LANE}'), I(f'v_add_u32 v{V_A0}, s64, v{V_A0}')]
    for dl in range(2):
        for p in range(4): pfw.append(I(f'v_lshl_or_b32 v{PFV+4*dl+p}, v{PFV+8*dl+2*p+1}, 16, v{PFV+8*dl+2*p}'))
    for dl in range(2): pfw.append(I(f'ds_write_b128 v{V_A0}, {vr(PFV+4*dl)} offset:{dl*1024}'))
    fill += [(96, i, 118) for i in pfw]
    WOV = 40
    wos = atoms(wo_task_setup(WOV, 64))
    fill += [(100, i, 135) for i in wos[:len(wos)//2]]
    pfr = [I(f'v_lshlrev_b32 v{V_A1}, 4, v{V_LANE}'), I(f'v_add_u32 v{V_A1}, {L_PF}, v{V_A1}')]
    pfr += [I(f'ds_read_b128 {ar(A_PF+4*f)}, v{V_A1} offset:{f*1024}') for f in range(8)]
    fill += [(128, i, 146) for i in pfr]
    cadd = [I(f's_lshl_b32 s69, s{S_I}, 7'), I(f's_lshr_b32 s68, 0x0aff, s{S_J}'), I('s_and_b32 s68, s68, 1'),
            [I('s_cmp_eq_u32 s68, 1'), I(f's_cselect_b32 s69, s69, {OOB:#x}')],
            I(f's_lshl_b32 s68, s{S_J}, 7'), I(f's_add_u32 s68, s68, {Z_CNT_R}'),
            [I(f's_cmp_lt_u32 s{S_I}, 10'), I(f's_cselect_b32 s68, s68, {OOB:#x}')],
            [I(f's_cmp_eq_u32 s{S_WAVE}, 0'), I(f's_cselect_b32 s69, s69, {OOB:#x}'), I(f's_cselect_b32 s68, s68, {OOB:#x}')]]
    cadd += two_lane(V_SA, 's69', 's68', other=f'{OOB:#x}')
    fill += [(130, i, 152) for i in cadd]
    fill += [(155, cnt_add(V_SA, V_SP, 'c0'), 157)]
    fill += [(156, i, 185) for i in wos[len(wos)//2:]]
    fill += [(187, i, 191) for i in wp_task_dma(WOV, L_WP)]
    wpre, wrd, wst = wp_task_finish(L_WP, 64, True, 's_cmp_lt_u32 s89, 20')
    fill += [(192, [wpre[0], wpre[1]], 200), (192, [wpre[2], wpre[3]], 200)] + [(192, i, 205) for i in wpre[4:]]
    pl = [I(f's_lshl_b32 s64, s{S_I}, 7'), I(f's_lshl_b32 s65, s{S_J}, 7'), I(f's_add_u32 s65, s65, {Z_CNT_R}')] + two_lane(V_CA, 's64', 's65') + [I(f'v_mov_b32 v{V_CB}, 10')]
    fill += [(200, i, 216) for i in pl]
    fill += [(219, poll_load('f0', SRD_Z, V_CA, V_PL), 222)]
    fill += [(236, wrd, 248)]
    VS, VC = 100, 102
    ld = [I(f's_lshl_b32 s64, s{S_I}, 2'), I(f's_add_u32 s64, s64, s{S_WAVE}'), I('s_lshl_b32 s64, s64, 8'), I(f's_add_u32 s64, s64, {Z_STAT}'),
          I(f'v_lshlrev_b32 v{V_CA}, 3, v{V_T}'),
          I(f'buffer_load_dwordx2 v[{VS}:{VS+1}], v{V_CA}, s[{SRD_Z}:{SRD_Z+3}], s64 offen sc1'),
          I(f's_lshl_b32 s64, s{S_J}, 11'), I(f's_add_u32 s64, s64, {Z_CS}'), I(f'v_lshlrev_b32 v{V_CA}, 2, v{V_LANE}')]
    ld += [I(f'buffer_load_dword v{VC+p}, v{V_CA}, s[{SRD_Z}:{SRD_Z+3}], s64 offen offset:{p*256} sc1') for p in range(4)]
    fill += [(251, i, 258) for i in ld]
    fill += [(259, i, 264) for i in wst]
    woc = rep_addr(V_SP, T_WO, [I('s_cmp_lt_u32 s89, 20')])
    fill += [(266, i, 290) for i in woc]
    fin = ln_final(VS, BMU, 56)
    for p in range(4): fin += cs_frag(VC + p, CSA + 4 * p, 56) + [I(f'v_mov_b32 v{CSA+4*p+3}, 0')]
    fin.append(I(f'v_mul_f32 v{V_C}, 0x3fb8aa3b, v{V_RS}'))
    fill += [(298, i, 319) for i in fin]
    def sync_pre(n):
        if n == 2: return poll_check('zd', SRD_DB, V_CA, V_PL, V_CB)
        if n == 7: return poll_check('f0', SRD_Z, V_CA, V_PL, V_CB)
        return []
    tagsA = lambda n: {2: ['pf'], 4: ['sat']}.get(n, [])
    def gapsA(s):
        if s < 8: return list(range(OPT['g0'])) if s % 4 < 3 else [0, 1]
        return [0, 2, 4, 6] if s % 4 < 3 else []
    main = gemm(stream, st, 0, 10, 8, lambda T: vr(ACC(T), 16), afr, lambda s: ar(XA(s)), reads, [], 'A',
                hooks=hooks, sync_pre=sync_pre, sync_tags=tagsA, xhook=xhook, final_sync=False, gaps=gapsA)
    c.extend(weave(main, fill)); st(c, 'PA')
    for T in (0, 1, 2, 3, 4, 5, 6, 7):
        A(f'v_mfma_f32_32x32x16_bf16 {vr(ACC(T),16)}, {vr(CSA + 4*(T % 4))}, {vr(BMU + 4*(T // 4))}, {vr(ACC(T),16)}')
    KACC, VACC, QACC = ACC(0), ACC(0) + 40, ACC(5)
    pre = [I(f'v_mul_u32_u24 v60, {PHI_PITCH}, v{V_T}'), I(f's_mul_i32 s{S_T0}, s{S_WAVE}, {32*PHI_PITCH}'), I(f'v_add_u32 v60, s{S_T0}, v60'),
           I(f'v_lshl_add_u32 v{V_W0}, v{V_HH}, 4, v60'), I(f'v_lshl_add_u32 v{V_W1}, v{V_HH}, 3, v60'),
           I(f'v_mul_u32_u24 v60, {V_PITCH}, v{V_T}'), I(f's_mul_i32 s{S_T0}, s{S_WAVE}, {32*V_PITCH}'), I(f's_add_u32 s{S_T0}, s{S_T0}, {LDS_V}'),
           I(f'v_add_u32 v60, s{S_T0}, v60'),
           I(f'v_lshl_add_u32 v{V_W2}, v{V_HH}, 3, v60'), I(f'v_lshl_add_u32 v{V_W3}, v{V_HH}, 4, v60')]
    c.extend(pre)
    A(f's_lshl_b32 s64, s{S_PT}, 7'); A(f's_add_u32 s65, s64, {T_WO}'); A(f's_add_u32 s64, s64, {T_WD}')
    c.extend(two_lane(V_CA, 's64', 's65'))
    A('s_movk_i32 s64, 108'); A(f'v_mov_b32 v{V_CB}, s64'); A(f'v_writelane_b32 v{V_CB}, 40, 1')
    c.append(poll_load('wd', SRD_Z, V_CA, 63))
    ep = [WaitTag('wps', lgkm0=True), I('s_barrier')] + cnt_add(V_SP, V_SA, 'cw')
    for b in range(10):
        a = VACC + 4 * b; t = 56 + 2 * (b % 2)
        ep += [I(f'v_mul_f32 v{a+k}, v{V_RS}, v{a+k}') for k in range(4)]
        ep += [I(f'v_cvt_pk_bf16_f32 v{t}, v{a}, v{a+1}'), I(f'v_cvt_pk_bf16_f32 v{t+1}, v{a+2}, v{a+3}')]
        Q0 = 2 * b
        off = 8 * Q0 + 8 * (Q0 // 5)
        reg = V_W3 if (2 * b + 1) % 5 == 0 else V_W2
        ep.append(I(f'ds_write_b64 v{reg}, v[{t}:{t+1}] offset:{off}'))
    ep += [I('v_mov_b32 v60, 0x3f803f80'), I('v_mov_b32 v61, 0x3f803f80'),
           I(f'v_mul_u32_u24 v62, 88, v{V_HH}'), I(f'v_add_u32 v62, v62, v{V_W2}')]
    ep += [I(f'ds_write_b64 v62, v[60:61] offset:{40}'), I(f'ds_write_b64 v62, v[60:61] offset:{88}')]
    KP = 44
    def ksink(h):
        return [I(f'ds_write_b128 v{V_W0}, {vr(KP)} offset:{h*80}'),
                I(f'ds_write_b128 v{V_W0}, {vr(KP+4)} offset:{h*80+32}'),
                I(f'ds_write_b64 v{V_W1}, v[{KP+8}:{KP+9}] offset:{h*80+64}')]
    c.extend(feature_maps(KACC, lambda h: KP, ksink, ep)); st(c, 'kphi')
    kvpre = [I(f'v_bfe_u32 v32, v{V_LANE}, 2, 2'), I(f'v_lshl_add_u32 v32, v{V_HH}, 3, v32'),
           I(f'v_and_b32 v33, 3, v{V_LANE}'), I(f'v_bfe_u32 v34, v{V_LANE}, 4, 1'),
           I(f'v_mul_u32_u24 v35, {PHI_PITCH}, v32'), I(f's_mul_i32 s{S_T0}, s{S_WAVE}, 80'), I(f'v_add_u32 v35, s{S_T0}, v35'),
           I(f'v_lshl_add_u32 v35, v33, 3, v35'),
           I(f'v_lshl_add_u32 v36, v34, 5, v35'),
           I(f'v_add_u32 v37, 64, v35'),
           I(f'v_mul_u32_u24 v35, {V_PITCH}, v32'), I(f's_mul_i32 s{S_T0}, s{S_WAVE}, 48'), I(f's_add_u32 s{S_T0}, s{S_T0}, {LDS_V}'),
           I(f'v_add_u32 v35, s{S_T0}, v35'),
           I('v_lshlrev_b32 v38, 3, v33'),
           I('v_min_u32 v39, 1, v33'), I('v_lshlrev_b32 v39, 3, v39'), I('v_add_u32 v39, 32, v39'),
           I('v_cmp_eq_u32 vcc, 0, v34'), I('s_nop 1'), I('v_cndmask_b32 v38, v39, v38, vcc'),
           I(f'v_add_u32 v38, v35, v38')]
    c.extend(kvpre)
    st(c, 'kvpre')
    c.extend(poll_check('wd', SRD_Z, V_CA, 63, V_CB))
    st(c, 'wdok')
    A('s_waitcnt lgkmcnt(0)'); A('s_barrier')
    FA = 64
    def kvreads(k):
        b = FA + 12 * (k % 2); r = []
        for j in range(2):
            r.append(I(f'ds_read_b64_tr_b16 v[{b+2*j}:{b+2*j+1}], v36 offset:{k*16*PHI_PITCH + j*4*PHI_PITCH}'))
            r.append(I(f'ds_read_b64_tr_b16 v[{b+4+2*j}:{b+5+2*j}], v37 offset:{k*16*PHI_PITCH + j*4*PHI_PITCH}'))
            r.append(I(f'ds_read_b64_tr_b16 v[{b+8+2*j}:{b+9+2*j}], v38 offset:{k*16*V_PITCH + j*4*V_PITCH}'))
        return r
    KV0, KV1 = 96, 112
    c.extend(kvreads(0))
    for k in range(8):
        b = FA + 12 * (k % 2)
        if k + 1 < 8: c.extend(kvreads(k + 1))
        A(f'v_mfma_f32_32x32x16_bf16 {vr(KV0,16)}, {vr(b)}, {vr(b+8)}, {"0" if k == 0 else vr(KV0,16)}')
        A(f'v_mfma_f32_32x32x16_bf16 {vr(KV1,16)}, {vr(b+4)}, {vr(b+8)}, {"0" if k == 0 else vr(KV1,16)}')
    st(c, 'kvm')
    A(f'v_lshlrev_b32 v40, 2, v{V_T}'); A(f'v_lshl_add_u32 v40, v{V_HH}, 9, v40')
    A(f's_mul_i32 s{S_T0}, s{S_WAVE}, 5120'); A(f'v_add_u32 v40, s{S_T0}, v40')
    A(f'v_cmp_ge_u32 vcc, 20, v{V_T}'); A(f'v_mov_b32 v41, {OOB:#x}'); A('v_cndmask_b32 v40, v41, v40, vcc')
    A('v_add_u32 v41, 4096, v40')
    for i in range(16):
        A(f'buffer_atomic_add_f32 v{KV0+i}, v40, s[{SRD_KVS}:{SRD_KVS+3}], 0 offen offset:{(8*(i>>2) + (i&3))*128}', tag='kvat')
    for i in range(4):
        A(f'buffer_atomic_add_f32 v{KV1+i}, v41, s[{SRD_KVS}:{SRD_KVS+3}], 0 offen offset:{i*128}', tag='kvat')
    st(c, 'kvat')
    PQ = 128
    zz = [I(f'v_mov_b32 v{PQ+12*h+10+z}, 0') for h in range(4) for z in range(2)]
    qe = feature_maps(QACC, lambda h: PQ + 12 * h, lambda h: [], zz)
    kvc = cnt_addr(42, [I(f's_lshl_b32 s64, s{S_J}, 7'), I(f's_add_u32 s64, s64, {Z_CNT_R + 4}')])
    arrive = kvc + [WaitTag('kvat'), I('s_barrier')] + cnt_add(42, 43, 'arr')
    cut = OPT.get('arr_cut', 250)
    c.extend(qe[:cut] + arrive + qe[cut:]); st(c, 'qphi')
    A(f's_lshl_b32 s64, s{S_J}, 7'); A(f's_add_u32 s64, s64, {Z_CNT_R + 4}')
    A(f'v_mov_b32 v{V_CA}, s64'); A(f'v_mov_b32 v{V_CB}, 16')
    c.append(poll_load('kv', SRD_Z, V_CA, 44))
    pa = [I(f'v_lshlrev_b32 v{V_L16}, 4, v{V_LANE}'), I(f'v_add_u32 v13, 0x10000, v{V_L16}'), I(f'v_add_u32 v14, 0x20000, v{V_L16}'),
          I(f'v_add_u32 v{V_B1}, {NKS*1024}, v{V_L16}'),
          I(f's_mul_i32 s64, s{S_PC}, {NKS*5120}'), I(f's_add_u32 s64, s64, {WP_OFF}')]
    srd(pa, SRD_WP, S_WS, 's64', NKS * 5120)
    pa += [I(f's_lshl_b32 s64, s{S_PT}, 2'), I(f's_add_u32 s64, s64, s{S_WAVE}'), I(f's_mul_i32 s64, s64, {2*NKS*1024}')]
    srd(pa, SRD_PA, S_WS, 's64', 2 * NKS * 1024)
    c.extend(pa)
    stream.limit = 14; stream.release(10)
    c.extend(stream.flush())
    c.extend(poll_check('kv', SRD_Z, V_CA, 44, V_CB))
    A('s_barrier')
    st(c, 'kvok')
    A(f'v_min_u32 v32, 20, v{V_T}'); A('v_lshlrev_b32 v32, 2, v32'); A(f's_mul_i32 s{S_T0}, s{S_WAVE}, 5120'); A(f'v_add_u32 v32, s{S_T0}, v32')
    A(f'v_lshl_add_u32 v33, v{V_HH}, 10, v32')
    A(f'v_lshl_add_u32 v34, v{V_HH}, 9, v32'); A('v_add_u32 v34, 4096, v34')
    KL = 88
    for s in range(2):
        for e in range(8):
            A(f'buffer_load_dword v{KL+8*s+e}, v33, s[{SRD_KVS}:{SRD_KVS+3}], 0 offen offset:{(16*s+e)*128} sc1')
    for e in range(4):
        A(f'buffer_load_dword v{KL+16+e}, v34, s[{SRD_KVS}:{SRD_KVS+3}], 0 offen offset:{e*128} sc1')
    A(f's_lshl_b32 s64, s{S_PT}, 7'); A('s_add_u32 s64, s64, 8'); A(f'v_mov_b32 v{V_CA}, s64'); A(f'v_mov_b32 v{V_CB}, 8')
    c.append(poll_load('h2', SRD_Z, V_CA, 44))
    KC = 108
    for p in range(10): A(f'v_cvt_pk_bf16_f32 v{KC+p}, v{KL+2*p}, v{KL+2*p+1}')
    A(f'v_mov_b32 v{KC+10}, 0'); A(f'v_mov_b32 v{KC+11}, 0')
    A(f's_mul_i32 s{S_T0}, s{S_WAVE}, 3072'); A(f's_add_u32 s{S_T0}, s{S_T0}, {L_KVT - 65536}')
    A(f'v_add_u32 v120, s{S_T0}, v13'); A(f'v_add_u32 v121, {L_KVT - 65536}, v13')
    for s in range(3): A(f'ds_write_b128 v120, {vr(KC+4*s)} offset:{s*1024}')
    st(c, 'kvl')
    c.extend(poll_check('h2', SRD_Z, V_CA, 44, V_CB))
    st(c, 'h2ok')
    A('s_waitcnt lgkmcnt(0)'); A('s_barrier')
    nb0 = min(NB, KLATE)
    p4.nb_issued = nb0
    FR, DD, OP, TL = 32, 176, 240, 80
    for h in range(4):
        for s in range(3): A(f'ds_read_b128 {vr(FR+12*h+4*s)}, v121 offset:{h*3072+s*1024}')
    for s in range(nb0): c.extend(p4.bload(s))
    for h in range(4):
        for s in range(3):
            dd = vr(DD + 16 * h, 16)
            A(f'v_mfma_f32_32x32x16_bf16 {dd}, {vr(FR+12*h+4*s)}, {vr(PQ+12*h+4*s)}, {"0" if s == 0 else dd}')
    for h in range(4):
        d = DD + 16 * h
        A(f'v_add_f32 v122, 0x358637bd, v{d+12}'); A('v_rcp_f32 v122, v122')
        for i in range(12): A(f'v_mul_f32 v{d+i}, v{d+i}, v122')
        for p in range(4): A(f'v_cvt_pk_bf16_f32 v{OP+4*h+p}, v{d+2*p}, v{d+2*p+1}')
        tl = TL + 4 * (h >> 1) + 2 * (h & 1)
        for p in range(2): A(f'v_cvt_pk_bf16_f32 v{tl+p}, v{d+8+2*p}, v{d+9+2*p}')
    def okstep(q):
        return [I(f's_mul_i32 s{S_T0}, s{S_G}, 10'), I(f's_add_u32 s{S_T0}, s{S_T0}, {q}'),
                I(f's_lshr_b32 s{S_T1}, s{S_T0}, 2'), I(f's_and_b32 s{S_T0}, s{S_T0}, 3'),
                I(f's_add_u32 s{S_T1}, s{S_T1}, 54'), I(f's_lshl_b32 s{S_T1}, s{S_T1}, 10'), I(f's_lshl_b32 s{S_T0}, s{S_T0}, 8'),
                I(f's_add_u32 s{S_T0}, s{S_T0}, s{S_T1}')]
    for h in range(4):
        c.extend(okstep(2 * h))
        A(f'buffer_store_dwordx4 {vr(OP+4*h)}, v{V_ACTL}, s[{SRD_ACT}:{SRD_ACT+3}], s{S_T0} offen sc1', tag='o')
    A(f'v_cmp_eq_u32 vcc, 0, v{V_HH}'); A(f'v_mov_b32 v122, {OOB:#x}'); A(f'v_cndmask_b32 v122, v122, v{V_ACTL}, vcc')
    for j in range(2):
        c.extend(okstep(8 + j))
        A(f'buffer_store_dwordx4 {vr(TL+4*j)}, v122, s[{SRD_ACT}:{SRD_ACT+3}], s{S_T0} offen sc1', tag='o')
    st(c, 'o')
    c.append(WaitTag('w10', lgkm0=True)); A('s_barrier')
    stream.limit = stream.n; stream.release(10)
    c.extend(p4.areads(0, V_WIN))
    XR, PR = 208, 168
    fillP = []
    oc = cnt_addr(42, [I(f's_lshl_b32 s64, s{S_I}, 7'), I('s_add_u32 s64, s64, 12')])
    fillP += [(40, i, 50) for i in atoms(oc) + cnt_add(42, 43, 'co')]
    OCHK = 3
    po = [I(f's_lshl_b32 s64, s{S_PT}, 7'), I('s_add_u32 s64, s64, 12'), I(f'v_mov_b32 v{V_CA}, s64'), I(f'v_mov_b32 v{V_CB}, 8'), poll_load('oc', SRD_Z, V_CA, 44)]
    g_o = 10 * (4 * OCHK - 2)
    fillP += [(g_o, i, g_o + 9) for i in po]
    nst = len(p4stages); nk = p4.nk
    xs = [I(f's_lshl_b32 s64, s{S_PT}, 7'), I(f's_lshl_b32 s65, s{S_WAVE}, 5'), I('s_add_u32 s64, s64, s65'), I('s_mul_i32 s64, s64, 1280'),
          I(f's_mul_i32 s65, s{S_PC}, 160'), I('s_add_u32 s64, s64, s65')]
    SRD_XR, SRD_O = SRD_T, SRD_T2
    srd(xs, SRD_XR, S_X2, 's64', None); xs.append(I(f's_sub_u32 s{SRD_XR+2}, {S*D*2}, s64'))
    srd(xs, SRD_O, S_OUT, 's64', None); xs.append(I(f's_sub_u32 s{SRD_O+2}, {S*D*2}, s64'))
    xs += [I(f'v_and_b32 v45, 15, v{V_LANE}'), I('v_mul_u32_u24 v45, 1280, v45'), I(f'v_lshrrev_b32 v46, 4, v{V_LANE}'), I('v_lshl_add_u32 v45, v46, 3, v45'),
           I(f'v_add_u32 v46, {16*1280}, v45')]
    for ct in range(5):
        for tg in range(2):
            k = 2 * ct + tg
            xs.append(I(f'buffer_load_dwordx2 v[{XR+2*k}:{XR+2*k+1}], v{45+tg}, s[{SRD_XR}:{SRD_XR+3}], 0 offen offset:{ct*32}'))
    g_x = 10 * (nk - 16)
    fillP += [(g_x, i, g_x + 40) for i in atoms(xs)]
    PCHK = nst - 3
    kp = [s for s, (n, k) in enumerate(p4.ks) if n == PCHK][-1]
    pp = [I(f's_lshl_b32 s64, s{S_PT}, 7'), I(f's_lshl_b32 s65, s{S_PC}, 2'), I('s_add_u32 s64, s64, s65'), I('s_add_u32 s64, s64, 16'),
          I(f'v_mov_b32 v{V_CA}, s64'), I(f'v_mov_b32 v{V_CB}, 1'), poll_load('pc', SRD_Z, V_CA, 44)]
    fillP += [(10 * (kp - 5), i, 10 * (kp - 4)) for i in pp]
    pld = [I(f's_lshl_b32 s64, s{S_PT}, 3'), I(f's_add_u32 s64, s64, s{S_PC}'), I(f's_mul_i32 s64, s64, {PART_ONE}'),
           I(f's_mul_i32 s65, s{S_WAVE}, 10240'), I('s_add_u32 s64, s64, s65'), I(f's_add_u32 s64, s64, {PART_OFF}')]
    srd(pld, SRD_W, S_WS, 's64', 10240)
    for k in range(10):
        if k % 4 == 0: pld.append(I(f's_mov_b32 s65, {k*1024}'))
        pld.append(I(f'buffer_load_dwordx4 {vr(PR+4*k)}, v{V_L16}, s[{SRD_W}:{SRD_W+3}], s65 offen offset:{(k%4)*1024} sc1'))
    fillP += [(10 * kp + 2, i, 10 * kp + 35) for i in atoms(pld)]
    def spre(n):
        if n == OCHK: return poll_check('oc', SRD_Z, V_CA, 44, V_CB)
        if n == PCHK: return poll_check('pc', SRD_Z, V_CA, 44, V_CB)
        return []
    gate = lambda k, s: k < KLATE or s >= 4 * OCHK + 3
    mainP = p4.loop(st, V_WIN, NB, gate_b=gate, sync_pre=spre, sync_tags=lambda n: ['o'] if n == 0 else [], stamp_at=(7, 19))
    c.extend(weave(mainP, sorted(fillP, key=lambda f: f[0]))); st(c, 'P4')
    assert stream.next == stream.n and not stream.queue
    for ct in range(5):
        for tg in range(2):
            k = 2 * ct + tg
            a, x, p = PACC(ct, tg), XR + 2 * k, PR + 4 * k
            A(f'v_lshlrev_b32 v50, 16, v{x}'); A(f'v_and_b32 v51, s{S_MASK}, v{x}')
            A(f'v_lshlrev_b32 v52, 16, v{x+1}'); A(f'v_and_b32 v53, s{S_MASK}, v{x+1}')
            for j in range(4): A(f'v_add_f32 v{a+j}, v{a+j}, v{p+j}')
            for j in range(4): A(f'v_add_f32 v{50+j}, v{50+j}, v{a+j}')
            A(f'v_cvt_pk_bf16_f32 v{54+2*(k%4)}, v50, v51'); A(f'v_cvt_pk_bf16_f32 v{55+2*(k%4)}, v52, v53')
            A(f'buffer_store_dwordx2 v[{54+2*(k%4)}:{55+2*(k%4)}], v{45+tg}, s[{SRD_O}:{SRD_O+3}], 0 offen offset:{ct*32}')
```

```python
from ir import *
from layout4 import *

def vr(b, n=4): return f'v[{b}:{b+n-1}]'
def ar(b, n=4): return f'a[{b}:{b+n-1}]'
K = 1024
OOB = 0x40000000

S_X, S_WQKV, S_WPHI, S_WO, S_BX, S_WG, S_WU, S_WD = 16, 18, 20, 22, 24, 26, 28, 30
S_OUT, S_DBG, S_WS = 32, 34, 36
S_WAVE, S_I, S_J, S_T0, S_T1, S_W4K = 38, 39, 40, 41, 42, 43
SRD_X, SRD_W, SRD_W2, SRD_ACT, SRD_Z = 44, 48, 52, 56, 60
SRD_T, SRD_T2 = 4, 12
S_SOFF, S_SOFF2, S_ROLE, S_MASK = 8, 9, 10, 11
S_KB = 76
S_PT, S_PC = 86, 87
S_W5K = 3
V_LANE, V_T, V_HH = 1, 2, 3
V_RS, V_MU = 4, 5
V_ACTL, V_ST = 6, 7
V_DMA, V_XR = 8, 12
XBASE = 96 * K
SLOT_A = (0, 32 * K, 64 * K)

OPT = dict(cpf=True, se=2, nm=4, nb=12, p1=4, g0=6, ea=3, la=0, h2g=60, hsig=40, osig=40)
if MLPV != '5': OPT.update(la=4, h2g=75)

class Ring:
    def __init__(self): self.alloc = []; self.nb = {}
    def add_at(self, base, size, not_before=-1):
        self.alloc.append((base, size)); self.nb[len(self.alloc) - 1] = not_before
    def free_after(self, n):
        b, s = self.alloc[n]
        last = self.nb.get(n, -1)
        for m in range(n):
            bm, sm = self.alloc[m]
            if bm < b + s and b < bm + sm: last = max(last, m)
        return last

class Stream:
    def __init__(self, ring, pieces):
        self.ring = ring; self.pieces = pieces
        self.next = 0; self.queue = []; self.n = len(ring.alloc); self.limit = self.n
    def release(self, lim):
        self.lim = lim
        while self.next < min(self.n, self.limit) and self.ring.free_after(self.next) < lim:
            self.queue += self.pieces(self.next); self.next += 1
    def push_front(self, groups): self.queue = list(groups) + self.queue
    def insert_after(self, tag, groups):
        k = 0
        for j, g in enumerate(self.queue):
            if any(getattr(i, 'tag', None) == tag for i in g): k = j + 1
        self.queue[k:k] = list(groups)
    def take(self, k):
        out = []
        for _ in range(min(k, len(self.queue))): out += self.queue.pop(0)
        return out
    def flush(self): return self.take(len(self.queue))

class Stamps:
    def __init__(self, on, vreg=0, sreg=100): self.on = on; self.n = 0; self.v = vreg; self.s = sreg; self.pending = False; self.names = []
    def _commit(self, c):
        if self.pending:
            c.append(I('s_waitcnt lgkmcnt(0)'))
            c.append(I(f'v_writelane_b32 v{self.v}, s{self.s}, {self.n}')); self.n += 1; self.pending = False
    def __call__(self, c, name=''):
        if not self.on: return
        self._commit(c)
        c.append(I(f's_memtime s[{self.s}:{self.s+1}]')); self.pending = True; self.names.append(name)
    def real(self, c, name='real'):
        if not self.on: return
        self._commit(c)
        c.append(I(f's_memrealtime s[{self.s}:{self.s+1}]')); self.pending = True; self.names.append(name)
    def copy(self):
        o = Stamps(self.on, self.v, self.s); o.n = self.n; o.pending = self.pending; o.names = list(self.names); return o
    def dump(self, c, sel=None):
        if not self.on: return
        A = lambda t: c.append(I(t))
        self._commit(c)
        if sel is not None:
            wg, word0, names = sel
            A('s_waitcnt vmcnt(0) lgkmcnt(0)')
            A(f's_cmp_eq_u32 s2, {wg}'); A('s_cselect_b32 s6, 64, 0'); A(f's_cmp_eq_u32 s{S_WAVE}, 0'); A('s_cselect_b32 s6, s6, 0')
            A(f's_mov_b32 s4, s{S_DBG}'); A(f's_mov_b32 s5, s{S_DBG+1}'); A('s_mov_b32 s7, 0x00020000')
            for k, nme in enumerate(names):
                A(f'v_readlane_b32 s64, v{self.v}, {self.names.index(nme) if nme != "real2" else len(self.names) - 1}')
                A('s_nop 4')
                A('v_mov_b32 v1, s64'); A(f'v_mov_b32 v2, {(word0 + k) * 4}')
                A('buffer_store_dword v1, v2, s[4:7], 0 offen')
            A('s_waitcnt vmcnt(0)')
            return
        A('s_waitcnt vmcnt(0) lgkmcnt(0)')
        A(f's_lshl_b32 s64, s2, 2'); A(f's_add_u32 s64, s64, s{S_WAVE}'); A('s_lshl_b32 s64, s64, 8')
        A(f's_add_u32 s64, s64, {STAMP_OFF}')
        A(f's_add_u32 s4, s{S_WS}, s64'); A(f's_addc_u32 s5, s{S_WS+1}, 0')
        A('s_mov_b32 s6, 256'); A('s_mov_b32 s7, 0x00020000')
        A('v_mbcnt_lo_u32_b32 v1, -1, 0'); A('v_mbcnt_hi_u32_b32 v1, -1, v1'); A('v_lshlrev_b32 v1, 2, v1')
        A(f'buffer_store_dword v{self.v}, v1, s[4:7], 0 offen'); A('s_waitcnt vmcnt(0)')

def srd(c, d, base, off, nrec):
    if off is None:
        c += [I(f's_mov_b32 s{d}, s{base}'), I(f's_mov_b32 s{d+1}, s{base+1}')]
    else:
        c += [I(f's_add_u32 s{d}, s{base}, {off}'), I(f's_addc_u32 s{d+1}, s{base+1}, 0')]
    if nrec is not None: c.append(I(f's_mov_b32 s{d+2}, {nrec}'))
    c.append(I(f's_mov_b32 s{d+3}, 0x00020000'))

def code_prefetch(c, regions, vdst):
    A = lambda t, **k: c.append(I(t, **k))
    A('s_getpc_b64 s[4:5]')
    A('L_pc:')
    A('s_lshr_b32 s3, s2, 3'); A('s_lshl_b32 s3, s3, 9')
    A('v_lshrrev_b32 v33, 6, v0'); A('v_lshl_add_u32 v33, v33, 7, s3')
    A('v_and_b32 v34, 63, v0'); A('v_lshl_add_u32 v32, v34, 14, v33')
    lane = 0
    for lab, nblk in regions:
        if lane:
            A(f's_mov_b32 s3, {lab}-L_pc-{lane*16384}'); A(f'v_cmp_le_u32 vcc, {lane}, v34')
            A('v_lshl_add_u32 v35, v34, 14, v33'); A('v_add_u32 v35, s3, v35')
            A('v_cndmask_b32 v32, v32, v35, vcc')
        lane += nblk
    A('s_mov_b32 s6, L_code_end-L_pc'); A('s_mov_b32 s7, 0x00020000')
    A(f'v_cmp_le_u32 vcc, {lane}, v34'); A(f'v_mov_b32 v35, {OOB:#x}'); A('v_cndmask_b32 v32, v32, v35, vcc')
    A(f'buffer_load_dword v{vdst}, v32, s[4:7], 0 offen', tag='cpf')

def emit_wgmap(c):
    c += [I(f's_and_b32 s{S_T0}, s2, 7'), I(f's_lshr_b32 s{S_T1}, s2, 3'),
          I(f's_and_b32 s{S_I}, s{S_T0}, 1'), I(f's_lshl_b32 s{S_I}, s{S_I}, 3'),
          I(f's_and_b32 s{S_J}, s{S_T1}, 7'), I(f's_add_u32 s{S_I}, s{S_I}, s{S_J}'),
          I(f's_lshr_b32 s{S_J}, s{S_T0}, 1'), I(f's_lshl_b32 s{S_J}, s{S_J}, 2'),
          I(f's_lshr_b32 s{S_T1}, s{S_T1}, 3'), I(f's_add_u32 s{S_J}, s{S_J}, s{S_T1}')]

def kb_entry(n):
    if n == 0: return []
    return [I(f's_add_u32 s{S_KB+n}, s{S_KB+n-1}, 128'), I(f's_cmp_eq_u32 s{S_KB+n}, 1280'), I(f's_cselect_b32 s{S_KB+n}, 0, s{S_KB+n}')]

def x_dma(n):
    return [[dma(f'buffer_load_dwordx4 v{V_DMA+q}, s[{SRD_X}:{SRD_X+3}], s{S_KB+n} offen offset:{q*1024} lds',
                 (S_W4K, XBASE + (n % 2) * 16384), tag=f'x{n}')] for q in range(4)]

def x_read(n, sub, dst, tag=None):
    return I(f'ds_read_b128 {dst}, v{V_XR+sub} offset:{XBASE - 65536 + (n % 2) * 16384}', tag=tag)

def flat(groups): return [i for g in groups for i in g]

def prologue(c, st, regions):
    A = lambda t, **k: c.append(I(t, **k))
    A('s_load_dwordx16 s[16:31], s[0:1], 0')
    A('s_load_dwordx4 s[32:35], s[0:1], 64')
    A('s_load_dwordx2 s[36:37], s[0:1], 80')
    if OPT['cpf']: code_prefetch(c, regions, 63)
    A(f'v_and_b32 v{V_LANE}, 63, v0')
    A('v_lshrrev_b32 v32, 6, v0')
    A(f'v_lshrrev_b32 v33, 3, v{V_LANE}')
    A(f'v_readfirstlane_b32 s{S_WAVE}, v32')
    A(f'v_and_b32 v34, 7, v{V_LANE}')
    A('v_lshrrev_b32 v35, 1, v33')
    A('v_xor_b32 v34, v34, v35')
    A('v_mul_u32_u24 v33, 1280, v33')
    for q in range(4):
        A(f'v_xor_b32 v35, {4*(q&1)}, v34')
        A(f'v_lshl_add_u32 v35, v35, 4, v33')
        A(f'v_add_u32 v{V_DMA+q}, {q*(8*1280-1024)}, v35')
    emit_wgmap(c)
    A(f's_and_b32 s{S_T0}, s{S_J}, 3'); A(f's_mul_i32 s{S_T0}, s{S_T0}, 5'); A(f's_lshr_b32 s{S_T0}, s{S_T0}, 1')
    A(f's_lshr_b32 s{S_T1}, s{S_J}, 2'); A(f's_add_u32 s{S_T0}, s{S_T0}, s{S_T1}')
    rot = OPT.get('rot', 'ij')
    if rot == 'ij': A(f's_add_u32 s{S_T0}, s{S_T0}, s{S_I}')
    if rot == 'i': A(f's_mov_b32 s{S_T0}, s{S_I}')
    if rot == '0': A(f's_mov_b32 s{S_T0}, 0')
    for _ in range(2):
        A(f's_sub_u32 s{S_T1}, s{S_T0}, 10'); A(f's_cmp_ge_u32 s{S_T0}, 10'); A(f's_cselect_b32 s{S_T0}, s{S_T1}, s{S_T0}')
    A(f's_lshl_b32 s{S_KB}, s{S_T0}, 7')
    A(f's_lshl_b32 s{S_T0}, s{S_I}, 2'); A(f's_add_u32 s{S_T0}, s{S_T0}, s{S_WAVE}')
    A(f's_mul_i32 s{S_T1}, s{S_T0}, {32*1280}')
    A(f's_lshl_b32 s{S_W4K}, s{S_WAVE}, 12')
    A(f's_cmp_eq_u32 s{S_WAVE}, 0'); A(f's_cselect_b32 s73, 0, {OOB:#x}')
    A('s_waitcnt lgkmcnt(0)')
    srd(c, SRD_X, S_X, f's{S_T1}', 32 * 1280)
    c.extend(flat(x_dma(0)))
    A(f'v_and_b32 v{V_T}, 31, v{V_LANE}')
    A(f'v_lshrrev_b32 v{V_HH}, 5, v{V_LANE}')
    A(f's_lshr_b32 s{S_ROLE}, s{S_J}, 2'); A(f's_lshl_b32 s{S_ROLE}, s{S_ROLE}, 1')
    A(f's_and_b32 s{S_T0}, s{S_J}, 1'); A(f's_add_u32 s{S_ROLE}, s{S_ROLE}, s{S_T0}')
    c.extend(kb_entry(1))

def zero_stores(c, vt):
    A = lambda t, **k: c.append(I(t, **k))
    A(f's_mul_i32 s{S_T0}, s{S_J}, {Z_SHARE}'); A(f's_add_u32 s{S_T0}, s{S_T0}, {Z_OFF}')
    srd(c, SRD_T2, S_WS, f's{S_T0}', None)
    A(f's_cmp_eq_u32 s{S_I}, 0'); A(f's_cselect_b32 s{SRD_T2+2}, {Z_SHARE}, 0')
    for k in range(4): A(f'v_mov_b32 v{vt+k}, 0')
    A(f'v_lshlrev_b32 v{vt+4}, 4, v{V_LANE}'); A(f'v_add_u32 v{vt+4}, s{S_W4K}, v{vt+4}')
    for k in range(4):
        A(f'buffer_store_dwordx4 {vr(vt)}, v{vt+4}, s[{SRD_T2}:{SRD_T2+3}], 0 offen offset:{k*1024} sc1', tag='zero')

def zero_flag(vt):
    return [I(f's_or_b32 s{S_T0}, s{S_I}, s{S_WAVE}'), I(f's_cmp_eq_u32 s{S_T0}, 0'), I(f's_cselect_b32 s{SRD_T2+2}, 64, 0'),
            I(f's_add_u32 s{SRD_T2}, s{S_DBG}, {OPT.get("dbgoff", 0)}'), I(f's_addc_u32 s{SRD_T2+1}, s{S_DBG+1}, 0'),
            I(f's_lshl_b32 s{S_T0}, s{S_J}, 2'),
            I(f'v_mov_b32 v{vt}, 1'), I(f'v_lshlrev_b32 v{vt+1}, 6, v{V_LANE}'),
            I(f'buffer_store_dword v{vt}, v{vt+1}, s[{SRD_T2}:{SRD_T2+3}], s{S_T0} offen sc1', tag='zf')]

_lab = [0]
def poll_check(name, srd_, va, vp, ve):
    _lab[0] += 1
    L = f'L_{name}_{_lab[0]}'
    r = [WaitTag(name), I(f'v_cmp_le_u32 vcc, v{ve}, v{vp}'), I('s_nop 1'), I('s_cmp_eq_u64 vcc, -1'), I(f's_cbranch_scc1 {L}_ok'),
         I(f's_cmp_lg_u32 s{S_WAVE}, 0'), I(f's_cbranch_scc1 {L}_ok')]
    r += offpath([I('s_mov_b32 s69, 0'), I(f'{L}_spin:'),
                  I(f'buffer_load_dword v{vp}, v{va}, s[{srd_}:{srd_+3}], 0 offen sc1'), I('s_waitcnt vmcnt(0)'),
                  I(f'v_cmp_le_u32 vcc, v{ve}, v{vp}'), I('s_nop 1'), I('s_cmp_eq_u64 vcc, -1'), I(f's_cbranch_scc1 {L}_ok'),
                  I('s_sleep 2'), I('s_add_u32 s69, s69, 1'), I('s_cmp_lt_u32 s69, 0x4000'), I(f's_cbranch_scc1 {L}_spin')])
    r.append(I(f'{L}_ok:'))
    return r

S_W0 = 73
def poll_load(name, srd_, va, vp):
    return I(f'buffer_load_dword v{vp}, v{va}, s[{srd_}:{srd_+3}], s{S_W0} offen sc1', tag=name)

def two_lane(vd, sa, sb, other=None):
    r = [I(f'v_mov_b32 v{vd}, {sa if other is None else other}')]
    if other is not None: r.append(I(f'v_writelane_b32 v{vd}, {sa}, 0'))
    r.append(I(f'v_writelane_b32 v{vd}, {sb}, 1'))
    return r

def cnt_add(va, vone, tag):
    return [I(f'v_mov_b32 v{vone}, 1'), I(f'buffer_atomic_add v{vone}, v{va}, s[{SRD_Z}:{SRD_Z+3}], 0 offen', tag=tag)]

def cnt_addr(va, off_sreg_expr_code, cond_code=None):
    r = flat([x if isinstance(x, list) else [x] for x in off_sreg_expr_code])
    r += [I(f's_cmp_eq_u32 s{S_WAVE}, 0'), I(f's_cselect_b32 s64, s64, {OOB:#x}'),
          I(f'v_mov_b32 v{va}, {OOB:#x}'), I(f'v_writelane_b32 v{va}, s64, 0')]
    return r

def act_lane_offset(c):
    A = lambda t, **k: c.append(I(t, **k))
    A(f'v_lshrrev_b32 v32, 4, v{V_T}'); A(f'v_mul_u32_u24 v32, {NKS*1024}, v32')
    A(f'v_and_b32 v33, 15, v{V_T}'); A(f'v_lshl_add_u32 v33, v{V_HH}, 4, v33')
    A(f'v_lshl_add_u32 v{V_ACTL}, v33, 4, v32')
    A(f's_lshl_b32 s{S_T0}, s{S_I}, 2'); A(f's_add_u32 s{S_T0}, s{S_T0}, s{S_WAVE}')
    A(f's_mul_i32 s{S_T0}, s{S_T0}, {2*NKS*1024}')
    srd(c, SRD_ACT, S_WS, f's{S_T0}', 2 * NKS * 1024)

def x_read_addrs(c):
    A = lambda t, **k: c.append(I(t, **k))
    A(f'v_lshrrev_b32 v32, 1, v{V_T}'); A('v_and_b32 v32, 7, v32'); A(f'v_xor_b32 v32, v{V_HH}, v32')
    A(f'v_lshlrev_b32 v33, 7, v{V_T}'); A(f'v_add_u32 v33, s{S_W4K}, v33'); A('v_add_u32 v33, 0x10000, v33')
    for sub in range(4):
        A(f'v_xor_b32 v34, {2*sub}, v32'); A(f'v_lshl_add_u32 v{V_XR+sub}, v34, 4, v33')

def p4_ids(c):
    A = lambda t, **k: c.append(I(t, **k))
    A(f's_and_b32 s{S_PT}, s{S_I}, 11'); A(f's_and_b32 s{S_T0}, s{S_J}, 4'); A(f's_add_u32 s{S_PT}, s{S_PT}, s{S_T0}')
    A(f's_lshr_b32 s{S_PC}, s{S_J}, 3'); A(f's_lshl_b32 s{S_PC}, s{S_PC}, 2')
    A(f's_and_b32 s{S_T0}, s{S_J}, 1'); A(f's_lshl_b32 s{S_T0}, s{S_T0}, 1'); A(f's_add_u32 s{S_PC}, s{S_PC}, s{S_T0}')
    A(f's_bfe_u32 s{S_T0}, s{S_I}, 0x10002'); A(f's_add_u32 s{S_PC}, s{S_PC}, s{S_T0}')

def stat_partial(xt, t0, dst):
    r = [I(f'v_mov_b32 v{t0+4+k}, 0') for k in range(4)]
    for k in range(16):
        lo, hi = t0 + 2 * (k & 1), t0 + 2 * (k & 1) + 1
        r += [I(f'v_lshlrev_b32 v{lo}, 16, v{xt+k}'), I(f'v_and_b32 v{hi}, s{S_MASK}, v{xt+k}'),
              I(f'v_add_f32 v{t0+4}, v{t0+4}, v{lo}'), I(f'v_add_f32 v{t0+5}, v{t0+5}, v{hi}'),
              I(f'v_fmac_f32 v{t0+6}, v{lo}, v{lo}'), I(f'v_fmac_f32 v{t0+7}, v{hi}, v{hi}')]
    r += [I(f'v_add_f32 v{dst}, v{t0+4}, v{t0+5}'), I(f'v_add_f32 v{t0+6}, v{t0+6}, v{t0+7}'),
          I(f'v_permlane32_swap_b32 v{dst}, v{t0+6}'), I(f'v_add_f32 v{dst}, v{dst}, v{t0+6}')]
    return r

def stat_addr(va):
    return [I(f's_lshl_b32 s64, s{S_I}, 2'), I(f's_add_u32 s64, s64, s{S_WAVE}'), I('s_lshl_b32 s64, s64, 8'), I(f's_add_u32 s64, s64, {Z_STAT}'),
            I(f's_lshr_b32 s65, 0x0aff, s{S_J}'), I('s_and_b32 s65, s65, 1'), I('s_cmp_eq_u32 s65, 1'), I(f's_cselect_b32 s64, s64, {OOB:#x}'),
            I(f'v_lshlrev_b32 v{va}, 3, v{V_T}'), I(f'v_lshl_add_u32 v{va}, v{V_HH}, 2, v{va}'), I(f'v_add_u32 v{va}, s64, v{va}')]

def ln_final(vs, bmu, t0, V_RS=V_RS, V_MU=V_MU):
    A = []
    a = lambda t: A.append(I(t))
    a(f'v_mul_f32 v{V_MU}, {1.0/640!r}, v{vs}'); a(f'v_mul_f32 v{t0}, {1.0/640!r}, v{vs+1}')
    a(f'v_fma_f32 v{t0}, -v{V_MU}, v{V_MU}, v{t0}'); a(f'v_max_f32 v{t0}, 0, v{t0}'); a(f'v_add_f32 v{t0}, 0x3727c5ac, v{t0}')
    a(f'v_rsq_f32 v{V_RS}, v{t0}')
    n, hf, r1, mf, r2 = t0, t0 + 1, t0 + 2, t0 + 3, t0 + 4
    a(f'v_sub_f32 v{n}, 0, v{V_MU}')
    a(f'v_cvt_pk_bf16_f32 v{bmu}, v{n}, v{n}')
    a(f'v_and_b32 v{hf}, s{S_MASK}, v{bmu}'); a(f'v_sub_f32 v{r1}, v{n}, v{hf}')
    a(f'v_cvt_pk_bf16_f32 v{bmu+1}, v{r1}, v{n}')
    a(f'v_lshlrev_b32 v{mf}, 16, v{bmu+1}'); a(f'v_sub_f32 v{r2}, v{r1}, v{mf}')
    a(f'v_cvt_pk_bf16_f32 v{bmu+2}, v{r2}, v{r1}')
    a(f'v_cmp_eq_u32 vcc, 0, v{V_HH}')
    a(f'v_mov_b32 v{bmu+3}, 0'); a(f'v_mov_b32 v{bmu+7}, 0')
    for k in range(3): a(f'v_cndmask_b32 v{bmu+4+k}, v{bmu+k}, v{bmu+3}, vcc')
    for k in range(3): a(f'v_cndmask_b32 v{bmu+k}, v{bmu+3}, v{bmu+k}, vcc')
    return A

def cs_frag(vc, dst, t0):
    return [I(f'v_cvt_pk_bf16_f32 v{t0}, v{vc}, v{vc}'), I(f'v_and_b32 v{t0}, s{S_MASK}, v{t0}'), I(f'v_sub_f32 v{t0}, v{vc}, v{t0}'),
            I(f'v_cvt_pk_bf16_f32 v{dst}, v{vc}, v{t0}'), I(f'v_and_b32 v{t0+1}, s{S_MASK}, v{dst}'), I(f'v_sub_f32 v{t0}, v{t0}, v{t0+1}'),
            I(f'v_cvt_pk_bf16_f32 v{dst+1}, v{vc}, v{t0}'), I(f'v_mov_b32 v{dst+2}, v{dst}')]

def gemm(stream, st, st0, nst, ntile, acc, afr, bfr, reads, nxt_reads, pfx, hooks=None, sync_pre=None, sync_post=None,
         sync_tags=None, final_sync=True, xhook=None, gaps=None, sg=2, pre_stage=None):
    main = []
    hooks = hooks or {}
    nk = nst * 4
    h = ntile // 2
    SE = OPT['se']
    for s in range(nk):
        n = st0 + s // 4
        sp = s % 4
        last = sp == 3
        sync = last and (s + 1 < nk or final_sync)
        rd = []
        if s + 1 < nk:
            if xhook: rd += xhook(s + 1)
            for T in range(ntile):
                for ins in reads(n + (1 if last else 0), (s + 1) % 4, T, afr(s + 1, T)):
                    ins.tag = f'{pfx}{s+1}{"a" if T < h else "b"}'; rd.append(ins)
        else:
            rd = nxt_reads
        rgaps = list(range(sg if last else 0, ntile))
        share = [[] for _ in rgaps]
        for k, ins in enumerate(rd): share[k * len(rgaps) // max(len(rd), 1)].append(ins)
        for T in range(ntile):
            g = []
            if T == sg and sync:
                if sync_pre: g += sync_pre(n)
                g.append(WaitTag([f'w{n+1}', f'x{n+1}'] + (sync_tags(n) if sync_tags else []), lgkm0=True))
            elif T == h: g.append(WaitLg(f'{pfx}{s}b'))
            elif T == 0: g.append(WaitLg(f'{pfx}{s}a'))
            if T == 0 and pre_stage and (s in pre_stage): g += pre_stage[s]
            cc = '0' if s == 0 else acc(T)
            g.append(I(f'v_mfma_f32_32x32x16_bf16 {acc(T)}, {ar(afr(s,T))}, {bfr(s)}, {cc}'))
            if T == sg and sync:
                g.append(I('s_barrier'))
                if SE and (n % SE == 0): st(g, f'S{n+1}')
                stream.release(n + 1)
                if sync_post: g += sync_post(n)
            g += hooks.get((s, T), [])
            if T in rgaps: g += share[rgaps.index(T)]
            cb = hooks.get(('cb', s, T))
            if cb: cb()
            post = []
            for _ in range(gaps(s).count(T)): post += stream.take(1)
            main.append((g, post))
    return main

def finish(c, rep=None):
    c = place_m0(c)
    c = insert_waits(c, rep)
    c = insert_hazard_nops(c, rep)
    return c

def kd(name, vgpr, agpr_off, sgpr=96):
    return f""".amdhsa_kernel {name}
  .amdhsa_next_free_vgpr {vgpr}
  .amdhsa_next_free_sgpr {sgpr}
  .amdhsa_accum_offset {agpr_off}
  .amdhsa_group_segment_fixed_size 0
  .amdhsa_kernarg_size 88
  .amdhsa_user_sgpr_count 2
  .amdhsa_user_sgpr_kernarg_segment_ptr 1
  .amdhsa_system_sgpr_workgroup_id_x 1
.end_amdhsa_kernel
"""

def atoms(code):
    out = []
    for x in code:
        if isinstance(x, list): out.append(x); continue
        op = getattr(x, 'op', '')
        reads_scc = op in ('s_cselect_b32', 's_cselect_b64', 's_addc_u32', 's_subb_u32') or op.startswith('s_cbranch_scc')
        if reads_scc and out:
            prev = out[-1] if isinstance(out[-1], list) else [out[-1]]
            out[-1] = prev + [x]
        else:
            out.append(x)
    return out

def rep_addr(va, off, cond):
    return [cond + [I(f's_cselect_b32 s64, 0, {OOB:#x}')],
            I(f's_or_b32 s64, s64, s{S_W0}'), I(f'v_lshlrev_b32 v{va}, 7, v{V_LANE}'), I(f'v_add_u32 v{va}, {off}, v{va}'),
            [I(f'v_cmp_gt_u32 vcc, 16, v{V_LANE}'), I(f'v_mov_b32 v{va+1}, {OOB:#x}'), I(f'v_cndmask_b32 v{va}, v{va+1}, v{va}, vcc')],
            I(f'v_add_u32 v{va}, s64, v{va}')]

V_TX, V_TW, V_TD = 60, 61, 62
def touch_x_setup(vtx, t0):
    return [I(f's_and_b32 s64, s{S_J}, 3'), I('s_lshl_b32 s64, s64, 5'), I(f's_lshl_b32 s65, s{S_WAVE}, 3'), I('s_add_u32 s64, s64, s65'),
            I(f'v_lshrrev_b32 v{t0}, 1, v{V_LANE}'), I(f'v_add_u32 v{t0}, s64, v{t0}'), I(f'v_mul_u32_u24 v{t0}, 1280, v{t0}'),
            I(f'v_and_b32 v{t0+1}, 1, v{V_LANE}'), I(f'v_lshl_add_u32 v{t0}, v{t0+1}, 6, v{t0}'),
            I(f'v_cmp_gt_u32 vcc, 16, v{V_LANE}'), I(f'v_mov_b32 v{t0+1}, {OOB:#x}'), I(f'v_cndmask_b32 v{vtx}, v{t0+1}, v{t0}, vcc')]
```

```python
from common import *
from p4 import *

XA = lambda s: 4 * s
AFB = 160
A_HU = 224
ACC = lambda u, T: 64 + 64 * u + 16 * T
V_WD, V_HD = 16, 20
V_AF, V_HA = 21, 27
V_CA, V_CB = 30, 31
BMU = 32
TT = 40
S_TK = 89

def wd_task_setup(c, vb):
    A = lambda t, **k: c.append(I(t, **k))
    A(f's_lshl_b32 s64, s{S_I}, 3'); A(f's_add_u32 s64, s64, s{S_ROLE}'); A('s_lshl_b32 s64, s64, 2'); A(f's_add_u32 s64, s64, s{S_WAVE}')
    A(f's_lshr_b32 s{S_TK}, s64, 3'); A('s_and_b32 s65, s64, 7')
    A(f's_lshr_b32 s66, s{S_TK}, 2'); A('s_mul_i32 s66, s66, 6'); A(f's_and_b32 s67, s{S_TK}, 3'); A('s_add_u32 s66, s66, s67')
    A(f's_sub_u32 s67, s{S_TK}, 32'); A('s_lshr_b32 s67, s67, 1'); A('s_mul_i32 s67, s67, 6'); A(f's_and_b32 s68, s{S_TK}, 1')
    A('s_add_u32 s67, s67, s68'); A('s_add_u32 s67, s67, 4')
    A(f's_cmp_lt_u32 s{S_TK}, 32'); A('s_cselect_b32 s66, s66, s67')
    A(f's_cmp_lt_u32 s{S_TK}, 48'); A(f's_cselect_b32 s66, s66, s{S_TK}')
    A(f's_mul_i32 s66, s66, {32*1280}'); A('s_mul_i32 s67, s65, 160'); A('s_add_u32 s66, s66, s67')
    srd(c, SRD_T, S_WD, 's66', None)
    A(f's_cmp_lt_u32 s{S_TK}, 54'); A(f's_cselect_b32 s{SRD_T+2}, {31*1280+160}, 0')
    for p in range(5):
        A(f'v_add_u32 v32, {64*p}, v{V_LANE}')
        A('v_mul_u32_u24 v33, 6554, v32'); A('v_lshrrev_b32 v33, 16, v33')
        A('v_mul_u32_u24 v34, 10, v33'); A('v_sub_u32 v34, v32, v34')
        A('v_mul_u32_u24 v33, 1280, v33'); A('v_lshl_add_u32 v33, v34, 4, v33')
        A(f'v_subrev_u32 v{vb+p}, {(p % 4)*1024}, v33')
    A(f's_mul_i32 s65, s65, {NKS}'); A(f's_add_u32 s65, s65, s{S_TK}'); A('s_mul_i32 s65, s65, 5120'); A(f's_add_u32 s65, s65, {WP_OFF}')
    A(f's_add_u32 s90, s{S_WS}, s65'); A(f's_addc_u32 s91, s{S_WS+1}, 0')

def wp_task_dma(vb, lds):
    return [dma(f'buffer_load_dwordx4 v{vb+p}, s[{SRD_T}:{SRD_T+3}], 0 offen offset:{(p % 4)*1024} lds',
                (S_W5K, lds + (4096 if p == 4 else 0)), tag='wp') for p in range(5)]

def wp_task_finish(lds, t0, dest_order, valid_cmp):
    r = [I(f's_mov_b32 s{SRD_T2}, s90'), I(f's_mov_b32 s{SRD_T2+1}, s91'), I(valid_cmp), I(f's_cselect_b32 s{SRD_T2+2}, 5120, 0')]
    if dest_order:
        r += [I(f'v_lshrrev_b32 v{t0}, 4, v{V_LANE}'), I(f'v_lshlrev_b32 v{t0}, 3, v{t0}')]
        jstep = 4 * 160
    else:
        r += [I(f'v_lshrrev_b32 v{t0}, 5, v{V_LANE}'), I(f'v_lshlrev_b32 v{t0}, 4, v{t0}'),
              I(f'v_bfe_u32 v{t0+1}, v{V_LANE}, 4, 1'), I(f'v_lshl_add_u32 v{t0}, v{t0+1}, 2, v{t0}')]
        jstep = 8 * 160
    r += [I(f'v_bfe_u32 v{t0+1}, v{V_LANE}, 2, 2'), I(f'v_add_u32 v{t0}, v{t0}, v{t0+1}'), I(f'v_mul_u32_u24 v{t0}, 160, v{t0}'),
          I(f'v_and_b32 v{t0+1}, 3, v{V_LANE}'), I(f'v_lshl_add_u32 v{t0}, v{t0+1}, 3, v{t0}'),
          I(f'v_add_u32 v{t0}, s{S_W5K}, v{t0}'), I(f'v_add_u32 v{t0}, {lds}, v{t0}'),
          I(f'v_lshlrev_b32 v{t0+1}, 4, v{V_LANE}')]
    rd = [WaitTag('wp')]
    for ct in range(5):
        d = t0 + 4 + 4 * ct
        for j in range(2):
            rd.append(I(f'ds_read_b64_tr_b16 v[{d+2*j}:{d+2*j+1}], v{t0} offset:{j*jstep + ct*32}'))
    stv = []
    for ct in range(5):
        d = t0 + 4 + 4 * ct
        off = f'offset:{ct*1024}' if ct < 4 else 'offset:0'
        so = '0' if ct < 4 else 's69'
        if ct == 4: stv.append(I('s_mov_b32 s69, 4096'))
        stv.append(I(f'buffer_store_dwordx4 {vr(d)}, v{t0+1}, s[{SRD_T2}:{SRD_T2+3}], {so} offen {off} sc1', tag='wps'))
    return r, rd, stv

def mlp_role(c0, st):
    c = c0
    A = lambda t, **k: c.append(I(t, **k))
    NM, NB = OPT['nm'], OPT['nb']
    S_T2K, SRD_DB = 92, 96
    A(f's_cmp_lt_u32 s{S_WAVE}, 2')
    A(f's_cselect_b32 s{SRD_W}, s{S_WG}, s{S_WU}'); A(f's_cselect_b32 s{SRD_W+1}, s{S_WG+1}, s{S_WU+1}')
    A(f's_cselect_b32 s{SRD_W2}, s{S_WG}, s{S_WU}'); A(f's_cselect_b32 s{SRD_W2+1}, s{S_WG+1}, s{S_WU+1}')
    A(f's_mov_b32 s{SRD_W+2}, {D*F*2}'); A(f's_mov_b32 s{SRD_W+3}, 0x00020000')
    A(f'v_lshrrev_b32 v32, 3, v{V_LANE}'); A(f'v_and_b32 v33, 7, v{V_LANE}')
    A('v_bfe_u32 v34, v32, 1, 1'); A('v_lshlrev_b32 v34, 2, v34'); A('v_xor_b32 v33, v33, v34')
    A(f's_and_b32 s{S_T0}, s{S_WAVE}, 1'); A(f's_lshl_b32 s{S_T0}, s{S_T0}, 3')
    A(f'v_add_u32 v32, s{S_T0}, v32'); A('v_mul_u32_u24 v32, 3456, v32'); A('v_lshl_add_u32 v32, v33, 4, v32')
    A(f's_mul_i32 s{S_T0}, s{S_ROLE}, 384')
    A(f'v_add_u32 v32, s{S_T0}, v32')
    for q in range(4): A(f'v_add_u32 v{V_WD+q}, {q*(16*3456-1024)}, v32')
    TOUCH = OPT.get('touch', 0)
    V_TX, V_TW, V_TD, SRD_TX = 4, 5, 0, 24
    def touch(n):
        k0 = n % 10
        r = [I(f's_mul_i32 s72, s{S_KB+k0}, 1728')]
        if n >= 10: r.append(I('s_add_u32 s72, s72, 256'))
        r.append(I(f'buffer_load_dword v{V_TD}, v{V_TW}, s[{SRD_W}:{SRD_W+3}], s72 offen', tag='tch'))
        if n < 10: r.append(I(f'buffer_load_dword v{V_TD}, v{V_TX}, s[{SRD_TX}:{SRD_TX+3}], s{S_KB+k0} offen', tag='tch'))
        return r
    if TOUCH:
        A(f's_and_b32 s64, s{S_I}, 7'); A('s_lshl_b32 s64, s64, 3'); A(f's_and_b32 s65, s{S_WAVE}, 1'); A('s_lshl_b32 s65, s65, 2'); A('s_add_u32 s64, s64, s65')
        A(f'v_lshrrev_b32 v34, 2, v{V_LANE}'); A('v_add_u32 v34, s64, v34'); A('v_mul_u32_u24 v34, 3456, v34')
        A(f'v_and_b32 v35, 3, v{V_LANE}'); A('v_lshl_add_u32 v34, v35, 6, v34'); A(f's_mul_i32 s64, s{S_ROLE}, 384'); A('v_add_u32 v34, s64, v34')
        A(f'v_cmp_gt_u32 vcc, 16, v{V_LANE}'); A(f'v_mov_b32 v35, {OOB:#x}'); A(f'v_cndmask_b32 v{V_TW}, v35, v34, vcc')
        c.extend(touch_x_setup(V_TX, 34))
        A(f's_mul_i32 s64, s{S_I}, {128*1280}')
        srd(c, SRD_TX, S_X, 's64', 128 * 1280)
        for n in range(2, 10): c.extend(kb_entry(n))
        for n in range(TOUCH): c.extend(touch(n))
    ring = Ring()
    for n in range(10): ring.add_at(SLOT_A[n % 3], 32 * K)
    SCR = 128 * K
    for k in range(10):
        ring.add_at((128, 32, 64, 96, 0)[k % 5] * K, 24 * K, not_before={0: 6, 3: 9}.get(k, -1))
    nst4 = 8 + (NM + 3) // 4
    qorder = (6, 7, 2, 3, 4, 5, 0, 1)
    for k in range(nst4): ring.add_at(QSLOT[qorder[k % 8]], 20 * K)
    p4stages = [(('rot', n), 4) for n in range(8)] + [(32 + 4 * k, min(4, NM - 4 * k)) for k in range((NM + 3) // 4)]
    V_L16, V_B1 = 8, 11
    V_WIN = (8, 9, 10)
    SRD_WP, SRD_PA = SRD_X, SRD_T
    def wpieces(n, base, tag):
        r = []
        units = (0, 1) if n < 10 else (2,)
        k0 = n % 10
        for ui, u in enumerate(units):
            for q in range(4):
                g = []
                if q == 0: g += [I(f's_mul_i32 s{S_SOFF2}, s{S_KB+k0}, 1728'), I(f's_add_u32 s{S_SOFF2}, s{S_SOFF2}, {u*128}')]
                g.append(dma(f'buffer_load_dwordx4 v{V_WD+q}, s[{SRD_W}:{SRD_W+3}], s{S_SOFF2} offen offset:{q*1024} lds', (S_W4K, base + ui * 16384), tag=tag))
                r.append(g)
        if n >= 10:
            for q in range(2):
                g = [I(f's_mul_i32 s{S_SOFF}, s{S_KB+k0}, 1728')] if q == 0 else [I(f's_add_u32 s{S_SOFF}, s{S_SOFF}, {16*3456-1024}')]
                g.append(dma(f'buffer_load_dwordx4 v{V_HD}, s[{SRD_W2}:{SRD_W2+3}], s{S_SOFF} offen offset:{q*1024} lds', (S_T2K, base + 16384), tag=tag))
                r.append(g)
        return r
    def pieces(n):
        if n >= 20: return p4.pieces(n - 20)
        return wpieces(n, ring.alloc[n][0], f'w{n}')
    stream = Stream(ring, pieces)
    stream.limit = 20
    p4 = P4(stream, 20, p4stages,
            BF=lambda s, tg: vr(64 + 8 * (s % NB) + 4 * tg), AF=lambda s, ct: ar(40 + 20 * (s % 2) + 4 * ct),
            ACC=lambda ct, tg: ar(8 * ct + 4 * tg), v_l16=V_L16, v_b0=V_L16, v_b1=V_B1, srd_wp=SRD_WP, srd_act=SRD_PA, s_ao=94, s_wo=93)
    p0 = pieces(0)
    c.extend(flat(p0[:4]))
    st(c, 'iss')
    zero_stores(c, 40)
    if not TOUCH:
        for n in range(2, 10): c.extend(kb_entry(n))
    A(f's_lshl_b32 s{S_T2K}, s{S_WAVE}, 11')
    A(f's_cmp_lt_u32 s{S_ROLE}, 6'); A(f's_cselect_b32 s{SRD_W2+2}, {D*F*2}, 0'); A(f's_mov_b32 s{SRD_W2+3}, 0x00020000')
    A(f'v_lshrrev_b32 v32, 2, v{V_LANE}'); A(f's_and_b32 s{S_T0}, s{S_WAVE}, 1'); A(f's_lshl_b32 s{S_T0}, s{S_T0}, 5')
    A(f'v_add_u32 v32, s{S_T0}, v32'); A('v_mul_u32_u24 v32, 3456, v32')
    A(f'v_and_b32 v33, 3, v{V_LANE}'); A('v_lshl_add_u32 v32, v33, 4, v32')
    A(f's_lshl_b32 s{S_T0}, s{S_ROLE}, 6'); A(f's_add_u32 s{S_T0}, s{S_T0}, {1536*2}'); A(f'v_add_u32 v{V_HD}, s{S_T0}, v32')
    x_read_addrs(c)
    A(f's_mov_b32 s{S_MASK}, 0xffff0000')
    A(f's_mul_i32 s{S_W5K}, s{S_WAVE}, 5120')
    A(f'v_lshrrev_b32 v32, 5, v{V_LANE}'); A('v_lshlrev_b32 v32, 12, v32')
    A(f'v_bfe_u32 v33, v{V_LANE}, 2, 2'); A('v_lshl_add_u32 v32, v33, 7, v32')
    A(f'v_bfe_u32 v34, v{V_LANE}, 4, 1'); A('v_lshl_add_u32 v32, v34, 5, v32')
    A(f'v_and_b32 v34, 3, v{V_LANE}'); A('v_lshl_add_u32 v32, v34, 3, v32')
    A('v_lshrrev_b32 v33, 1, v33'); A('v_lshlrev_b32 v33, 6, v33')
    for T in range(2):
        A(f'v_xor_b32 v34, {64*T}, v33'); A(f'v_add_u32 v{V_AF+3*T}, v32, v34')
        A(f'v_add_u32 v{V_AF+3*T+1}, 0x10000, v{V_AF+3*T}'); A(f'v_add_u32 v{V_AF+3*T+2}, 0x20000, v{V_AF+3*T}')
    A(f'v_bfe_u32 v32, v{V_LANE}, 2, 2'); A(f'v_lshl_add_u32 v32, v{V_HH}, 3, v32'); A('v_lshlrev_b32 v32, 6, v32')
    A(f'v_bfe_u32 v33, v{V_LANE}, 4, 1'); A('v_lshl_add_u32 v32, v33, 5, v32')
    A(f'v_and_b32 v33, 3, v{V_LANE}'); A(f'v_lshl_add_u32 v{V_HA}, v33, 3, v32')
    A(f'v_add_u32 v{V_HA+1}, 0x10000, v{V_HA}'); A(f'v_add_u32 v{V_HA+2}, 0x20000, v{V_HA}')
    WDV = 192
    V_PL, V_SP, V_SA, V_CV, V_CAD, V_CV2 = 197, 198, 199, 200, 201, 202
    V_CS0, V_CS1, V_ONE, V_CSD, V_CSF = 203, 204, 244, 208, 240
    V_C2 = 252
    A(f's_lshl_b32 s{S_T0}, s{S_WAVE}, 13')
    A(f'v_add_u32 v{V_CS0}, s{S_T0}, v{V_AF}'); A(f'v_add_u32 v{V_CS1}, s{S_T0}, v{V_AF+3}')
    for k in range(4): A(f'v_mov_b32 v{V_ONE+k}, 0x3f803f80')
    alu = []
    act_lane_offset(alu)
    srd(alu, SRD_Z, S_WS, Z_OFF, Z_SIZE)
    p4_ids(alu)
    wd_task_setup(alu, WDV)
    a2 = lambda t: alu.append(I(t))
    a2(f's_lshl_b32 s{S_T0}, s{S_WAVE}, 13'); a2(f's_add_u32 s{S_T0}, s{S_T0}, {SCR}')
    a2(f's_cmp_ge_u32 s{S_WAVE}, 2'); a2('s_cselect_b64 vcc, -1, 0')
    for t in range(2):
        for j in range(2):
            a2(f'v_add_u32 v32, s{S_T0}, v{V_AF+3*t}'); a2(f'v_add_u32 v32, {512*j}, v32')
            a2(f'v_add_u32 v33, {SCR + 16384 + 4096*t + 256*j}, v{V_HA}')
            a2(f'v_cndmask_b32 v{V_C2+2*t+j}, v32, v33, vcc')
    c.extend(alu)
    def reads(n, sp, T, dst):
        base = ring.alloc[n][0]; r = []
        for j in range(2):
            if n < 10 or T < 4:
                ui, T4 = divmod(T, 4)
                M, Tt = divmod(T4, 2)
                off = base + ui * 16384 + M * 8192 + sp * 1024 + j * 512
                r.append(I(f'ds_read_b64_tr_b16 {ar(dst+2*j, 2)}, v{V_AF+3*Tt+(off>>16)} offset:{off & 0xffff}'))
            else:
                off = base + 16384 + (T - 4) * 4096 + sp * 1024 + j * 256
                r.append(I(f'ds_read_b64_tr_b16 {ar(dst+2*j, 2)}, v{V_HA+(off>>16)} offset:{off & 0xffff}'))
        return r
    afr = lambda s, T: AFB + 32 * (s % 2) + 4 * T
    st(c, 'setup')
    c.extend(flat(p0[4:]))
    c.extend(flat(x_dma(1)))
    p1 = pieces(1)
    c.extend(flat(p1[:OPT['p1']]))
    stream.next = 2
    stream.release(0)
    stream.push_front(p1[OPT['p1']:])
    wb = wpieces(10, SCR, 'wb')
    wb[0] = [I(f's_cmp_lt_u32 s{S_I}, 10'), I(f's_cselect_b32 s{SRD_W+2}, {D*F*2}, 0'), I(f's_cselect_b32 s{SRD_W2+2}, s{SRD_W2+2}, 0')] + wb[0]
    wb[3] = wb[3] + [I(f's_mov_b32 s{SRD_W+2}, {D*F*2}')]
    wb[5] = wb[5] + [I(f's_cmp_lt_u32 s{S_ROLE}, 6'), I(f's_cselect_b32 s{SRD_W2+2}, {D*F*2}, 0')]
    stream.queue += wb
    c.append(WaitTag(['x0', 'w0', 'zero'])); A('s_barrier')
    st(c, 'S0')
    c.append(x_read(0, 0, ar(XA(0)), tag='A0a'))
    for T in range(8):
        for ins in reads(0, 0, T, afr(0, T)):
            ins.tag = f'A0{"a" if T < 4 else "b"}'; c.append(ins)
    c.extend(zero_flag(56))
    hooks = {}
    def add(key, lst): hooks.setdefault(key, []).extend(lst)
    for n in range(10):
        for sub in range(1, 4):
            add((4 * n, sub - 1), [x_read(n, sub, ar(XA(4 * n + sub)), tag=f'A{4*n+sub}a')])
        if n + 2 < 10:
            if n == 0: hooks[('cb', 1, 0)] = lambda: stream.insert_after('w1', x_dma(2))
            else: hooks[('cb', 4 * n + 1, 0)] = (lambda nn: (lambda: stream.push_front(x_dma(nn))))(n + 2)
    if TOUCH:
        for n in range(10):
            if n + TOUCH < 14 and n < 9: add((4 * n + 3, 4), touch(n + TOUCH))
    XT = TT
    for sub in range(4): add((0, sub), [x_read(0, sub, vr(XT + 4 * sub))])
    xhook = lambda s: [x_read(s // 4, 0, ar(XA(s)), tag=f'A{s}a')] if s % 4 == 0 else []
    fill = []
    def cs_block(g0, gmax, addr):
        r = []
        for sp in range(4):
            for t in range(2):
                f = V_CSF + 8 * t
                for j in range(2):
                    va, off = addr(t, j)
                    r.append((g0 + 6 * sp, I(f'ds_read_b64_tr_b16 v[{f+2*j}:{f+2*j+1}], v{va} offset:{off + sp*1024}'), gmax))
            for t in range(2):
                d = V_CSD + 16 * t
                r.append((g0 + 6 * sp + 2, I(f'v_mfma_f32_32x32x16_bf16 {vr(d,16)}, {vr(V_ONE)}, {vr(V_CSF + 8*t)}, {"0" if sp == 0 else vr(d,16)}'), gmax))
        return r
    fill += cs_block(4, 25, lambda t, j: ((V_CS0, V_CS1)[t], ring.alloc[0][0] + j * 512))
    fill += [(32, [I(f'v_permlane32_swap_b32 v{V_CSD}, v{V_CSD+16}'), I(f'v_mov_b32 v{V_CV}, v{V_CSD}')], 50)]
    zd = [I(f'v_and_b32 v{V_CA}, 15, v{V_LANE}'), I(f'v_lshlrev_b32 v{V_CA}, 2, v{V_CA}'), I(f'v_mov_b32 v{V_CB}, 1')]
    srd(zd, SRD_DB, S_DBG, OPT.get('dbgoff', 0), 64); zd = atoms(zd)
    zd.append(poll_load('zd', SRD_DB, V_CA, V_PL))
    fill += [(33, i, 50) for i in zd]
    fill += [(34, i, 70) for i in stat_partial(XT, 56, V_SP)]
    fill += [(60, i, 75) for i in atoms(stat_addr(V_SA))]
    cad = [I(f's_lshl_b32 s64, s{S_J}, 11'), I(f's_add_u32 s64, s64, {Z_CS}'), I(f's_lshl_b32 s65, s{S_WAVE}, 8'), I('s_add_u32 s64, s64, s65'),
           [I(f's_cmp_lt_u32 s{S_I}, 10'), I(f's_cselect_b32 s64, s64, {OOB:#x}')],
           I(f'v_lshlrev_b32 v{V_CAD}, 2, v{V_LANE}'), I(f'v_add_u32 v{V_CAD}, s64, v{V_CAD}')]
    fill += [(60, i, 78) for i in cad]
    fill += cs_block(64, 89, lambda t, j: (V_C2 + 2 * t + j, 0))
    fill += [(91, I(f'buffer_atomic_add_f32 v{V_SP}, v{V_SA}, s[{SRD_Z}:{SRD_Z+3}], 0 offen', tag='sat'), 93),
             (91, I(f'buffer_atomic_add_f32 v{V_CV}, v{V_CAD}, s[{SRD_Z}:{SRD_Z+3}], 0 offen', tag='sat'), 94)]
    fill += [(96, [I(f'v_permlane32_swap_b32 v{V_CSD}, v{V_CSD+16}'), I(f'v_mov_b32 v{V_CV2}, v{V_CSD}')], 110)]
    fill += [(96, i, 112) for i in [[I(f's_cmp_lt_u32 s{S_WAVE}, 3'), I(f's_cselect_b32 s64, 1024, {OOB:#x}')], I(f'v_add_u32 v{V_CAD}, s64, v{V_CAD}')]]
    fill += [(97, i, 120) for i in wp_task_dma(WDV, SCR)]
    fill += [(123, I(f'buffer_atomic_add_f32 v{V_CV2}, v{V_CAD}, s[{SRD_Z}:{SRD_Z+3}], 0 offen', tag='sat2'), 125)]
    wpre, wrd, wst = wp_task_finish(SCR, 208, False, f's_cmp_lt_u32 s{S_TK}, 54')
    cadd = [I(f's_lshl_b32 s64, s{S_I}, 7'), I(f's_lshr_b32 s65, 0x0aff, s{S_J}'), I('s_and_b32 s65, s65, 1'),
            [I('s_cmp_eq_u32 s65, 1'), I(f's_cselect_b32 s64, s64, {OOB:#x}')],
            I(f's_lshl_b32 s65, s{S_J}, 7'), I(f's_add_u32 s65, s65, {Z_CNT_R}'),
            [I(f's_cmp_lt_u32 s{S_I}, 10'), I(f's_cselect_b32 s65, s65, {OOB:#x}')],
            [I(f's_cmp_eq_u32 s{S_WAVE}, 0'), I(f's_cselect_b32 s64, s64, {OOB:#x}'), I(f's_cselect_b32 s65, s65, {OOB:#x}')]]
    cadd += two_lane(V_SA, 's64', 's65', other=f'{OOB:#x}')
    fill += [(126, i, 150) for i in cadd]
    fill += [(155, cnt_add(V_SA, V_SP, 'c0'), 157)]
    fill += [(158, [wpre[0], wpre[1]], 170), (158, [wpre[2], wpre[3]], 170)] + [(158, i, 174) for i in wpre[4:]]
    c2 = cnt_addr(V_CV, [I(f's_lshl_b32 s64, s{S_J}, 7'), I(f's_add_u32 s64, s64, {Z_CNT_R + 4}'), [I(f's_cmp_lt_u32 s{S_I}, 10'), I(f's_cselect_b32 s64, s64, {OOB:#x}')]])
    fill += [(160, i, 180) for i in atoms(c2)]
    fill += [(174, wrd, 184)]
    fill += [(187, cnt_add(V_CV, V_CV2, 'c2'), 188)]
    fill += [(188, i, 191) for i in wst]
    pl = [I(f's_lshl_b32 s64, s{S_I}, 7'), I(f's_lshl_b32 s65, s{S_J}, 7'), I(f's_add_u32 s65, s65, {Z_CNT_R}')] + two_lane(V_CA, 's64', 's65') + [I(f'v_mov_b32 v{V_CB}, 10')]
    fill += [(200, i, 216) for i in pl]
    fill += [(219, poll_load('f0', SRD_Z, V_CA, V_PL), 222)]
    VS, VC = 198, 200
    wdc = rep_addr(195, T_WD, [I(f's_cmp_lt_u32 s{S_TK}, 54')])
    fill += [(224, i, 245) for i in wdc]
    ld = [I(f's_lshl_b32 s64, s{S_I}, 2'), I(f's_add_u32 s64, s64, s{S_WAVE}'), I('s_lshl_b32 s64, s64, 8'), I(f's_add_u32 s64, s64, {Z_STAT}'),
          I(f'v_lshlrev_b32 v{V_CA}, 3, v{V_T}'),
          I(f'buffer_load_dwordx2 v[{VS}:{VS+1}], v{V_CA}, s[{SRD_Z}:{SRD_Z+3}], s64 offen sc1'),
          I(f's_lshl_b32 s64, s{S_J}, 11'), I(f's_add_u32 s64, s64, {Z_CS}'), I(f'v_lshlrev_b32 v{V_CA}, 2, v{V_LANE}')]
    ld += [I(f'buffer_load_dword v{VC+p}, v{V_CA}, s[{SRD_Z}:{SRD_Z+3}], s64 offen offset:{p*256} sc1') for p in range(4)]
    fill += [(251, i, 258) for i in ld]
    fill += [(259, cnt_add(195, 205, 'cw'), 262)]
    CSA = 40
    fin = ln_final(VS, BMU, 56)
    for p in range(4): fin += cs_frag(VC + p, CSA + 4 * p, 56) + [I(f'v_mov_b32 v{CSA+4*p+3}, 0')]
    fin.append(I(f'v_mul_f32 v{V_RS}, v{V_RS}, v{V_RS}'))
    fill += [(298, i, 319) for i in fin]
    def sync_pre(n):
        if n == 2: return poll_check('zd', SRD_DB, V_CA, V_PL, V_CB)
        if n == 7: return poll_check('f0', SRD_Z, V_CA, V_PL, V_CB)
        return []
    tagsA = lambda n: {1: ['wb'], 4: ['sat'], 5: ['sat2'], 7: ['wps']}.get(n, [])
    def gapsA(s):
        if s < 8: return list(range(OPT['g0'])) if s % 4 < 3 else [0, 1]
        return [0, 2, 4, 6] if s % 4 < 3 else []
    afrB = lambda s, T: AFB + 24 * (s % 2) + 4 * T
    nxt = []
    for T in range(6):
        for ins in reads(10, 0, T, afrB(0, T)):
            ins.tag = f'B0{"a" if T < 3 else "b"}'; nxt.append(ins)
    main = gemm(stream, st, 0, 10, 8, lambda T: vr(ACC(T // 4, T % 4), 16), afr, lambda s: ar(XA(s)), reads, nxt, 'A',
                hooks=hooks, sync_pre=sync_pre, sync_tags=tagsA, xhook=xhook, gaps=gapsA)
    c.extend(weave(main, fill)); st(c, 'PA')
    def correction(regs, pair):
        return [I(f'v_mfma_f32_32x32x16_bf16 {rg}, {vr(pair)}, {vr(BMU + 4*t)}, {rg}') for t, rg in enumerate(regs)]
    def glu(g, up, ks, tag):
        r = []
        for i in range(0, 16, 2):
            r += [I(f'v_max_f32 v{g+i}, 0, v{g+i}'), I(f'v_max_f32 v{g+i+1}, 0, v{g+i+1}'),
                  I(f'v_mul_f32 v{up+i}, v{V_RS}, v{up+i}'), I(f'v_mul_f32 v{up+i+1}, v{V_RS}, v{up+i+1}'),
                  I(f'v_mul_f32 v{g+i}, v{g+i}, v{up+i}'), I(f'v_mul_f32 v{g+i+1}, v{g+i+1}, v{up+i+1}'),
                  I(f'v_cvt_pk_bf16_f32 v{g+i//2}, v{g+i}, v{g+i+1}')]
        r += ks
        for ch in range(2):
            r.append(I(f'buffer_store_dwordx4 {vr(g+4*ch)}, v{V_ACTL}, s[{SRD_ACT}:{SRD_ACT+3}], s{S_T0} offen offset:{ch*512} sc1', tag=tag))
        return r
    def epilogue(u, tag):
        r = []
        for T in range(2):
            if u < 2: ks = [I(f's_lshl_b32 s{S_T0}, s{S_ROLE}, 12'), I(f's_add_u32 s{S_T0}, s{S_T0}, {(2*u+T)*1024}')]
            else: ks = [I(f's_lshl_b32 s{S_T0}, s{S_ROLE}, 11'), I(f's_add_u32 s{S_T0}, s{S_T0}, {(32+T)*1024}')]
            r += glu(ACC(u, T), ACC(u, 2 + T), ks, tag)
        return r
    fillB = []
    for p in range(4):
        u, M = divmod(p, 2)
        fillB += [(1 + 2 * p, i, 24) for i in correction([vr(ACC(u, 2*M), 16), vr(ACC(u, 2*M+1), 16)], CSA + 4 * p)]
    fillB += [(10, i, 95) for i in epilogue(0, 'h01') + epilogue(1, 'h01')]
    pa = [I(f'v_lshlrev_b32 v{V_L16}, 4, v{V_LANE}'), I(f'v_add_u32 v9, 0x10000, v{V_L16}'), I(f'v_add_u32 v10, 0x20000, v{V_L16}'),
          I(f'v_add_u32 v{V_B1}, {NKS*1024}, v{V_L16}'),
          I(f's_mul_i32 s64, s{S_PC}, {NKS*5120}'), I(f's_add_u32 s64, s64, {WP_OFF}')]
    srd(pa, SRD_WP, S_WS, 's64', NKS * 5120)
    pa += [I(f's_lshl_b32 s64, s{S_PT}, 2'), I(f's_add_u32 s64, s64, s{S_WAVE}'), I(f's_mul_i32 s64, s64, {2*NKS*1024}')]
    srd(pa, SRD_PA, S_WS, 's64', 2 * NKS * 1024)
    pa += [I(f's_and_b32 s64, s{S_PC}, 3'), I('s_lshl_b32 s64, s64, 1'), I(f's_and_b32 s65, s{S_PT}, 3'), I(f's_add_u32 s{S_ROT8}, s64, s65')]
    fillB += [(106, i, 126) for i in atoms(pa)]
    pw = [I(f's_lshl_b32 s64, s{S_PT}, 7'), I(f's_add_u32 s64, s64, {T_WD}'), I(f's_lshl_b32 s65, s{S_J}, 7'), I(f's_add_u32 s65, s65, {Z_CNT_R + 4}')] + two_lane(V_CA, 's64', 's65')
    pw += [I('s_movk_i32 s64, 108'), I(f'v_mov_b32 v{V_CB}, s64'), I(f'v_writelane_b32 v{V_CB}, 10, 1'), poll_load('wd', SRD_Z, V_CA, 40)]
    fillB += [(96, i, 105) for i in pw]
    hc = cnt_addr(41, [I(f's_lshl_b32 s64, s{S_I}, 7'), I('s_add_u32 s64, s64, 4')])
    fillB += [(127, i, 138) for i in atoms(hc)] + [(140, cnt_add(41, 42, 'ch'), 141)]
    ph = [I(f's_lshl_b32 s64, s{S_PT}, 7'), I('s_add_u32 s64, s64, 4'), I(f'v_mov_b32 v{V_CA}, s64'), I(f'v_mov_b32 v{V_CB}, 8'), poll_load('h01', SRD_Z, V_CA, 40)]
    fillB += [(180, i, 188) for i in ph]
    CSB = 44
    fb = []
    for p in range(3): fb += cs_frag(61 + p, CSB + 4 * p, 56) + [I(f'v_mov_b32 v{CSB+4*p+3}, 0')]
    l2 = [I(f's_lshl_b32 s64, s{S_J}, 11'), I(f's_add_u32 s64, s64, {Z_CS + 1024}'), I(f'v_lshlrev_b32 v43, 2, v{V_LANE}')]
    l2 += [I(f'buffer_load_dword v{61+p}, v43, s[{SRD_Z}:{SRD_Z+3}], s64 offen offset:{p*256} sc1') for p in range(3)]
    fillB += [(142, i, 149) for i in l2]
    fillB += [(192, i, 212) for i in fb]
    def syncB_pre(n):
        if n == 15: return poll_check('wd', SRD_Z, V_CA, 40, V_CB)
        if n == 18: return poll_check('h01', SRD_Z, V_CA, 40, V_CB)
        return []
    def syncB_post(n):
        if n == 15:
            stream.limit = stream.n; stream.release(16)
        return []
    accB = lambda T: vr(ACC(2, T), 16) if T < 4 else ar(A_HU + 16 * (T - 4), 16)
    nxtp = p4.areads(0, V_WIN)
    mainB = gemm(stream, st, 10, 10, 6, accB, afrB, lambda s: ar(XA(s)), reads, nxtp, 'B',
                 sync_pre=syncB_pre, sync_post=syncB_post, sync_tags=lambda n: ['h01'] if n == 15 else [], gaps=lambda s: [0, 2, 4] if s % 4 < 3 else [], sg=1)
    nb0 = min(NB, 8)
    bl = []
    for s in range(nb0): bl += p4.bload(s)
    p4.nb_issued = nb0
    fillB += [(213, i, 239) for i in bl]
    c.extend(weave(mainB, sorted(fillB, key=lambda f: f[0]))); st(c, 'PB')
    fe = correction([vr(ACC(2, 0), 16), vr(ACC(2, 1), 16)], CSB) + correction([vr(ACC(2, 2), 16), vr(ACC(2, 3), 16)], CSB + 4)
    fe += correction([ar(A_HU, 16), ar(A_HU + 16, 16)], CSB + 8)
    fillP = [(0, i, 6) for i in fe]
    ee = epilogue(2, 'h2')
    hu = [I(f'v_accvgpr_read_b32 v{224+k}, a{A_HU+k}') for k in range(32)]
    hk = [I(f's_add_u32 s{S_T0}, s{S_ROLE}, 48'), I(f's_lshl_b32 s{S_T0}, s{S_T0}, 10'),
          [I(f's_cmp_lt_u32 s{S_ROLE}, 6'), I(f's_cselect_b32 s{SRD_ACT+2}, s{SRD_ACT+2}, 0')]]
    hu += glu(224, 240, flat([[x] if not isinstance(x, list) else x for x in hk]), 'h2')
    fillP += [(8, i, 110) for i in atoms(ee + hu)]
    h2c = cnt_addr(41, [I(f's_lshl_b32 s64, s{S_I}, 7'), I('s_add_u32 s64, s64, 8')])
    fillP += [(140, i, 150) for i in atoms(h2c)] + [(151, i, 156) for i in cnt_add(41, 42, 'ch2')]
    if NM:
        p2 = [I(f's_lshl_b32 s64, s{S_PT}, 7'), I('s_add_u32 s64, s64, 8'), I(f'v_mov_b32 v{V_CA}, s64'), I(f'v_mov_b32 v{V_CB}, 8'), poll_load('h2', SRD_Z, V_CA, 40)]
        fillP += [(215, i, 225) for i in p2]
    CHK = 6
    spre = lambda n: poll_check('h2', SRD_Z, V_CA, 40, V_CB) if (NM and n == CHK) else []
    gate = lambda k, s: k < 32 or s >= 4 * CHK + 3
    mainP = p4.loop(st, V_WIN, NB, gate_b=gate, sync_pre=spre, sync_tags=lambda n: ['h2'] if n == 3 else [], stamp_at=(7, 19))
    c.extend(weave(mainP, sorted(fillP, key=lambda f: f[0]))); st(c, 'P4')
    assert stream.next == stream.n and not stream.queue
    A(f's_lshl_b32 s64, s{S_PT}, 3'); A(f's_add_u32 s64, s64, s{S_PC}'); A(f's_mul_i32 s64, s64, {PART_ONE}')
    A(f's_mul_i32 s65, s{S_WAVE}, 10240'); A('s_add_u32 s64, s64, s65'); A(f's_add_u32 s64, s64, {PART_OFF}')
    srd(c, SRD_T2, S_WS, 's64', 10240)
    for k in range(10):
        if k % 4 == 0: A(f's_mov_b32 s65, {k*1024}')
        A(f'buffer_store_dwordx4 {ar(4*k)}, v{V_L16}, s[{SRD_T2}:{SRD_T2+3}], s65 offen offset:{(k%4)*1024} sc1', tag='part')
    c.extend(flat([[x] if not isinstance(x, list) else x for x in cnt_addr(41, [I(f's_lshl_b32 s64, s{S_PT}, 7'), I(f's_lshl_b32 s65, s{S_PC}, 2'),
                                                                              I('s_add_u32 s64, s64, s65'), I('s_add_u32 s64, s64, 16')])]))
    c.append(WaitTag('part')); A('s_barrier')
    c.extend(cnt_add(41, 42, 'cp'))
```

```python
from build4 import *
OPT.update(dict(se=2, dbgoff=64, sel_a=(0, 0, ['real', 'start', 'S0', 'PA', 'kvok', 'o', 'end', 'real2']), sel_m=(128, 8, ['real', 'start', 'S0', 'PA', 'PB', 'P4', 'end', 'real2'])))
build('v4_dbg.s', stamps=True)
```

```python
from common import *
from p4 import *
from mlp import wp_task_dma, wp_task_finish

H01N = {'old': 8, '5': 32, '6': 8}[MLPV]
PHI_PITCH, V_PITCH = 336, 208
LDS_V = 128 * PHI_PITCH
L_KVT = 68 * K
L_PF, L_WP = 128 * K, 136 * K
A_FR, A_XF, A_PF = 0, 64, 96
ACC = lambda T: 128 + 16 * T
S_G = S_ROLE
SRD_KVS, SRD_PH, SRD_DB = 24, 92, 96
S_X2 = S_X
V_C = V_MU
BMU, CSA = 32, 40

def softmax_head(Dr, E, P):
    r = []
    tm = Dr + 10
    M, N, U, SP, SN = tm, tm + 1, tm + 2, tm + 3, tm + 4
    x = [Dr + i for i in range(10)]
    r.append(I(f'v_max3_f32 v{M}, v{x[0]}, v{x[1]}, v{x[2]}'))
    r.append(I(f'v_max3_f32 v{N}, -v{x[0]}, -v{x[1]}, -v{x[2]}'))
    for k in (3, 5, 7):
        r.append(I(f'v_max3_f32 v{M}, v{M}, v{x[k]}, v{x[k+1]}'))
        r.append(I(f'v_max3_f32 v{N}, v{N}, -v{x[k]}, -v{x[k+1]}'))
    r.append(I(f'v_max_f32 v{M}, v{M}, v{x[9]}'))
    r.append(I(f'v_max_f32_e64 v{N}, v{N}, -v{x[9]}'))
    r.append(I(f'v_permlane32_swap_b32 v{M}, v{N}'))
    r.append(I(f'v_max_f32 v{M}, v{M}, v{N}'))
    r.append(I(f'v_mul_f32 v{M}, v{V_C}, v{M}'))
    r.append(I(f'v_mov_b32 v{U}, v{M}'))
    r.append(I(f'v_permlane32_swap_b32 v{M}, v{U}'))
    for i in range(10):
        r.append(I(f'v_fma_f32 v{E+i}, v{x[i]}, v{V_C}, -v{M}'))
        r.append(I(f'v_fma_f32 v{x[i]}, -v{x[i]}, v{V_C}, -v{U}'))
    for i in range(10):
        r.append(I(f'v_exp_f32 v{E+i}, v{E+i}'))
        r.append(I(f'v_exp_f32 v{x[i]}, v{x[i]}'))
    r.append(I(f'v_add_f32 v{SP}, v{E}, v{E+1}')); r.append(I(f'v_add_f32 v{SN}, v{x[0]}, v{x[1]}'))
    for i in range(2, 10):
        r.append(I(f'v_add_f32 v{SP}, v{SP}, v{E+i}')); r.append(I(f'v_add_f32 v{SN}, v{SN}, v{x[i]}'))
    r.append(I(f'v_permlane32_swap_b32 v{SP}, v{SN}'))
    r.append(I(f'v_add_f32 v{SP}, v{SP}, v{SN}'))
    r.append(I(f'v_rcp_f32 v{SP}, v{SP}'))
    r.append(I(f'v_mov_b32 v{SN}, v{SP}'))
    r.append(I(f'v_permlane32_swap_b32 v{SP}, v{SN}'))
    for i in range(10):
        r.append(I(f'v_mul_f32 v{E+i}, v{E+i}, v{SP}')); r.append(I(f'v_mul_f32 v{x[i]}, v{x[i]}, v{SN}'))
    for p in range(5): r.append(I(f'v_cvt_pk_bf16_f32 v{P+p}, v{E+2*p}, v{E+2*p+1}'))
    for p in range(5): r.append(I(f'v_cvt_pk_bf16_f32 v{P+5+p}, v{x[2*p]}, v{x[2*p+1]}'))
    return r

def feature_maps(acc0, dest, sink, between):
    KB, DV, E = 64, (84, 100), 116
    def phi(h):
        r = []
        for dl in range(2):
            d = vr(DV[h % 2], 16)
            r.append(I(f'v_mfma_f32_32x32x16_bf16 {d}, {ar(A_PF + 4*(2*h+dl))}, {vr(KB + 4*(h+dl))}, {"0" if dl == 0 else d}'))
        return r
    r = [I(f'v_cvt_pk_bf16_f32 v{KB+k}, v{acc0+2*k}, v{acc0+2*k+1}') for k in range(20)]
    r += phi(0)
    r += between
    for h in range(4):
        sm = softmax_head(DV[h % 2], E, dest(h))
        if h + 1 < 4: sm = sm[:12] + phi(h + 1) + sm[12:]
        r += sm
        r += sink(h)
    return r

def wo_task_setup(vb, t0):
    c = []
    A = lambda t: c.append(I(t))
    A(f's_lshl_b32 s64, s{S_I}, 3'); A(f's_add_u32 s64, s64, s{S_G}'); A('s_lshl_b32 s64, s64, 2'); A(f's_add_u32 s64, s64, s{S_WAVE}')
    A('s_lshr_b32 s89, s64, 3'); A('s_and_b32 s65, s64, 7')
    A('s_mul_i32 s66, s65, 160')
    srd(c, SRD_T, S_WO, 's66', None)
    A('s_cmp_lt_u32 s89, 20'); A(f's_cselect_b32 s{SRD_T+2}, {639*1280+160}, 0')
    A('s_lshl_b32 s67, s89, 2')
    for p in range(5):
        a, b, d, e = t0, t0 + 1, t0 + 2, t0 + 3
        A(f'v_add_u32 v{a}, {64*p}, v{V_LANE}')
        A(f'v_mul_u32_u24 v{b}, 6554, v{a}'); A(f'v_lshrrev_b32 v{b}, 16, v{b}')
        A(f'v_mul_u32_u24 v{d}, 10, v{b}'); A(f'v_sub_u32 v{a}, v{a}, v{d}')
        A(f'v_lshrrev_b32 v{d}, 3, v{b}'); A(f'v_add_u32 v{d}, s67, v{d}')
        A(f'v_and_b32 v{b}, 7, v{b}')
        A(f'v_mul_u32_u24 v{e}, 6554, v{d}'); A(f'v_lshrrev_b32 v{e}, 16, v{e}')
        A(f'v_mul_u32_u24 v{t0+4}, 10, v{e}'); A(f'v_sub_u32 v{d}, v{d}, v{t0+4}')
        A(f'v_mul_u32_u24 v{e}, 80, v{e}')
        A(f'v_lshrrev_b32 v{t0+4}, 1, v{d}'); A(f'v_mul_u32_u24 v{t0+4}, 20, v{t0+4}')
        A(f'v_and_b32 v{t0+5}, 1, v{d}'); A(f'v_lshl_add_u32 v{t0+4}, v{t0+5}, 2, v{t0+4}')
        A(f'v_lshrrev_b32 v{t0+5}, 2, v{b}'); A(f'v_lshl_add_u32 v{t0+4}, v{t0+5}, 3, v{t0+4}')
        A(f'v_mul_u32_u24 v{t0+5}, 20, v{t0+5}'); A(f'v_subrev_u32 v{t0+6}, 8, v{d}'); A(f'v_mul_u32_u24 v{t0+6}, 40, v{t0+6}')
        A(f'v_add_u32 v{t0+5}, v{t0+5}, v{t0+6}'); A(f'v_add_u32 v{t0+5}, 16, v{t0+5}')
        c.append([I(f'v_cmp_gt_u32 vcc, 8, v{d}'), I(f'v_and_b32 v{b}, 3, v{b}'), I(f'v_cndmask_b32 v{t0+4}, v{t0+5}, v{t0+4}, vcc')])
        A(f'v_add_u32 v{e}, v{e}, v{b}'); A(f'v_add_u32 v{e}, v{e}, v{t0+4}')
        A(f'v_mul_u32_u24 v{e}, 1280, v{e}'); A(f'v_lshl_add_u32 v{e}, v{a}, 4, v{e}')
        A(f'v_subrev_u32 v{vb+p}, {(p % 4)*1024}, v{e}')
    A(f's_mul_i32 s65, s65, {NKS}'); A('s_add_u32 s65, s65, s89'); A('s_add_u32 s65, s65, 54'); A('s_mul_i32 s65, s65, 5120'); A(f's_add_u32 s65, s65, {WP_OFF}')
    A(f's_add_u32 s90, s{S_WS}, s65'); A(f's_addc_u32 s91, s{S_WS+1}, 0')
    return c

def att_role(c0, st):
    c = c0
    A = lambda t, **k: c.append(I(t, **k))
    NM, NB = OPT['nm'], OPT['nb']
    V_KVD, V_QD = 16, 21
    V_KVA, V_QA = 24, 26
    V_CA, V_CB = 30, 31
    V_W0, V_W1, V_W2, V_W3 = 8, 9, 10, 11
    S_W3 = 74
    srd(c, SRD_W, S_WQKV, None, D * 3 * D * 2)
    A(f's_mul_i32 s{S_T0}, s{S_G}, 160'); A(f's_mul_i32 s{S_T1}, s{S_WAVE}, {16*3840}'); A(f's_add_u32 s{S_T0}, s{S_T0}, s{S_T1}')
    A(f's_mul_i32 s{S_W5K}, s{S_WAVE}, 5120'); A(f's_mul_i32 s{S_W3}, s{S_WAVE}, 3072')
    for p in range(5):
        A(f'v_add_u32 v32, {64*p}, v{V_LANE}')
        A('v_mul_u32_u24 v33, 3277, v32'); A('v_lshrrev_b32 v33, 16, v33')
        A('v_mul_u32_u24 v34, 20, v33'); A('v_sub_u32 v34, v32, v34')
        A('v_cmp_gt_u32 vcc, 10, v34')
        A('v_lshlrev_b32 v34, 4, v34')
        A('v_mul_u32_u24 v33, 3840, v33')
        A(f'v_add_u32 v35, {1280}, v34'); A(f'v_add_u32 v36, {2560-160}, v34')
        A('v_cndmask_b32 v34, v36, v35, vcc')
        A('v_add_u32 v33, v33, v34'); A(f'v_add_u32 v33, s{S_T0}, v33')
        A(f'v_subrev_u32 v{V_KVD+p}, {(p % 4)*1024}, v33')
    for p in range(3):
        A(f'v_add_u32 v32, {64*p}, v{V_LANE}')
        A('v_mul_u32_u24 v33, 5462, v32'); A('v_lshrrev_b32 v33, 16, v33')
        A('v_mul_u32_u24 v34, 12, v33'); A('v_sub_u32 v34, v32, v34')
        A('v_mul_u32_u24 v33, 3840, v33'); A('v_lshl_add_u32 v33, v34, 4, v33'); A(f'v_add_u32 v33, s{S_T0}, v33')
        A(f'v_subrev_u32 v{V_QD+p}, {p*1024}, v33')
    TOUCH = OPT.get('touch', 0)
    V_TX, V_TW, V_TD, SRD_TX = 4, 5, 0, 28
    def touch(n):
        return [I(f's_mul_i32 s72, s{S_KB+n}, 1920'),
                I(f'buffer_load_dword v{V_TD}, v{V_TW}, s[{SRD_W}:{SRD_W+3}], s72 offen', tag='tch'),
                I(f'buffer_load_dword v{V_TD}, v{V_TX}, s[{SRD_TX}:{SRD_TX+3}], s{S_KB+n} offen', tag='tch')]
    if TOUCH:
        A(f's_and_b32 s64, s{S_I}, 7'); A('s_lshl_b32 s64, s64, 3'); A(f's_lshl_b32 s65, s{S_WAVE}, 1'); A('s_add_u32 s64, s64, s65')
        A(f'v_lshrrev_b32 v34, 4, v{V_LANE}'); A('v_and_b32 v35, 1, v34'); A('v_add_u32 v35, s64, v35'); A('v_mul_u32_u24 v35, 3840, v35')
        A(f'v_and_b32 v36, 3, v{V_LANE}'); A('v_lshl_add_u32 v35, v36, 6, v35')
        A(f'v_bfe_u32 v36, v{V_LANE}, 2, 2'); A('v_mul_u32_u24 v37, 1280, v36'); A('v_add_u32 v35, v35, v37')
        A(f's_mul_i32 s64, s{S_G}, 160'); A('s_and_b32 s64, s64, 0xffffff80'); A('v_add_u32 v35, s64, v35')
        A('v_cmp_gt_u32 vcc, 3, v36'); A(f'v_mov_b32 v37, {OOB:#x}'); A('v_cndmask_b32 v35, v37, v35, vcc')
        A(f'v_cmp_gt_u32 vcc, 32, v{V_LANE}'); A(f'v_cndmask_b32 v{V_TW}, v37, v35, vcc')
        c.extend(touch_x_setup(V_TX, 34))
        A(f's_mul_i32 s64, s{S_I}, {128*1280}')
        srd(c, SRD_TX, S_X, 's64', 128 * 1280)
        for n in range(2, 10): c.extend(kb_entry(n))
        for n in range(TOUCH): c.extend(touch(n))
    ring = Ring()
    for n in range(10): ring.add_at(SLOT_A[n % 3], 32 * K)
    NE, LA = OPT['ea'], OPT['la']
    p4stages = [(('rot', n, NE, 0), 4) for n in range(NE)]
    KLATE = 4 * NE
    p4stages += [(54 + 4 * k, 4) for k in range(5)]
    p4stages += [(54 - LA + 4 * k, min(4, LA - 4 * k)) for k in range((LA + 3) // 4)]
    qorder = (4, 5, 6, 7, 0, 1, 2, 3)
    for k in range(len(p4stages)): ring.add_at(QSLOT[qorder[k % 8]], 20 * K, not_before=9)
    def pieces(n):
        if n >= 10: return p4.pieces(n - 10)
        base = ring.alloc[n][0]; r = []
        for p in range(5):
            g = [I(f's_mul_i32 s{S_SOFF2}, s{S_KB+n}, 1920')] if p == 0 else []
            g.append(dma(f'buffer_load_dwordx4 v{V_KVD+p}, s[{SRD_W}:{SRD_W+3}], s{S_SOFF2} offen offset:{(p%4)*1024} lds', (S_W5K, base + (4096 if p == 4 else 0)), tag=f'w{n}'))
            r.append(g)
        for p in range(3):
            r.append([dma(f'buffer_load_dwordx4 v{V_QD+p}, s[{SRD_W}:{SRD_W+3}], s{S_SOFF2} offen offset:{p*1024} lds', (S_W3, base + 20480), tag=f'w{n}')])
        return r
    stream = Stream(ring, pieces)
    stream.limit = 10
    V_L16, V_B1 = 12, 15
    V_WIN = (12, 13, 14)
    SRD_WP, SRD_PA = SRD_X, SRD_W2
    PACC = lambda ct, tg: 128 + 8 * ct + 4 * tg
    p4 = P4(stream, 10, p4stages,
            BF=lambda s, tg: ar(8 * (s % NB) + 4 * tg), AF=lambda s, ct: ar(96 + 20 * (s % 2) + 4 * ct),
            ACC=lambda ct, tg: vr(PACC(ct, tg)), v_l16=V_L16, v_b0=V_L16, v_b1=V_B1, srd_wp=SRD_WP, srd_act=SRD_PA, s_ao=70, s_wo=72)
    p0 = pieces(0)
    c.extend(flat(p0[:4]))
    st(c, 'iss')
    zero_stores(c, 40)
    if not TOUCH:
        for n in range(2, 10): c.extend(kb_entry(n))
    x_read_addrs(c)
    A(f's_mov_b32 s{S_MASK}, 0xffff0000')
    A(f'v_bfe_u32 v32, v{V_LANE}, 2, 2'); A(f'v_lshl_add_u32 v32, v{V_HH}, 3, v32')
    A(f'v_bfe_u32 v33, v{V_LANE}, 4, 1'); A('v_lshlrev_b32 v33, 5, v33')
    A(f'v_and_b32 v34, 3, v{V_LANE}'); A('v_lshl_add_u32 v33, v34, 3, v33')
    for (reg, pitch) in ((V_KVA, 320), (V_QA, 192)):
        A(f'v_mul_u32_u24 v34, {pitch}, v32'); A(f'v_add_u32 v{reg}, v34, v33'); A(f'v_add_u32 v{reg+1}, 0x10000, v{reg}')
    A(f's_lshl_b32 s{S_T0}, s{S_G}, 2'); A(f's_add_u32 s{S_T0}, s{S_T0}, s{S_WAVE}'); A(f's_mul_i32 s{S_T0}, s{S_T0}, 800')
    srd(c, SRD_PH, S_WPHI, f's{S_T0}', 800)
    A(f'v_lshlrev_b32 v32, 1, v{V_T}')
    A(f'v_subrev_u32 v33, 4, v32')
    A(f'v_cmp_gt_u32 vcc, 18, v{V_T}'); A('v_cndmask_b32 v33, v33, v32, vcc')
    A(f'v_and_b32 v34, 30, v{V_T}'); A('v_cmp_eq_u32 s[66:67], 20, v34'); A('s_nop 1'); A('s_or_b64 vcc, vcc, s[66:67]')
    A(f'v_mov_b32 v35, {OOB:#x}'); A('v_cndmask_b32 v33, v35, v33, vcc')
    A(f's_lshl_b32 s{S_T0}, s{S_WAVE}, 2')
    PFO, PFV = 108, 112
    for dl in range(2):
        for eh in range(2):
            A(f'v_lshlrev_b32 v36, 2, v{V_HH}'); A(f'v_add_u32 v36, {16*dl + 8*eh}, v36'); A(f'v_subrev_u32 v36, s{S_T0}, v36')
            A('v_cmp_gt_u32 vcc, 20, v36')
            A('v_mul_u32_u24 v37, 40, v36'); A('v_add_u32 v37, v37, v33')
            A(f'v_cndmask_b32 v{PFO + 2*dl + eh}, v35, v37, vcc')
    pf_loads = [I(f'buffer_load_ushort v{PFV + 8*dl + e}, v{PFO + 2*dl + (e >> 2)}, s[{SRD_PH}:{SRD_PH+3}], 0 offen offset:{(e & 3)*40}', tag='pf')
                for dl in range(2) for e in range(8)]
    act_lane_offset(c)
    srd(c, SRD_Z, S_WS, Z_OFF, Z_SIZE)
    p4_ids(c)
    A(f's_mul_i32 s{S_T0}, s{S_G}, 20480'); A(f's_add_u32 s{S_T0}, s{S_T0}, {Z_OFF + Z_KVS}')
    srd(c, SRD_KVS, S_WS, f's{S_T0}', 20480)
    ONE, V_PL, XT, STT, V_CSD, V_CF0, V_CF1 = 32, 37, 40, 56, 64, 96, 100
    V_SP, V_SA, V_CV, V_CAD = 28, 29, 104, 105
    V_A0, V_A1, V_A2 = 106, 107, 36
    S_CST = 75
    A(f's_lshl_b32 s{S_T0}, s{S_WAVE}, 6')
    A(f'v_add_u32 v{V_A0}, s{S_T0}, v{V_KVA}')
    A(f's_add_u32 s{S_T1}, s{S_T0}, {20480 - 64}')
    A(f's_mov_b32 s{S_CST}, 3072'); A('s_movk_i32 s64, 768')
    A(f's_cmp_eq_u32 s{S_WAVE}, 0'); A('s_cselect_b64 vcc, -1, 0'); A(f's_cselect_b32 s{S_CST}, 5120, s{S_CST}'); A('s_cselect_b32 s64, 1280, s64')
    A(f'v_add_u32 v32, 256, v{V_KVA}'); A(f'v_add_u32 v33, s{S_T1}, v{V_QA}')
    A(f'v_cndmask_b32 v{V_A1}, v33, v32, vcc'); A(f'v_add_u32 v{V_A2}, s64, v{V_A1}')
    for k in range(4): A(f'v_mov_b32 v{ONE+k}, 0x3f803f80')
    def reads(n, sp, T, dst):
        base = ring.alloc[n][0]; r = []
        for j in range(2):
            if T < 5: off, reg = base + sp * 5120 + j * 1280 + T * 64, V_KVA
            else: off, reg = base + 20480 + sp * 3072 + j * 768 + (T - 5) * 64, V_QA
            r.append(I(f'ds_read_b64_tr_b16 {ar(dst+2*j, 2)}, v{reg + (off >> 16)} offset:{off & 0xffff}'))
        return r
    afr = lambda s, T: A_FR + 32 * (s % 2) + 4 * T
    XA = lambda s: A_XF + 16 * ((s // 4) % 2) + 4 * (s % 4)
    st(c, 'setup')
    c.extend(flat(p0[4:]))
    c.extend(flat(x_dma(1)))
    p1 = pieces(1)
    c.extend(flat(p1[:OPT['p1']]))
    stream.next = 2
    stream.release(0)
    stream.push_front(p1[OPT['p1']:])
    stream.queue += [pf_loads[4*k:4*k+4] for k in range(4)]
    c.append(WaitTag(['x0', 'w0', 'zero'])); A('s_barrier')
    st(c, 'S0')
    c.append(x_read(0, 0, ar(XA(0)), tag='A0a'))
    for T in range(8):
        for ins in reads(0, 0, T, afr(0, T)):
            ins.tag = f'A0{"a" if T < 4 else "b"}'; c.append(ins)
    c.extend(zero_flag(60))
    hooks = {}
    def add(key, lst): hooks.setdefault(key, []).extend(lst)
    for n in range(10):
        for sub in range(1, 4):
            add((4 * n, sub - 1), [x_read(n, sub, ar(XA(4 * n + sub)), tag=f'A{4*n+sub}a')])
        if n + 2 < 10:
            if n == 0: hooks[('cb', 1, 0)] = lambda: stream.insert_after('w1', x_dma(2))
            else: hooks[('cb', 4 * n + 1, 0)] = (lambda nn: (lambda: stream.push_front(x_dma(nn))))(n + 2)
    if TOUCH:
        for n in range(10):
            if n + TOUCH < 10: add((4 * n + 3, 4), touch(n + TOUCH))
    for sub in range(4): add((0, sub), [x_read(0, sub, vr(XT + 4 * sub))])
    xhook = lambda s: [x_read(s // 4, 0, ar(XA(s)), tag=f'A{s}a')] if s % 4 == 0 else []
    fill = []
    for sp in range(4):
        g0 = 4 + 6 * sp
        for j in range(2): fill.append((g0, I(f'ds_read_b64_tr_b16 v[{V_CF0+2*j}:{V_CF0+2*j+1}], v{V_A0} offset:{sp*5120 + j*1280}'), 25))
        fill.append((g0, I(f'ds_read_b64_tr_b16 v[{V_CF1}:{V_CF1+1}], v{V_A1}'), 25))
        fill.append((g0, I(f'ds_read_b64_tr_b16 v[{V_CF1+2}:{V_CF1+3}], v{V_A2}'), 25))
        if sp < 3:
            fill.append((g0, I(f'v_add_u32 v{V_A1}, s{S_CST}, v{V_A1}'), 25)); fill.append((g0, I(f'v_add_u32 v{V_A2}, s{S_CST}, v{V_A2}'), 25))
        for t, f in enumerate((V_CF0, V_CF1)):
            d = V_CSD + 16 * t
            fill.append((g0 + 2, I(f'v_mfma_f32_32x32x16_bf16 {vr(d,16)}, {vr(ONE)}, {vr(f)}, {"0" if sp == 0 else vr(d,16)}'), 25))
    fill += [(32, [I(f'v_permlane32_swap_b32 v{V_CSD}, v{V_CSD+16}'), I(f'v_mov_b32 v{V_CV}, v{V_CSD}')], 50)]
    zd = [I(f'v_and_b32 v{V_CA}, 15, v{V_LANE}'), I(f'v_lshlrev_b32 v{V_CA}, 2, v{V_CA}'), I(f'v_mov_b32 v{V_CB}, 1')]
    srd(zd, SRD_DB, S_DBG, OPT.get('dbgoff', 0), 64); zd = atoms(zd)
    zd.append(poll_load('zd', SRD_DB, V_CA, V_PL))
    fill += [(33, i, 50) for i in zd]
    fill += [(34, i, 72) for i in stat_partial(XT, STT, V_SP)]
    fill += [(62, i, 80) for i in atoms(stat_addr(V_SA))]
    cad = [I(f's_lshl_b32 s64, s{S_J}, 11'), I(f's_add_u32 s64, s64, {Z_CS}'), I(f's_lshl_b32 s65, s{S_WAVE}, 8'), I('s_add_u32 s64, s64, s65'),
           [I(f's_cmp_lt_u32 s{S_I}, 10'), I(f's_cselect_b32 s64, s64, {OOB:#x}')],
           I(f'v_lshlrev_b32 v{V_CAD}, 2, v{V_LANE}'), I(f'v_add_u32 v{V_CAD}, s64, v{V_CAD}')]
    fill += [(62, i, 86) for i in cad]
    fill += [(91, I(f'buffer_atomic_add_f32 v{V_SP}, v{V_SA}, s[{SRD_Z}:{SRD_Z+3}], 0 offen', tag='sat'), 93),
             (91, I(f'buffer_atomic_add_f32 v{V_CV}, v{V_CAD}, s[{SRD_Z}:{SRD_Z+3}], 0 offen', tag='sat'), 94)]
    pfw = [I(f's_lshl_b32 s64, s{S_WAVE}, 11'), I(f's_add_u32 s64, s64, {L_PF}'), I(f'v_lshlrev_b32 v{V_A0}, 4, v{V_LANE}'), I(f'v_add_u32 v{V_A0}, s64, v{V_A0}')]
    for dl in range(2):
        for p in range(4): pfw.append(I(f'v_lshl_or_b32 v{PFV+4*dl+p}, v{PFV+8*dl+2*p+1}, 16, v{PFV+8*dl+2*p}'))
    for dl in range(2): pfw.append(I(f'ds_write_b128 v{V_A0}, {vr(PFV+4*dl)} offset:{dl*1024}'))
    fill += [(96, i, 118) for i in pfw]
    WOV = 40
    wos = atoms(wo_task_setup(WOV, 64))
    fill += [(100, i, 135) for i in wos[:len(wos)//2]]
    pfr = [I(f'v_lshlrev_b32 v{V_A1}, 4, v{V_LANE}'), I(f'v_add_u32 v{V_A1}, {L_PF}, v{V_A1}')]
    pfr += [I(f'ds_read_b128 {ar(A_PF+4*f)}, v{V_A1} offset:{f*1024}') for f in range(8)]
    fill += [(128, i, 146) for i in pfr]
    cadd = [I(f's_lshl_b32 s69, s{S_I}, 7'), I(f's_lshr_b32 s68, 0x0aff, s{S_J}'), I('s_and_b32 s68, s68, 1'),
            [I('s_cmp_eq_u32 s68, 1'), I(f's_cselect_b32 s69, s69, {OOB:#x}')],
            I(f's_lshl_b32 s68, s{S_J}, 7'), I(f's_add_u32 s68, s68, {Z_CNT_R}'),
            [I(f's_cmp_lt_u32 s{S_I}, 10'), I(f's_cselect_b32 s68, s68, {OOB:#x}')],
            [I(f's_cmp_eq_u32 s{S_WAVE}, 0'), I(f's_cselect_b32 s69, s69, {OOB:#x}'), I(f's_cselect_b32 s68, s68, {OOB:#x}')]]
    cadd += two_lane(V_SA, 's69', 's68', other=f'{OOB:#x}')
    fill += [(130, i, 152) for i in cadd]
    fill += [(155, cnt_add(V_SA, V_SP, 'c0'), 157)]
    fill += [(156, i, 185) for i in wos[len(wos)//2:]]
    fill += [(187, i, 191) for i in wp_task_dma(WOV, L_WP)]
    wpre, wrd, wst = wp_task_finish(L_WP, 64, True, 's_cmp_lt_u32 s89, 20')
    fill += [(192, [wpre[0], wpre[1]], 200), (192, [wpre[2], wpre[3]], 200)] + [(192, i, 205) for i in wpre[4:]]
    pl = [I(f's_lshl_b32 s64, s{S_I}, 7'), I(f's_lshl_b32 s65, s{S_J}, 7'), I(f's_add_u32 s65, s65, {Z_CNT_R}')] + two_lane(V_CA, 's64', 's65') + [I(f'v_mov_b32 v{V_CB}, 10')]
    fill += [(200, i, 216) for i in pl]
    fill += [(219, poll_load('f0', SRD_Z, V_CA, V_PL), 222)]
    fill += [(236, wrd, 248)]
    VS, VC = 100, 102
    ld = [I(f's_lshl_b32 s64, s{S_I}, 2'), I(f's_add_u32 s64, s64, s{S_WAVE}'), I('s_lshl_b32 s64, s64, 8'), I(f's_add_u32 s64, s64, {Z_STAT}'),
          I(f'v_lshlrev_b32 v{V_CA}, 3, v{V_T}'),
          I(f'buffer_load_dwordx2 v[{VS}:{VS+1}], v{V_CA}, s[{SRD_Z}:{SRD_Z+3}], s64 offen sc1'),
          I(f's_lshl_b32 s64, s{S_J}, 11'), I(f's_add_u32 s64, s64, {Z_CS}'), I(f'v_lshlrev_b32 v{V_CA}, 2, v{V_LANE}')]
    ld += [I(f'buffer_load_dword v{VC+p}, v{V_CA}, s[{SRD_Z}:{SRD_Z+3}], s64 offen offset:{p*256} sc1') for p in range(4)]
    fill += [(251, i, 258) for i in ld]
    fill += [(259, i, 264) for i in wst]
    woc = rep_addr(V_SP, T_WO, [I('s_cmp_lt_u32 s89, 20')])
    fill += [(266, i, 290) for i in woc]
    fin = ln_final(VS, BMU, 56)
    for p in range(4): fin += cs_frag(VC + p, CSA + 4 * p, 56) + [I(f'v_mov_b32 v{CSA+4*p+3}, 0')]
    fin.append(I(f'v_mul_f32 v{V_C}, 0x3fb8aa3b, v{V_RS}'))
    fill += [(298, i, 319) for i in fin]
    def sync_pre(n):
        if n == 2: return poll_check('zd', SRD_DB, V_CA, V_PL, V_CB)
        if n == 7: return poll_check('f0', SRD_Z, V_CA, V_PL, V_CB)
        return []
    tagsA = lambda n: {2: ['pf'], 4: ['sat']}.get(n, [])
    def gapsA(s):
        if s < 8: return list(range(OPT['g0'])) if s % 4 < 3 else [0, 1]
        return [0, 2, 4, 6] if s % 4 < 3 else []
    main = gemm(stream, st, 0, 10, 8, lambda T: vr(ACC(T), 16), afr, lambda s: ar(XA(s)), reads, [], 'A',
                hooks=hooks, sync_pre=sync_pre, sync_tags=tagsA, xhook=xhook, final_sync=False, gaps=gapsA)
    c.extend(weave(main, fill)); st(c, 'PA')
    for T in (0, 1, 2, 3, 4, 5, 6, 7):
        A(f'v_mfma_f32_32x32x16_bf16 {vr(ACC(T),16)}, {vr(CSA + 4*(T % 4))}, {vr(BMU + 4*(T // 4))}, {vr(ACC(T),16)}')
    KACC, VACC, QACC = ACC(0), ACC(0) + 40, ACC(5)
    pre = [I(f'v_mul_u32_u24 v60, {PHI_PITCH}, v{V_T}'), I(f's_mul_i32 s{S_T0}, s{S_WAVE}, {32*PHI_PITCH}'), I(f'v_add_u32 v60, s{S_T0}, v60'),
           I(f'v_lshl_add_u32 v{V_W0}, v{V_HH}, 4, v60'), I(f'v_lshl_add_u32 v{V_W1}, v{V_HH}, 3, v60'),
           I(f'v_mul_u32_u24 v60, {V_PITCH}, v{V_T}'), I(f's_mul_i32 s{S_T0}, s{S_WAVE}, {32*V_PITCH}'), I(f's_add_u32 s{S_T0}, s{S_T0}, {LDS_V}'),
           I(f'v_add_u32 v60, s{S_T0}, v60'),
           I(f'v_lshl_add_u32 v{V_W2}, v{V_HH}, 3, v60'), I(f'v_lshl_add_u32 v{V_W3}, v{V_HH}, 4, v60')]
    c.extend(pre)
    A(f's_lshl_b32 s64, s{S_PT}, 7'); A(f's_add_u32 s65, s64, {T_WO}'); A(f's_add_u32 s64, s64, {T_WD}')
    c.extend(two_lane(V_CA, 's64', 's65'))
    A('s_movk_i32 s64, 108'); A(f'v_mov_b32 v{V_CB}, s64'); A(f'v_writelane_b32 v{V_CB}, 40, 1')
    c.append(poll_load('wd', SRD_Z, V_CA, 63))
    ep = [WaitTag('wps', lgkm0=True), I('s_barrier')] + cnt_add(V_SP, V_SA, 'cw')
    for b in range(10):
        a = VACC + 4 * b; t = 56 + 2 * (b % 2)
        ep += [I(f'v_mul_f32 v{a+k}, v{V_RS}, v{a+k}') for k in range(4)]
        ep += [I(f'v_cvt_pk_bf16_f32 v{t}, v{a}, v{a+1}'), I(f'v_cvt_pk_bf16_f32 v{t+1}, v{a+2}, v{a+3}')]
        Q0 = 2 * b
        off = 8 * Q0 + 8 * (Q0 // 5)
        reg = V_W3 if (2 * b + 1) % 5 == 0 else V_W2
        ep.append(I(f'ds_write_b64 v{reg}, v[{t}:{t+1}] offset:{off}'))
    ep += [I('v_mov_b32 v60, 0x3f803f80'), I('v_mov_b32 v61, 0x3f803f80'),
           I(f'v_mul_u32_u24 v62, 88, v{V_HH}'), I(f'v_add_u32 v62, v62, v{V_W2}')]
    ep += [I(f'ds_write_b64 v62, v[60:61] offset:{40}'), I(f'ds_write_b64 v62, v[60:61] offset:{88}')]
    KP = 44
    def ksink(h):
        return [I(f'ds_write_b128 v{V_W0}, {vr(KP)} offset:{h*80}'),
                I(f'ds_write_b128 v{V_W0}, {vr(KP+4)} offset:{h*80+32}'),
                I(f'ds_write_b64 v{V_W1}, v[{KP+8}:{KP+9}] offset:{h*80+64}')]
    c.extend(feature_maps(KACC, lambda h: KP, ksink, ep)); st(c, 'kphi')
    kvpre = [I(f'v_bfe_u32 v32, v{V_LANE}, 2, 2'), I(f'v_lshl_add_u32 v32, v{V_HH}, 3, v32'),
           I(f'v_and_b32 v33, 3, v{V_LANE}'), I(f'v_bfe_u32 v34, v{V_LANE}, 4, 1'),
           I(f'v_mul_u32_u24 v35, {PHI_PITCH}, v32'), I(f's_mul_i32 s{S_T0}, s{S_WAVE}, 80'), I(f'v_add_u32 v35, s{S_T0}, v35'),
           I(f'v_lshl_add_u32 v35, v33, 3, v35'),
           I(f'v_lshl_add_u32 v36, v34, 5, v35'),
           I(f'v_add_u32 v37, 64, v35'),
           I(f'v_mul_u32_u24 v35, {V_PITCH}, v32'), I(f's_mul_i32 s{S_T0}, s{S_WAVE}, 48'), I(f's_add_u32 s{S_T0}, s{S_T0}, {LDS_V}'),
           I(f'v_add_u32 v35, s{S_T0}, v35'),
           I('v_lshlrev_b32 v38, 3, v33'),
           I('v_min_u32 v39, 1, v33'), I('v_lshlrev_b32 v39, 3, v39'), I('v_add_u32 v39, 32, v39'),
           I('v_cmp_eq_u32 vcc, 0, v34'), I('s_nop 1'), I('v_cndmask_b32 v38, v39, v38, vcc'),
           I(f'v_add_u32 v38, v35, v38')]
    c.extend(kvpre)
    st(c, 'kvpre')
    c.extend(poll_check('wd', SRD_Z, V_CA, 63, V_CB))
    st(c, 'wdok')
    A('s_waitcnt lgkmcnt(0)'); A('s_barrier')
    FA = 64
    def kvreads(k):
        b = FA + 12 * (k % 2); r = []
        for j in range(2):
            r.append(I(f'ds_read_b64_tr_b16 v[{b+2*j}:{b+2*j+1}], v36 offset:{k*16*PHI_PITCH + j*4*PHI_PITCH}'))
            r.append(I(f'ds_read_b64_tr_b16 v[{b+4+2*j}:{b+5+2*j}], v37 offset:{k*16*PHI_PITCH + j*4*PHI_PITCH}'))
            r.append(I(f'ds_read_b64_tr_b16 v[{b+8+2*j}:{b+9+2*j}], v38 offset:{k*16*V_PITCH + j*4*V_PITCH}'))
        return r
    KV0, KV1 = 96, 112
    c.extend(kvreads(0))
    for k in range(8):
        b = FA + 12 * (k % 2)
        if k + 1 < 8: c.extend(kvreads(k + 1))
        A(f'v_mfma_f32_32x32x16_bf16 {vr(KV0,16)}, {vr(b)}, {vr(b+8)}, {"0" if k == 0 else vr(KV0,16)}')
        A(f'v_mfma_f32_32x32x16_bf16 {vr(KV1,16)}, {vr(b+4)}, {vr(b+8)}, {"0" if k == 0 else vr(KV1,16)}')
    st(c, 'kvm')
    A(f'v_lshlrev_b32 v40, 2, v{V_T}'); A(f'v_lshl_add_u32 v40, v{V_HH}, 9, v40')
    A(f's_mul_i32 s{S_T0}, s{S_WAVE}, 5120'); A(f'v_add_u32 v40, s{S_T0}, v40')
    A(f'v_cmp_ge_u32 vcc, 20, v{V_T}'); A(f'v_mov_b32 v41, {OOB:#x}'); A('v_cndmask_b32 v40, v41, v40, vcc')
    A('v_add_u32 v41, 4096, v40')
    for i in range(16):
        A(f'buffer_atomic_add_f32 v{KV0+i}, v40, s[{SRD_KVS}:{SRD_KVS+3}], 0 offen offset:{(8*(i>>2) + (i&3))*128}', tag='kvat')
    for i in range(4):
        A(f'buffer_atomic_add_f32 v{KV1+i}, v41, s[{SRD_KVS}:{SRD_KVS+3}], 0 offen offset:{i*128}', tag='kvat')
    st(c, 'kvat')
    PQ = 128
    zz = [I(f'v_mov_b32 v{PQ+12*h+10+z}, 0') for h in range(4) for z in range(2)]
    qe = feature_maps(QACC, lambda h: PQ + 12 * h, lambda h: [], zz)
    kvc = cnt_addr(42, [I(f's_lshl_b32 s64, s{S_J}, 7'), I(f's_add_u32 s64, s64, {Z_CNT_R + 4}')])
    arrive = kvc + [WaitTag('kvat'), I('s_barrier')] + cnt_add(42, 43, 'arr')
    cut = OPT.get('arr_cut', 250)
    c.extend(qe[:cut] + arrive + qe[cut:]); st(c, 'qphi')
    A(f's_lshl_b32 s64, s{S_J}, 7'); A(f's_add_u32 s64, s64, {Z_CNT_R + 4}'); A(f's_lshl_b32 s65, s{S_PT}, 7'); A('s_add_u32 s65, s65, 4')
    c.extend(two_lane(V_CA, 's64', 's65'))
    A(f'v_mov_b32 v{V_CB}, 16'); A(f'v_writelane_b32 v{V_CB}, {H01N}, 1')
    c.append(poll_load('kv', SRD_Z, V_CA, 44))
    pa = [I(f'v_lshlrev_b32 v{V_L16}, 4, v{V_LANE}'), I(f'v_add_u32 v13, 0x10000, v{V_L16}'), I(f'v_add_u32 v14, 0x20000, v{V_L16}'),
          I(f'v_add_u32 v{V_B1}, {NKS*1024}, v{V_L16}'),
          I(f's_mul_i32 s64, s{S_PC}, {NKS*5120}'), I(f's_add_u32 s64, s64, {WP_OFF}')]
    srd(pa, SRD_WP, S_WS, 's64', NKS * 5120)
    pa += [I(f's_lshl_b32 s64, s{S_PT}, 2'), I(f's_add_u32 s64, s64, s{S_WAVE}'), I(f's_mul_i32 s64, s64, {2*NKS*1024}')]
    srd(pa, SRD_PA, S_WS, 's64', 2 * NKS * 1024)
    pa += rot_code(NE)
    c.extend(pa)
    stream.limit = 10 + min(4, NE); stream.release(10)
    c.extend(stream.flush())
    c.extend(poll_check('kv', SRD_Z, V_CA, 44, V_CB))
    A('s_barrier')
    st(c, 'kvok')
    A(f'v_min_u32 v32, 20, v{V_T}'); A('v_lshlrev_b32 v32, 2, v32'); A(f's_mul_i32 s{S_T0}, s{S_WAVE}, 5120'); A(f'v_add_u32 v32, s{S_T0}, v32')
    A(f'v_lshl_add_u32 v33, v{V_HH}, 10, v32')
    A(f'v_lshl_add_u32 v34, v{V_HH}, 9, v32'); A('v_add_u32 v34, 4096, v34')
    KL = 88
    for s in range(2):
        for e in range(8):
            A(f'buffer_load_dword v{KL+8*s+e}, v33, s[{SRD_KVS}:{SRD_KVS+3}], 0 offen offset:{(16*s+e)*128} sc1')
    for e in range(4):
        A(f'buffer_load_dword v{KL+16+e}, v34, s[{SRD_KVS}:{SRD_KVS+3}], 0 offen offset:{e*128} sc1')
    nb0 = min(NB, KLATE, 8)
    p4.nb_issued = nb0
    for s in range(nb0 // 2): c.extend(p4.bload(s))
    KC = 108
    for p in range(10): A(f'v_cvt_pk_bf16_f32 v{KC+p}, v{KL+2*p}, v{KL+2*p+1}')
    A(f'v_mov_b32 v{KC+10}, 0'); A(f'v_mov_b32 v{KC+11}, 0')
    A(f's_mul_i32 s{S_T0}, s{S_WAVE}, 3072'); A(f's_add_u32 s{S_T0}, s{S_T0}, {L_KVT - 65536}')
    A(f'v_add_u32 v120, s{S_T0}, v13'); A(f'v_add_u32 v121, {L_KVT - 65536}, v13')
    for s in range(3): A(f'ds_write_b128 v120, {vr(KC+4*s)} offset:{s*1024}')
    st(c, 'kvl')
    A('s_waitcnt lgkmcnt(0)'); A('s_barrier')
    FR, DD, OP, TL = 32, 176, 240, 80
    for h in range(4):
        for s in range(3): A(f'ds_read_b128 {vr(FR+12*h+4*s)}, v121 offset:{h*3072+s*1024}')
    for s in range(nb0 // 2, nb0): c.extend(p4.bload(s))
    for h in range(4):
        for s in range(3):
            dd = vr(DD + 16 * h, 16)
            A(f'v_mfma_f32_32x32x16_bf16 {dd}, {vr(FR+12*h+4*s)}, {vr(PQ+12*h+4*s)}, {"0" if s == 0 else dd}')
    for h in range(4):
        d = DD + 16 * h
        A(f'v_add_f32 v122, 0x358637bd, v{d+12}'); A('v_rcp_f32 v122, v122')
        for i in range(12): A(f'v_mul_f32 v{d+i}, v{d+i}, v122')
        for p in range(4): A(f'v_cvt_pk_bf16_f32 v{OP+4*h+p}, v{d+2*p}, v{d+2*p+1}')
        tl = TL + 4 * (h >> 1) + 2 * (h & 1)
        for p in range(2): A(f'v_cvt_pk_bf16_f32 v{tl+p}, v{d+8+2*p}, v{d+9+2*p}')
    def okstep(q):
        return [I(f's_mul_i32 s{S_T0}, s{S_G}, 10'), I(f's_add_u32 s{S_T0}, s{S_T0}, {q}'),
                I(f's_lshr_b32 s{S_T1}, s{S_T0}, 2'), I(f's_and_b32 s{S_T0}, s{S_T0}, 3'),
                I(f's_add_u32 s{S_T1}, s{S_T1}, 54'), I(f's_lshl_b32 s{S_T1}, s{S_T1}, 10'), I(f's_lshl_b32 s{S_T0}, s{S_T0}, 8'),
                I(f's_add_u32 s{S_T0}, s{S_T0}, s{S_T1}')]
    for h in range(4):
        c.extend(okstep(2 * h))
        A(f'buffer_store_dwordx4 {vr(OP+4*h)}, v{V_ACTL}, s[{SRD_ACT}:{SRD_ACT+3}], s{S_T0} offen sc1', tag='o')
    A(f'v_cmp_eq_u32 vcc, 0, v{V_HH}'); A(f'v_mov_b32 v122, {OOB:#x}'); A(f'v_cndmask_b32 v122, v122, v{V_ACTL}, vcc')
    for j in range(2):
        c.extend(okstep(8 + j))
        A(f'buffer_store_dwordx4 {vr(TL+4*j)}, v122, s[{SRD_ACT}:{SRD_ACT+3}], s{S_T0} offen sc1', tag='o')
    st(c, 'o')
    c.append(WaitTag('w10', lgkm0=True)); A('s_barrier')
    stream.limit = stream.n; stream.release(10)
    c.extend(p4.areads(0, V_WIN))
    XR, PR = 208, 168
    fillP = []
    oc = [I(f's_lshl_b32 s64, s{S_I}, 7'), I('s_add_u32 s64, s64, 12'), I(f'v_mov_b32 v42, {OOB:#x}'), I('v_writelane_b32 v42, s64, 0')]
    OG = OPT['osig']
    fillP += [(2, i, 10) for i in oc] + [(OG, [WaitTag('o')] + cnt_add(42, 43, 'co'), OG + 1)]
    OCHK = NE - 1
    po = [I(f's_lshl_b32 s64, s{S_PT}, 7'), I('s_add_u32 s64, s64, 12'), I(f'v_mov_b32 v{V_CA}, s64'), I(f'v_mov_b32 v{V_CB}, 32'), poll_load('oc', SRD_Z, V_CA, 44)]
    g_o = 10 * (4 * OCHK + 3) - 35
    fillP += [(g_o, i, g_o + 9) for i in po]
    nst = len(p4stages); nk = p4.nk
    xs = [I(f's_lshl_b32 s64, s{S_PT}, 7'), I(f's_lshl_b32 s65, s{S_WAVE}, 5'), I('s_add_u32 s64, s64, s65'), I('s_mul_i32 s64, s64, 1280'),
          I(f's_mul_i32 s65, s{S_PC}, 160'), I('s_add_u32 s64, s64, s65')]
    SRD_XR, SRD_O = SRD_T, SRD_T2
    srd(xs, SRD_XR, S_X2, 's64', None); xs.append(I(f's_sub_u32 s{SRD_XR+2}, {S*D*2}, s64'))
    srd(xs, SRD_O, S_OUT, 's64', None); xs.append(I(f's_sub_u32 s{SRD_O+2}, {S*D*2}, s64'))
    xs += [I(f'v_and_b32 v45, 15, v{V_LANE}'), I('v_mul_u32_u24 v45, 1280, v45'), I(f'v_lshrrev_b32 v46, 4, v{V_LANE}'), I('v_lshl_add_u32 v45, v46, 3, v45'),
           I(f'v_add_u32 v46, {16*1280}, v45')]
    for ct in range(5):
        for tg in range(2):
            k = 2 * ct + tg
            xs.append(I(f'buffer_load_dwordx2 v[{XR+2*k}:{XR+2*k+1}], v{45+tg}, s[{SRD_XR}:{SRD_XR+3}], 0 offen offset:{ct*32}'))
    g_x = 10 * (nk - 16)
    fillP += [(g_x, i, g_x + 40) for i in atoms(xs)]
    PCHK = nst - 3
    kp = [s for s, (n, k) in enumerate(p4.ks) if n == PCHK][-1]
    pp = [I(f's_lshl_b32 s64, s{S_PT}, 7'), I(f's_lshl_b32 s65, s{S_PC}, 2'), I('s_add_u32 s64, s64, s65'), I('s_add_u32 s64, s64, 16'),
          I(f'v_mov_b32 v{V_CA}, s64'), I(f'v_mov_b32 v{V_CB}, 1'), poll_load('pc', SRD_Z, V_CA, 44)]
    fillP += [(10 * (kp - 5), i, 10 * (kp - 4)) for i in pp]
    pld = [I(f's_lshl_b32 s64, s{S_PT}, 3'), I(f's_add_u32 s64, s64, s{S_PC}'), I(f's_mul_i32 s64, s64, {PART_ONE}'),
           I(f's_mul_i32 s65, s{S_WAVE}, 10240'), I('s_add_u32 s64, s64, s65'), I(f's_add_u32 s64, s64, {PART_OFF}')]
    srd(pld, SRD_W, S_WS, 's64', 10240)
    for k in range(10):
        if k % 4 == 0: pld.append(I(f's_mov_b32 s65, {k*1024}'))
        pld.append(I(f'buffer_load_dwordx4 {vr(PR+4*k)}, v{V_L16}, s[{SRD_W}:{SRD_W+3}], s65 offen offset:{(k%4)*1024} sc1'))
    fillP += [(10 * kp + 2, i, 10 * kp + 35) for i in atoms(pld)]
    HCHK = NE + 2
    if LA:
        kh = [s for s, (n, k) in enumerate(p4.ks) if n == HCHK][-1]
        ph = [I(f's_lshl_b32 s64, s{S_PT}, 7'), I('s_add_u32 s64, s64, 8'), I('v_mov_b32 v47, s64'), I('v_mov_b32 v48, 32'), poll_load('h2', SRD_Z, 47, 49)]
        fillP += [(10 * (kh - 4), i, 10 * (kh - 3)) for i in ph]
    def spre(n):
        if LA and n == HCHK: return poll_check('h2', SRD_Z, 47, 49, 48)
        if n == OCHK: return poll_check('oc', SRD_Z, V_CA, 44, V_CB)
        if n == PCHK: return poll_check('pc', SRD_Z, V_CA, 44, V_CB)
        return []
    gate = lambda k, s: k < KLATE or (s >= 4 * OCHK + 3 and (k < KLATE + 20 or s >= 4 * HCHK + 3))
    mainP = p4.loop(st, V_WIN, NB, gate_b=gate, sync_pre=spre, stamp_at=(7, 19))
    c.extend(weave(mainP, sorted(fillP, key=lambda f: f[0]))); st(c, 'P4')
    assert stream.next == stream.n and not stream.queue
    for ct in range(5):
        for tg in range(2):
            k = 2 * ct + tg
            a, x, p = PACC(ct, tg), XR + 2 * k, PR + 4 * k
            A(f'v_lshlrev_b32 v50, 16, v{x}'); A(f'v_and_b32 v51, s{S_MASK}, v{x}')
            A(f'v_lshlrev_b32 v52, 16, v{x+1}'); A(f'v_and_b32 v53, s{S_MASK}, v{x+1}')
            for j in range(4): A(f'v_add_f32 v{a+j}, v{a+j}, v{p+j}')
            for j in range(4): A(f'v_add_f32 v{50+j}, v{50+j}, v{a+j}')
            A(f'v_cvt_pk_bf16_f32 v{54+2*(k%4)}, v50, v51'); A(f'v_cvt_pk_bf16_f32 v{55+2*(k%4)}, v52, v53')
            A(f'buffer_store_dwordx2 v[{54+2*(k%4)}:{55+2*(k%4)}], v{45+tg}, s[{SRD_O}:{SRD_O+3}], 0 offen offset:{ct*32}')
```

```python
import numpy as np
S, D, F, H, DH = 2048, 640, 1728, 32, 20
NKS = 74
ACT_OFF = 0
ACT_SIZE = 128 * NKS * 1024
WP_OFF = 0xA00000
WP_SIZE = 8 * NKS * 5 * 1024
PART_OFF = 0xD00000
PART_ONE = 40960
Z_OFF = 0x1200000
Z_CNT_T = 0
T_WD, T_WO = 48, 52
Z_CNT_R = 2048
Z_WD, Z_WO = 4096, 4224
Z_STAT = 8192
Z_CS = 24576
Z_KVS = 57344
Z_SIZE = Z_KVS + 8 * 20480
Z_SHARE = Z_SIZE // 16
assert Z_SHARE * 16 == Z_SIZE and Z_SHARE % 16 == 0 and Z_SHARE <= 16 * 1024
STAMP_OFF = 0x1300000

import os
MLPV = os.environ.get('MLPV', 'old')
def ftile(s):
    if MLPV == '5': return s
    if s < 32: return 6 * (s >> 2) + (s & 3)
    if s < 48: return 6 * ((s - 32) >> 1) + 4 + (s & 1)
    return s

def krow(s, g, e):
    if s < 54:
        return 32 * ftile(s) + 16 * (g >> 1) + 8 * (e >> 2) + 4 * (g & 1) + (e & 3)
    J = 4 * (s - 54) + g
    G, q = divmod(J, 10)
    if q < 8:
        hp, hh = q >> 1, q & 1
        r = 20 * (4 * G + hp) + 4 * hh + 8 * (e >> 2) + (e & 3)
    else:
        j = q - 8
        r = 20 * (4 * G + 2 * j + (e >> 2)) + 16 + (e & 3)
    return F + r

KROW = np.array([[[krow(s, g, e) for e in range(8)] for g in range(4)] for s in range(NKS)])
assert sorted(KROW.reshape(-1).tolist()) == list(range(F + D))

def pack_act(act):
    l = np.arange(64)
    tok = (np.arange(128)[:, None] * 16 + (l & 15)[None, :])
    kr = KROW[:, l >> 4, :]
    return act[tok[:, None, :, None], kr[None, :, :, :]]

def pack_wp(wcat):
    l = np.arange(64)
    col = (80 * np.arange(8)[:, None, None] + 16 * np.arange(5)[None, :, None] + (l & 15)[None, None, :])
    kr = KROW[:, l >> 4, :]
    return wcat[kr[None, :, None, :, :], col[:, None, :, :, None]]

def wg_map(wg):
    xcd, q = wg & 7, wg >> 3
    i = 8 * (xcd & 1) + (q & 7)
    j = 4 * (xcd >> 1) + (q >> 3)
    return i, j

def role_index(j):
    return 2 * (j >> 2) + (j & 1)

def p4_map(i, j):
    return 8 * (i >> 3) + 4 * ((j >> 2) & 1) + (i & 3), 4 * (j >> 3) + 2 * (j & 1) + ((i >> 2) & 1)

def rot_of(i, j):
    return (i + (0, 2, 5, 7)[j & 3] + (j >> 2)) % 10

if __name__ == '__main__':
    for typ in (0, 2):
        seen = set()
        for wg in range(256):
            i, j = wg_map(wg)
            if (j & 2) == typ: seen.add(p4_map(i, j))
        assert len(seen) == 128
    for i in range(16):
        des = [0, 1, 2, 3, 4, 5, 6, 7, 9, 11]
        assert sorted(rot_of(i, j) for j in des) == list(range(10))
    for j in range(16):
        assert sorted(rot_of(i, j) for i in range(10)) == list(range(10))
    print('ok', Z_SIZE, Z_SHARE)
```

```python
from common import *
from p4 import *

XA = lambda s: 4 * s
AFB = 160
A_HU = 224
ACC = lambda u, T: 64 + 64 * u + 16 * T
V_WD, V_HD = 16, 20
V_AF, V_HA = 21, 27
V_CA, V_CB = 30, 31
BMU = 32
TT = 40
S_TK = 89

def wd_task_setup(c, vb):
    A = lambda t, **k: c.append(I(t, **k))
    A(f's_lshl_b32 s64, s{S_I}, 3'); A(f's_add_u32 s64, s64, s{S_ROLE}'); A('s_lshl_b32 s64, s64, 2'); A(f's_add_u32 s64, s64, s{S_WAVE}')
    A(f's_lshr_b32 s{S_TK}, s64, 3'); A('s_and_b32 s65, s64, 7')
    A(f's_lshr_b32 s66, s{S_TK}, 2'); A('s_mul_i32 s66, s66, 6'); A(f's_and_b32 s67, s{S_TK}, 3'); A('s_add_u32 s66, s66, s67')
    A(f's_sub_u32 s67, s{S_TK}, 32'); A('s_lshr_b32 s67, s67, 1'); A('s_mul_i32 s67, s67, 6'); A(f's_and_b32 s68, s{S_TK}, 1')
    A('s_add_u32 s67, s67, s68'); A('s_add_u32 s67, s67, 4')
    A(f's_cmp_lt_u32 s{S_TK}, 32'); A('s_cselect_b32 s66, s66, s67')
    A(f's_cmp_lt_u32 s{S_TK}, 48'); A(f's_cselect_b32 s66, s66, s{S_TK}')
    A(f's_mul_i32 s66, s66, {32*1280}'); A('s_mul_i32 s67, s65, 160'); A('s_add_u32 s66, s66, s67')
    srd(c, SRD_T, S_WD, 's66', None)
    A(f's_cmp_lt_u32 s{S_TK}, 54'); A(f's_cselect_b32 s{SRD_T+2}, {31*1280+160}, 0')
    for p in range(5):
        A(f'v_add_u32 v32, {64*p}, v{V_LANE}')
        A('v_mul_u32_u24 v33, 6554, v32'); A('v_lshrrev_b32 v33, 16, v33')
        A('v_mul_u32_u24 v34, 10, v33'); A('v_sub_u32 v34, v32, v34')
        A('v_mul_u32_u24 v33, 1280, v33'); A('v_lshl_add_u32 v33, v34, 4, v33')
        A(f'v_subrev_u32 v{vb+p}, {(p % 4)*1024}, v33')
    A(f's_mul_i32 s65, s65, {NKS}'); A(f's_add_u32 s65, s65, s{S_TK}'); A('s_mul_i32 s65, s65, 5120'); A(f's_add_u32 s65, s65, {WP_OFF}')
    A(f's_add_u32 s90, s{S_WS}, s65'); A(f's_addc_u32 s91, s{S_WS+1}, 0')

def wp_task_dma(vb, lds):
    return [dma(f'buffer_load_dwordx4 v{vb+p}, s[{SRD_T}:{SRD_T+3}], 0 offen offset:{(p % 4)*1024} lds',
                (S_W5K, lds + (4096 if p == 4 else 0)), tag='wp') for p in range(5)]

def wp_task_finish(lds, t0, dest_order, valid_cmp):
    r = [I(f's_mov_b32 s{SRD_T2}, s90'), I(f's_mov_b32 s{SRD_T2+1}, s91'), I(valid_cmp), I(f's_cselect_b32 s{SRD_T2+2}, 5120, 0')]
    if dest_order:
        r += [I(f'v_lshrrev_b32 v{t0}, 4, v{V_LANE}'), I(f'v_lshlrev_b32 v{t0}, 3, v{t0}')]
        jstep = 4 * 160
    else:
        r += [I(f'v_lshrrev_b32 v{t0}, 5, v{V_LANE}'), I(f'v_lshlrev_b32 v{t0}, 4, v{t0}'),
              I(f'v_bfe_u32 v{t0+1}, v{V_LANE}, 4, 1'), I(f'v_lshl_add_u32 v{t0}, v{t0+1}, 2, v{t0}')]
        jstep = 8 * 160
    r += [I(f'v_bfe_u32 v{t0+1}, v{V_LANE}, 2, 2'), I(f'v_add_u32 v{t0}, v{t0}, v{t0+1}'), I(f'v_mul_u32_u24 v{t0}, 160, v{t0}'),
          I(f'v_and_b32 v{t0+1}, 3, v{V_LANE}'), I(f'v_lshl_add_u32 v{t0}, v{t0+1}, 3, v{t0}'),
          I(f'v_add_u32 v{t0}, s{S_W5K}, v{t0}'), I(f'v_add_u32 v{t0}, {lds}, v{t0}'),
          I(f'v_lshlrev_b32 v{t0+1}, 4, v{V_LANE}')]
    rd = [WaitTag('wp')]
    for ct in range(5):
        d = t0 + 4 + 4 * ct
        for j in range(2):
            rd.append(I(f'ds_read_b64_tr_b16 v[{d+2*j}:{d+2*j+1}], v{t0} offset:{j*jstep + ct*32}'))
    stv = []
    for ct in range(5):
        d = t0 + 4 + 4 * ct
        off = f'offset:{ct*1024}' if ct < 4 else 'offset:0'
        so = '0' if ct < 4 else 's69'
        if ct == 4: stv.append(I('s_mov_b32 s69, 4096'))
        stv.append(I(f'buffer_store_dwordx4 {vr(d)}, v{t0+1}, s[{SRD_T2}:{SRD_T2+3}], {so} offen {off} sc1', tag='wps'))
    return r, rd, stv

def mlp_role(c0, st):
    c = c0
    A = lambda t, **k: c.append(I(t, **k))
    NM, NB = OPT['nm'], OPT['nb']
    S_T2K, SRD_DB = 92, 96
    A(f's_cmp_lt_u32 s{S_WAVE}, 2')
    A(f's_cselect_b32 s{SRD_W}, s{S_WG}, s{S_WU}'); A(f's_cselect_b32 s{SRD_W+1}, s{S_WG+1}, s{S_WU+1}')
    A(f's_cselect_b32 s{SRD_W2}, s{S_WG}, s{S_WU}'); A(f's_cselect_b32 s{SRD_W2+1}, s{S_WG+1}, s{S_WU+1}')
    A(f's_mov_b32 s{SRD_W+2}, {D*F*2}'); A(f's_mov_b32 s{SRD_W+3}, 0x00020000')
    A(f'v_lshrrev_b32 v32, 3, v{V_LANE}'); A(f'v_and_b32 v33, 7, v{V_LANE}')
    A('v_bfe_u32 v34, v32, 1, 1'); A('v_lshlrev_b32 v34, 2, v34'); A('v_xor_b32 v33, v33, v34')
    A(f's_and_b32 s{S_T0}, s{S_WAVE}, 1'); A(f's_lshl_b32 s{S_T0}, s{S_T0}, 3')
    A(f'v_add_u32 v32, s{S_T0}, v32'); A('v_mul_u32_u24 v32, 3456, v32'); A('v_lshl_add_u32 v32, v33, 4, v32')
    A(f's_mul_i32 s{S_T0}, s{S_ROLE}, 384')
    A(f'v_add_u32 v32, s{S_T0}, v32')
    for q in range(4): A(f'v_add_u32 v{V_WD+q}, {q*(16*3456-1024)}, v32')
    TOUCH = OPT.get('touch', 0)
    V_TX, V_TW, V_TD, SRD_TX = 4, 5, 0, 24
    def touch(n):
        k0 = n % 10
        r = [I(f's_mul_i32 s72, s{S_KB+k0}, 1728')]
        if n >= 10: r.append(I('s_add_u32 s72, s72, 256'))
        r.append(I(f'buffer_load_dword v{V_TD}, v{V_TW}, s[{SRD_W}:{SRD_W+3}], s72 offen', tag='tch'))
        if n < 10: r.append(I(f'buffer_load_dword v{V_TD}, v{V_TX}, s[{SRD_TX}:{SRD_TX+3}], s{S_KB+k0} offen', tag='tch'))
        return r
    if TOUCH:
        A(f's_and_b32 s64, s{S_I}, 7'); A('s_lshl_b32 s64, s64, 3'); A(f's_and_b32 s65, s{S_WAVE}, 1'); A('s_lshl_b32 s65, s65, 2'); A('s_add_u32 s64, s64, s65')
        A(f'v_lshrrev_b32 v34, 2, v{V_LANE}'); A('v_add_u32 v34, s64, v34'); A('v_mul_u32_u24 v34, 3456, v34')
        A(f'v_and_b32 v35, 3, v{V_LANE}'); A('v_lshl_add_u32 v34, v35, 6, v34'); A(f's_mul_i32 s64, s{S_ROLE}, 384'); A('v_add_u32 v34, s64, v34')
        A(f'v_cmp_gt_u32 vcc, 16, v{V_LANE}'); A(f'v_mov_b32 v35, {OOB:#x}'); A(f'v_cndmask_b32 v{V_TW}, v35, v34, vcc')
        c.extend(touch_x_setup(V_TX, 34))
        A(f's_mul_i32 s64, s{S_I}, {128*1280}')
        srd(c, SRD_TX, S_X, 's64', 128 * 1280)
        for n in range(2, 10): c.extend(kb_entry(n))
        for n in range(TOUCH): c.extend(touch(n))
    ring = Ring()
    for n in range(10): ring.add_at(SLOT_A[n % 3], 32 * K)
    SCR = 128 * K
    for k in range(10):
        ring.add_at((128, 32, 64, 96, 0)[k % 5] * K, 24 * K, not_before={0: 6, 3: 9}.get(k, -1))
    EA, LA = OPT['ea'], OPT['la']
    NE = 8 - EA
    NL = 22 - LA
    p4stages = [(('rot', n, NE, EA), 4) for n in range(NE)] + [(32 + 4 * k, min(4, NL - 4 * k)) for k in range((NL + 3) // 4)]
    qorder = (6, 7, 2, 3, 4, 5, 0, 1)
    for k in range(len(p4stages)): ring.add_at(QSLOT[qorder[k % 8]], 20 * K)
    V_L16, V_B1 = 8, 11
    V_WIN = (8, 9, 10)
    SRD_WP, SRD_PA = SRD_X, SRD_T
    def wpieces(n, base, tag):
        r = []
        units = (0, 1) if n < 10 else (2,)
        k0 = n % 10
        for ui, u in enumerate(units):
            for q in range(4):
                g = []
                if q == 0: g += [I(f's_mul_i32 s{S_SOFF2}, s{S_KB+k0}, 1728'), I(f's_add_u32 s{S_SOFF2}, s{S_SOFF2}, {u*128}')]
                g.append(dma(f'buffer_load_dwordx4 v{V_WD+q}, s[{SRD_W}:{SRD_W+3}], s{S_SOFF2} offen offset:{q*1024} lds', (S_W4K, base + ui * 16384), tag=tag))
                r.append(g)
        if n >= 10:
            for q in range(2):
                g = [I(f's_mul_i32 s{S_SOFF}, s{S_KB+k0}, 1728')] if q == 0 else [I(f's_add_u32 s{S_SOFF}, s{S_SOFF}, {16*3456-1024}')]
                g.append(dma(f'buffer_load_dwordx4 v{V_HD}, s[{SRD_W2}:{SRD_W2+3}], s{S_SOFF} offen offset:{q*1024} lds', (S_T2K, base + 16384), tag=tag))
                r.append(g)
        return r
    def pieces(n):
        if n >= 20: return p4.pieces(n - 20)
        return wpieces(n, ring.alloc[n][0], f'w{n}')
    stream = Stream(ring, pieces)
    stream.limit = 20
    p4 = P4(stream, 20, p4stages,
            BF=lambda s, tg: vr(64 + 8 * (s % NB) + 4 * tg), AF=lambda s, ct: ar(40 + 20 * (s % 2) + 4 * ct),
            ACC=lambda ct, tg: ar(8 * ct + 4 * tg), v_l16=V_L16, v_b0=V_L16, v_b1=V_B1, srd_wp=SRD_WP, srd_act=SRD_PA, s_ao=94, s_wo=93)
    p0 = pieces(0)
    c.extend(flat(p0[:4]))
    st(c, 'iss')
    zero_stores(c, 40)
    if not TOUCH:
        for n in range(2, 10): c.extend(kb_entry(n))
    A(f's_lshl_b32 s{S_T2K}, s{S_WAVE}, 11')
    A(f's_cmp_lt_u32 s{S_ROLE}, 6'); A(f's_cselect_b32 s{SRD_W2+2}, {D*F*2}, 0'); A(f's_mov_b32 s{SRD_W2+3}, 0x00020000')
    A(f'v_lshrrev_b32 v32, 2, v{V_LANE}'); A(f's_and_b32 s{S_T0}, s{S_WAVE}, 1'); A(f's_lshl_b32 s{S_T0}, s{S_T0}, 5')
    A(f'v_add_u32 v32, s{S_T0}, v32'); A('v_mul_u32_u24 v32, 3456, v32')
    A(f'v_and_b32 v33, 3, v{V_LANE}'); A('v_lshl_add_u32 v32, v33, 4, v32')
    A(f's_lshl_b32 s{S_T0}, s{S_ROLE}, 6'); A(f's_add_u32 s{S_T0}, s{S_T0}, {1536*2}'); A(f'v_add_u32 v{V_HD}, s{S_T0}, v32')
    x_read_addrs(c)
    A(f's_mov_b32 s{S_MASK}, 0xffff0000')
    A(f's_mul_i32 s{S_W5K}, s{S_WAVE}, 5120')
    A(f'v_lshrrev_b32 v32, 5, v{V_LANE}'); A('v_lshlrev_b32 v32, 12, v32')
    A(f'v_bfe_u32 v33, v{V_LANE}, 2, 2'); A('v_lshl_add_u32 v32, v33, 7, v32')
    A(f'v_bfe_u32 v34, v{V_LANE}, 4, 1'); A('v_lshl_add_u32 v32, v34, 5, v32')
    A(f'v_and_b32 v34, 3, v{V_LANE}'); A('v_lshl_add_u32 v32, v34, 3, v32')
    A('v_lshrrev_b32 v33, 1, v33'); A('v_lshlrev_b32 v33, 6, v33')
    for T in range(2):
        A(f'v_xor_b32 v34, {64*T}, v33'); A(f'v_add_u32 v{V_AF+3*T}, v32, v34')
        A(f'v_add_u32 v{V_AF+3*T+1}, 0x10000, v{V_AF+3*T}'); A(f'v_add_u32 v{V_AF+3*T+2}, 0x20000, v{V_AF+3*T}')
    A(f'v_bfe_u32 v32, v{V_LANE}, 2, 2'); A(f'v_lshl_add_u32 v32, v{V_HH}, 3, v32'); A('v_lshlrev_b32 v32, 6, v32')
    A(f'v_bfe_u32 v33, v{V_LANE}, 4, 1'); A('v_lshl_add_u32 v32, v33, 5, v32')
    A(f'v_and_b32 v33, 3, v{V_LANE}'); A(f'v_lshl_add_u32 v{V_HA}, v33, 3, v32')
    A(f'v_add_u32 v{V_HA+1}, 0x10000, v{V_HA}'); A(f'v_add_u32 v{V_HA+2}, 0x20000, v{V_HA}')
    WDV = 192
    V_PL, V_SP, V_SA, V_CV, V_CAD, V_CV2 = 197, 198, 199, 200, 201, 202
    V_CS0, V_CS1, V_ONE, V_CSD, V_CSF = 203, 204, 244, 208, 240
    V_C2 = 252
    A(f's_lshl_b32 s{S_T0}, s{S_WAVE}, 13')
    A(f'v_add_u32 v{V_CS0}, s{S_T0}, v{V_AF}'); A(f'v_add_u32 v{V_CS1}, s{S_T0}, v{V_AF+3}')
    for k in range(4): A(f'v_mov_b32 v{V_ONE+k}, 0x3f803f80')
    alu = []
    act_lane_offset(alu)
    srd(alu, SRD_Z, S_WS, Z_OFF, Z_SIZE)
    p4_ids(alu)
    wd_task_setup(alu, WDV)
    a2 = lambda t: alu.append(I(t))
    a2(f's_lshl_b32 s{S_T0}, s{S_WAVE}, 13'); a2(f's_add_u32 s{S_T0}, s{S_T0}, {SCR}')
    a2(f's_cmp_ge_u32 s{S_WAVE}, 2'); a2('s_cselect_b64 vcc, -1, 0')
    for t in range(2):
        for j in range(2):
            a2(f'v_add_u32 v32, s{S_T0}, v{V_AF+3*t}'); a2(f'v_add_u32 v32, {512*j}, v32')
            a2(f'v_add_u32 v33, {SCR + 16384 + 4096*t + 256*j}, v{V_HA}')
            a2(f'v_cndmask_b32 v{V_C2+2*t+j}, v32, v33, vcc')
    c.extend(alu)
    def reads(n, sp, T, dst):
        base = ring.alloc[n][0]; r = []
        for j in range(2):
            if n < 10 or T < 4:
                ui, T4 = divmod(T, 4)
                M, Tt = divmod(T4, 2)
                off = base + ui * 16384 + M * 8192 + sp * 1024 + j * 512
                r.append(I(f'ds_read_b64_tr_b16 {ar(dst+2*j, 2)}, v{V_AF+3*Tt+(off>>16)} offset:{off & 0xffff}'))
            else:
                off = base + 16384 + (T - 4) * 4096 + sp * 1024 + j * 256
                r.append(I(f'ds_read_b64_tr_b16 {ar(dst+2*j, 2)}, v{V_HA+(off>>16)} offset:{off & 0xffff}'))
        return r
    afr = lambda s, T: AFB + 32 * (s % 2) + 4 * T
    st(c, 'setup')
    c.extend(flat(p0[4:]))
    c.extend(flat(x_dma(1)))
    p1 = pieces(1)
    c.extend(flat(p1[:OPT['p1']]))
    stream.next = 2
    stream.release(0)
    stream.push_front(p1[OPT['p1']:])
    wb = wpieces(10, SCR, 'wb')
    wb[0] = [I(f's_cmp_lt_u32 s{S_I}, 10'), I(f's_cselect_b32 s{SRD_W+2}, {D*F*2}, 0'), I(f's_cselect_b32 s{SRD_W2+2}, s{SRD_W2+2}, 0')] + wb[0]
    wb[3] = wb[3] + [I(f's_mov_b32 s{SRD_W+2}, {D*F*2}')]
    wb[5] = wb[5] + [I(f's_cmp_lt_u32 s{S_ROLE}, 6'), I(f's_cselect_b32 s{SRD_W2+2}, {D*F*2}, 0')]
    stream.queue += wb
    c.append(WaitTag(['x0', 'w0', 'zero'])); A('s_barrier')
    st(c, 'S0')
    c.append(x_read(0, 0, ar(XA(0)), tag='A0a'))
    for T in range(8):
        for ins in reads(0, 0, T, afr(0, T)):
            ins.tag = f'A0{"a" if T < 4 else "b"}'; c.append(ins)
    c.extend(zero_flag(56))
    hooks = {}
    def add(key, lst): hooks.setdefault(key, []).extend(lst)
    for n in range(10):
        for sub in range(1, 4):
            add((4 * n, sub - 1), [x_read(n, sub, ar(XA(4 * n + sub)), tag=f'A{4*n+sub}a')])
        if n + 2 < 10:
            if n == 0: hooks[('cb', 1, 0)] = lambda: stream.insert_after('w1', x_dma(2))
            else: hooks[('cb', 4 * n + 1, 0)] = (lambda nn: (lambda: stream.push_front(x_dma(nn))))(n + 2)
    if TOUCH:
        for n in range(10):
            if n + TOUCH < 14 and n < 9: add((4 * n + 3, 4), touch(n + TOUCH))
    XT = TT
    for sub in range(4): add((0, sub), [x_read(0, sub, vr(XT + 4 * sub))])
    xhook = lambda s: [x_read(s // 4, 0, ar(XA(s)), tag=f'A{s}a')] if s % 4 == 0 else []
    fill = []
    def cs_block(g0, gmax, addr):
        r = []
        for sp in range(4):
            for t in range(2):
                f = V_CSF + 8 * t
                for j in range(2):
                    va, off = addr(t, j)
                    r.append((g0 + 6 * sp, I(f'ds_read_b64_tr_b16 v[{f+2*j}:{f+2*j+1}], v{va} offset:{off + sp*1024}'), gmax))
            for t in range(2):
                d = V_CSD + 16 * t
                r.append((g0 + 6 * sp + 2, I(f'v_mfma_f32_32x32x16_bf16 {vr(d,16)}, {vr(V_ONE)}, {vr(V_CSF + 8*t)}, {"0" if sp == 0 else vr(d,16)}'), gmax))
        return r
    fill += cs_block(4, 25, lambda t, j: ((V_CS0, V_CS1)[t], ring.alloc[0][0] + j * 512))
    fill += [(32, [I(f'v_permlane32_swap_b32 v{V_CSD}, v{V_CSD+16}'), I(f'v_mov_b32 v{V_CV}, v{V_CSD}')], 50)]
    zd = [I(f'v_and_b32 v{V_CA}, 15, v{V_LANE}'), I(f'v_lshlrev_b32 v{V_CA}, 2, v{V_CA}'), I(f'v_mov_b32 v{V_CB}, 1')]
    srd(zd, SRD_DB, S_DBG, OPT.get('dbgoff', 0), 64); zd = atoms(zd)
    zd.append(poll_load('zd', SRD_DB, V_CA, V_PL))
    fill += [(33, i, 50) for i in zd]
    fill += [(34, i, 70) for i in stat_partial(XT, 56, V_SP)]
    fill += [(60, i, 75) for i in atoms(stat_addr(V_SA))]
    cad = [I(f's_lshl_b32 s64, s{S_J}, 11'), I(f's_add_u32 s64, s64, {Z_CS}'), I(f's_lshl_b32 s65, s{S_WAVE}, 8'), I('s_add_u32 s64, s64, s65'),
           [I(f's_cmp_lt_u32 s{S_I}, 10'), I(f's_cselect_b32 s64, s64, {OOB:#x}')],
           I(f'v_lshlrev_b32 v{V_CAD}, 2, v{V_LANE}'), I(f'v_add_u32 v{V_CAD}, s64, v{V_CAD}')]
    fill += [(60, i, 78) for i in cad]
    fill += cs_block(64, 89, lambda t, j: (V_C2 + 2 * t + j, 0))
    fill += [(91, I(f'buffer_atomic_add_f32 v{V_SP}, v{V_SA}, s[{SRD_Z}:{SRD_Z+3}], 0 offen', tag='sat'), 93),
             (91, I(f'buffer_atomic_add_f32 v{V_CV}, v{V_CAD}, s[{SRD_Z}:{SRD_Z+3}], 0 offen', tag='sat'), 94)]
    fill += [(96, [I(f'v_permlane32_swap_b32 v{V_CSD}, v{V_CSD+16}'), I(f'v_mov_b32 v{V_CV2}, v{V_CSD}')], 110)]
    fill += [(96, i, 112) for i in [[I(f's_cmp_lt_u32 s{S_WAVE}, 3'), I(f's_cselect_b32 s64, 1024, {OOB:#x}')], I(f'v_add_u32 v{V_CAD}, s64, v{V_CAD}')]]
    fill += [(97, i, 120) for i in wp_task_dma(WDV, SCR)]
    fill += [(123, I(f'buffer_atomic_add_f32 v{V_CV2}, v{V_CAD}, s[{SRD_Z}:{SRD_Z+3}], 0 offen', tag='sat2'), 125)]
    wpre, wrd, wst = wp_task_finish(SCR, 208, False, f's_cmp_lt_u32 s{S_TK}, 54')
    cadd = [I(f's_lshl_b32 s64, s{S_I}, 7'), I(f's_lshr_b32 s65, 0x0aff, s{S_J}'), I('s_and_b32 s65, s65, 1'),
            [I('s_cmp_eq_u32 s65, 1'), I(f's_cselect_b32 s64, s64, {OOB:#x}')],
            I(f's_lshl_b32 s65, s{S_J}, 7'), I(f's_add_u32 s65, s65, {Z_CNT_R}'),
            [I(f's_cmp_lt_u32 s{S_I}, 10'), I(f's_cselect_b32 s65, s65, {OOB:#x}')],
            [I(f's_cmp_eq_u32 s{S_WAVE}, 0'), I(f's_cselect_b32 s64, s64, {OOB:#x}'), I(f's_cselect_b32 s65, s65, {OOB:#x}')]]
    cadd += two_lane(V_SA, 's64', 's65', other=f'{OOB:#x}')
    fill += [(126, i, 150) for i in cadd]
    fill += [(155, cnt_add(V_SA, V_SP, 'c0'), 157)]
    fill += [(158, [wpre[0], wpre[1]], 170), (158, [wpre[2], wpre[3]], 170)] + [(158, i, 174) for i in wpre[4:]]
    c2 = cnt_addr(V_CV, [I(f's_lshl_b32 s64, s{S_J}, 7'), I(f's_add_u32 s64, s64, {Z_CNT_R + 4}'), [I(f's_cmp_lt_u32 s{S_I}, 10'), I(f's_cselect_b32 s64, s64, {OOB:#x}')]])
    fill += [(160, i, 180) for i in atoms(c2)]
    fill += [(174, wrd, 184)]
    fill += [(187, cnt_add(V_CV, V_CV2, 'c2'), 188)]
    fill += [(188, i, 191) for i in wst]
    pl = [I(f's_lshl_b32 s64, s{S_I}, 7'), I(f's_lshl_b32 s65, s{S_J}, 7'), I(f's_add_u32 s65, s65, {Z_CNT_R}')] + two_lane(V_CA, 's64', 's65') + [I(f'v_mov_b32 v{V_CB}, 10')]
    fill += [(200, i, 216) for i in pl]
    fill += [(219, poll_load('f0', SRD_Z, V_CA, V_PL), 222)]
    VS, VC = 198, 200
    wdc = rep_addr(195, T_WD, [I(f's_cmp_lt_u32 s{S_TK}, 54')])
    fill += [(224, i, 245) for i in wdc]
    ld = [I(f's_lshl_b32 s64, s{S_I}, 2'), I(f's_add_u32 s64, s64, s{S_WAVE}'), I('s_lshl_b32 s64, s64, 8'), I(f's_add_u32 s64, s64, {Z_STAT}'),
          I(f'v_lshlrev_b32 v{V_CA}, 3, v{V_T}'),
          I(f'buffer_load_dwordx2 v[{VS}:{VS+1}], v{V_CA}, s[{SRD_Z}:{SRD_Z+3}], s64 offen sc1'),
          I(f's_lshl_b32 s64, s{S_J}, 11'), I(f's_add_u32 s64, s64, {Z_CS}'), I(f'v_lshlrev_b32 v{V_CA}, 2, v{V_LANE}')]
    ld += [I(f'buffer_load_dword v{VC+p}, v{V_CA}, s[{SRD_Z}:{SRD_Z+3}], s64 offen offset:{p*256} sc1') for p in range(4)]
    fill += [(251, i, 258) for i in ld]
    fill += [(259, cnt_add(195, 205, 'cw'), 262)]
    CSA = 40
    fin = ln_final(VS, BMU, 56)
    for p in range(4): fin += cs_frag(VC + p, CSA + 4 * p, 56) + [I(f'v_mov_b32 v{CSA+4*p+3}, 0')]
    fin.append(I(f'v_mul_f32 v{V_RS}, v{V_RS}, v{V_RS}'))
    fill += [(298, i, 319) for i in fin]
    def sync_pre(n):
        if n == 2: return poll_check('zd', SRD_DB, V_CA, V_PL, V_CB)
        if n == 7: return poll_check('f0', SRD_Z, V_CA, V_PL, V_CB)
        return []
    tagsA = lambda n: {1: ['wb'], 4: ['sat'], 5: ['sat2'], 7: ['wps']}.get(n, [])
    def gapsA(s):
        if s < 8: return list(range(OPT['g0'])) if s % 4 < 3 else [0, 1]
        return [0, 2, 4, 6] if s % 4 < 3 else []
    afrB = lambda s, T: AFB + 24 * (s % 2) + 4 * T
    nxt = []
    for T in range(6):
        for ins in reads(10, 0, T, afrB(0, T)):
            ins.tag = f'B0{"a" if T < 3 else "b"}'; nxt.append(ins)
    main = gemm(stream, st, 0, 10, 8, lambda T: vr(ACC(T // 4, T % 4), 16), afr, lambda s: ar(XA(s)), reads, nxt, 'A',
                hooks=hooks, sync_pre=sync_pre, sync_tags=tagsA, xhook=xhook, gaps=gapsA)
    c.extend(weave(main, fill)); st(c, 'PA')
    def correction(regs, pair):
        return [I(f'v_mfma_f32_32x32x16_bf16 {rg}, {vr(pair)}, {vr(BMU + 4*t)}, {rg}') for t, rg in enumerate(regs)]
    def glu(g, up, ks, tag):
        r = []
        for i in range(0, 16, 2):
            r += [I(f'v_max_f32 v{g+i}, 0, v{g+i}'), I(f'v_max_f32 v{g+i+1}, 0, v{g+i+1}'),
                  I(f'v_mul_f32 v{up+i}, v{V_RS}, v{up+i}'), I(f'v_mul_f32 v{up+i+1}, v{V_RS}, v{up+i+1}'),
                  I(f'v_mul_f32 v{g+i}, v{g+i}, v{up+i}'), I(f'v_mul_f32 v{g+i+1}, v{g+i+1}, v{up+i+1}'),
                  I(f'v_cvt_pk_bf16_f32 v{g+i//2}, v{g+i}, v{g+i+1}')]
        r += ks
        for ch in range(2):
            r.append(I(f'buffer_store_dwordx4 {vr(g+4*ch)}, v{V_ACTL}, s[{SRD_ACT}:{SRD_ACT+3}], s{S_T0} offen offset:{ch*512} sc1', tag=tag))
        return r
    def epilogue(u, tag):
        r = []
        for T in range(2):
            if u < 2: ks = [I(f's_lshl_b32 s{S_T0}, s{S_ROLE}, 12'), I(f's_add_u32 s{S_T0}, s{S_T0}, {(2*u+T)*1024}')]
            else: ks = [I(f's_lshl_b32 s{S_T0}, s{S_ROLE}, 11'), I(f's_add_u32 s{S_T0}, s{S_T0}, {(32+T)*1024}')]
            r += glu(ACC(u, T), ACC(u, 2 + T), ks, tag)
        return r
    fillB = []
    for p in range(4):
        u, M = divmod(p, 2)
        fillB += [(1 + 2 * p, i, 24) for i in correction([vr(ACC(u, 2*M), 16), vr(ACC(u, 2*M+1), 16)], CSA + 4 * p)]
    fillB += [(10, i, 95) for i in epilogue(0, 'h01') + epilogue(1, 'h01')]
    pa = [I(f'v_lshlrev_b32 v{V_L16}, 4, v{V_LANE}'), I(f'v_add_u32 v9, 0x10000, v{V_L16}'), I(f'v_add_u32 v10, 0x20000, v{V_L16}'),
          I(f'v_add_u32 v{V_B1}, {NKS*1024}, v{V_L16}'),
          I(f's_mul_i32 s64, s{S_PC}, {NKS*5120}'), I(f's_add_u32 s64, s64, {WP_OFF}')]
    srd(pa, SRD_WP, S_WS, 's64', NKS * 5120)
    pa += [I(f's_lshl_b32 s64, s{S_PT}, 2'), I(f's_add_u32 s64, s64, s{S_WAVE}'), I(f's_mul_i32 s64, s64, {2*NKS*1024}')]
    srd(pa, SRD_PA, S_WS, 's64', 2 * NKS * 1024)
    pa += rot_code(NE)
    fillB += [(106, i, 126) for i in atoms(pa)]
    pw = [I(f's_lshl_b32 s64, s{S_PT}, 7'), I(f's_add_u32 s64, s64, {T_WD}'), I(f's_lshl_b32 s65, s{S_J}, 7'), I(f's_add_u32 s65, s65, {Z_CNT_R + 4}')] + two_lane(V_CA, 's64', 's65')
    pw += [I('s_movk_i32 s64, 108'), I(f'v_mov_b32 v{V_CB}, s64'), I(f'v_writelane_b32 v{V_CB}, 10, 1'), poll_load('wd', SRD_Z, V_CA, 40)]
    fillB += [(96, i, 105) for i in pw]
    hc = cnt_addr(41, [I(f's_lshl_b32 s64, s{S_I}, 7'), I('s_add_u32 s64, s64, 4')])
    fillB += [(127, i, 138) for i in atoms(hc)] + [(140, cnt_add(41, 42, 'ch'), 141)]
    ph = [I(f's_lshl_b32 s64, s{S_PT}, 7'), I('s_add_u32 s64, s64, 4'), I(f'v_mov_b32 v{V_CA}, s64'), I(f'v_mov_b32 v{V_CB}, 8'), poll_load('h01', SRD_Z, V_CA, 40)]
    fillB += [(180, i, 188) for i in ph]
    CSB = 44
    fb = []
    for p in range(3): fb += cs_frag(61 + p, CSB + 4 * p, 56) + [I(f'v_mov_b32 v{CSB+4*p+3}, 0')]
    l2 = [I(f's_lshl_b32 s64, s{S_J}, 11'), I(f's_add_u32 s64, s64, {Z_CS + 1024}'), I(f'v_lshlrev_b32 v43, 2, v{V_LANE}')]
    l2 += [I(f'buffer_load_dword v{61+p}, v43, s[{SRD_Z}:{SRD_Z+3}], s64 offen offset:{p*256} sc1') for p in range(3)]
    fillB += [(142, i, 149) for i in l2]
    fillB += [(192, i, 212) for i in fb]
    def syncB_pre(n):
        if n == 15: return poll_check('wd', SRD_Z, V_CA, 40, V_CB)
        if n == 18: return poll_check('h01', SRD_Z, V_CA, 40, V_CB)
        return []
    def syncB_post(n):
        if n == 15:
            stream.limit = stream.n; stream.release(16)
        return []
    accB = lambda T: vr(ACC(2, T), 16) if T < 4 else ar(A_HU + 16 * (T - 4), 16)
    nxtp = p4.areads(0, V_WIN)
    mainB = gemm(stream, st, 10, 10, 6, accB, afrB, lambda s: ar(XA(s)), reads, nxtp, 'B',
                 sync_pre=syncB_pre, sync_post=syncB_post, sync_tags=lambda n: ['h01'] if n == 15 else [], gaps=lambda s: [0, 2, 4] if s % 4 < 3 else [], sg=1)
    nb0 = min(NB, 8)
    bl = []
    for s in range(nb0): bl += p4.bload(s)
    p4.nb_issued = nb0
    fillB += [(213, i, 239) for i in bl]
    c.extend(weave(mainB, sorted(fillB, key=lambda f: f[0]))); st(c, 'PB')
    fe = correction([vr(ACC(2, 0), 16), vr(ACC(2, 1), 16)], CSB) + correction([vr(ACC(2, 2), 16), vr(ACC(2, 3), 16)], CSB + 4)
    fe += correction([ar(A_HU, 16), ar(A_HU + 16, 16)], CSB + 8)
    fillP = [(0, i, 6) for i in fe]
    ee = epilogue(2, 'h2')
    hu = [I(f'v_accvgpr_read_b32 v{224+k}, a{A_HU+k}') for k in range(32)]
    hk = [I(f's_add_u32 s{S_T0}, s{S_ROLE}, 48'), I(f's_lshl_b32 s{S_T0}, s{S_T0}, 10'),
          [I(f's_cmp_lt_u32 s{S_ROLE}, 6'), I(f's_cselect_b32 s{SRD_ACT+2}, s{SRD_ACT+2}, 0')]]
    hu += glu(224, 240, flat([[x] if not isinstance(x, list) else x for x in hk]), 'h2')
    fillP += [(4, i, 36) for i in atoms(ee + hu)]
    CHK = NE - 2
    h2c = [I(f's_lshl_b32 s64, s{S_I}, 7'), I('s_add_u32 s64, s64, 8'), I(f'v_mov_b32 v41, {OOB:#x}'), I('v_writelane_b32 v41, s64, 0')]
    fillP += [(37, i, 44) for i in atoms(h2c)] + [(OPT['h2g'], [WaitTag('h2')] + cnt_add(41, 42, 'ch2'), OPT['h2g'] + 1)]
    if True:
        p2 = [I(f's_lshl_b32 s64, s{S_PT}, 7'), I('s_add_u32 s64, s64, 8'), I(f'v_mov_b32 v{V_CA}, s64'), I(f'v_mov_b32 v{V_CB}, 32'), poll_load('h2', SRD_Z, V_CA, 40)]
        fillP += [(10 * (4 * CHK + 3) - 45, i, 10 * (4 * CHK + 3) - 35) for i in p2]
    spre = lambda n: poll_check('h2', SRD_Z, V_CA, 40, V_CB) if n == CHK else []
    gate = lambda k, s: k < 4 * NE or s >= 4 * CHK + 3
    mainP = p4.loop(st, V_WIN, NB, gate_b=gate, sync_pre=spre, stamp_at=(7, 19))
    c.extend(weave(mainP, sorted(fillP, key=lambda f: f[0]))); st(c, 'P4')
    assert stream.next == stream.n and not stream.queue
    A(f's_lshl_b32 s64, s{S_PT}, 3'); A(f's_add_u32 s64, s64, s{S_PC}'); A(f's_mul_i32 s64, s64, {PART_ONE}')
    A(f's_mul_i32 s65, s{S_WAVE}, 10240'); A('s_add_u32 s64, s64, s65'); A(f's_add_u32 s64, s64, {PART_OFF}')
    srd(c, SRD_T2, S_WS, 's64', 10240)
    for k in range(10):
        if k % 4 == 0: A(f's_mov_b32 s65, {k*1024}')
        A(f'buffer_store_dwordx4 {ar(4*k)}, v{V_L16}, s[{SRD_T2}:{SRD_T2+3}], s65 offen offset:{(k%4)*1024} sc1', tag='part')
    c.extend(flat([[x] if not isinstance(x, list) else x for x in cnt_addr(41, [I(f's_lshl_b32 s64, s{S_PT}, 7'), I(f's_lshl_b32 s65, s{S_PC}, 2'),
                                                                              I('s_add_u32 s64, s64, s65'), I('s_add_u32 s64, s64, 16')])]))
    c.append(WaitTag('part')); A('s_barrier')
    c.extend(cnt_add(41, 42, 'cp'))
```

```python
from common import *

QSLOT = [20 * K * q for q in range(8)]

class P4:
    def __init__(self, stream, st0, stages, BF, AF, ACC, v_l16, v_b0, v_b1, srd_wp, srd_act, s_ao, s_wo, modb=' sc1'):
        self.stream, self.st0, self.stages = stream, st0, stages
        self.BF, self.AF, self.ACC = BF, AF, ACC
        self.v_l16, self.v_b0, self.v_b1 = v_l16, v_b0, v_b1
        self.srd_wp, self.srd_act, self.s_ao, self.s_wo = srd_wp, srd_act, s_ao, s_wo
        self.ks = [(n, k) for n, (f, cnt) in enumerate(stages) for k in range(cnt)]
        self.nk = len(self.ks)
        self.modb = modb
        self.ao_done = set()
    def first(self, n, dst, mul):
        f = self.stages[n][0]
        if isinstance(f, int): return [I(f's_mov_b32 s{dst}, {f * mul}')]
        _, idx, cnt, base = f
        r = [I(f's_add_u32 s{dst}, s{S_ROT8}, {idx}'), I(f's_cmp_ge_u32 s{dst}, {cnt}'), I(f's_cselect_b32 s69, {cnt}, 0'),
             I(f's_sub_u32 s{dst}, s{dst}, s69')]
        if base: r.append(I(f's_add_u32 s{dst}, s{dst}, {base}'))
        return r + [I(f's_mul_i32 s{dst}, s{dst}, {4 * mul}')]
    def pieces(self, n):
        base = self.stream.ring.alloc[self.st0 + n][0]
        r = []
        for p in range(5):
            g = []
            if p == 0:
                g += self.first(n, self.s_wo, 5120) + [I(f's_add_u32 s{self.s_wo}, s{self.s_wo}, s{S_W5K}')]
                if self.stages[n][1] < 4:
                    g += [I(f's_cmp_lt_u32 s{S_WAVE}, {self.stages[n][1]}'), I(f's_cselect_b32 s{self.s_wo}, s{self.s_wo}, {OOB:#x}')]
            if p == 4: g += [I(f's_add_u32 s{self.s_wo}, s{self.s_wo}, 4096')]
            g.append(dma(f'buffer_load_dwordx4 v{self.v_l16}, s[{self.srd_wp}:{self.srd_wp+3}], s{self.s_wo} offen offset:{(p % 4)*1024} sc1 lds',
                         (S_W5K, base + (4096 if p == 4 else 0)), tag=f'w{self.st0+n}'))
            r.append(g)
        return r
    def bload(self, s):
        n, k = self.ks[s]
        r = []
        so = self.s_ao + (n % 2)
        if n not in self.ao_done:
            self.ao_done.add(n); r += self.first(n, so, 1024)
        for tg, v in enumerate((self.v_b0, self.v_b1)):
            r.append(I(f'buffer_load_dwordx4 {self.BF(s, tg)}, v{v}, s[{self.srd_act}:{self.srd_act+3}], s{so} offen offset:{k*1024}{self.modb}', tag=f'pb{s}'))
        return r
    def areads(self, s, v_win):
        n, k = self.ks[s]
        base = self.stream.ring.alloc[self.st0 + n][0]
        r = []
        for ct in range(5):
            off = base + k * 5120 + ct * 1024
            r.append(I(f'ds_read_b128 {self.AF(s, ct)}, v{v_win[off >> 16]} offset:{off & 0xffff}', tag=f'pa{s}'))
        return r
    def loop(self, st, v_win, NB, gate_b=None, sync_pre=None, sync_post=None, sync_tags=None, hooks=None, stamp_at=()):
        main = []
        hooks = hooks or {}
        pend = list(range(self.nb_issued, self.nk))
        for s in range(self.nk):
            n, k = self.ks[s]
            lastk = s + 1 < self.nk and self.ks[s + 1][0] != n
            nxt = self.areads(s + 1, v_win) if s + 1 < self.nk else []
            for j in range(10):
                ct, tg = j // 2, j % 2
                g = []
                if j == 0 and not lastk: g.append(WaitLg(f'pa{s}'))
                if j == 0 and lastk:
                    if sync_pre: g += sync_pre(n)
                    g.append(WaitTag([f'w{self.st0+n+1}'] + (sync_tags(n) if sync_tags else []), lgkm0=True))
                if j == 0: g.append(WaitTag(f'pb{s}'))
                cc = '0' if s == 0 else self.ACC(ct, tg)
                g.append(I(f'v_mfma_f32_16x16x32_bf16 {self.ACC(ct, tg)}, {self.AF(s, ct)}, {self.BF(s, tg)}, {cc}'))
                if j == 0 and lastk:
                    g.append(I('s_barrier'))
                    self.stream.release(self.st0 + n + 1)
                    if sync_post: g += sync_post(n)
                g += hooks.get((s, j), [])
                if j % 2 == 1 and nxt: g.append(nxt[j // 2])
                post = []
                if j in (2, 6): post += self.stream.take(1)
                if j == 9:
                    cnt = 0
                    while pend and pend[0] - NB <= s and cnt < 2 and (gate_b is None or gate_b(pend[0], s)):
                        post += self.bload(pend.pop(0)); cnt += 1
                main.append((g, post))
            if s in stamp_at: st(main[-1][0], f'k{s}')
        assert not pend
        return main

S_ROT8 = 88

def rot_code(cnt):
    magic = next(m for m in range(1, 256) if all((x * m) >> 8 == x // cnt for x in range(23)))
    return [I(f's_add_u32 s{S_ROT8}, s{S_PC}, s{S_PT}'), I(f's_mul_i32 s69, s{S_ROT8}, {magic}'), I('s_lshr_b32 s69, s69, 8'),
            I(f's_mul_i32 s69, s69, {cnt}'), I(f's_sub_u32 s{S_ROT8}, s{S_ROT8}, s69')]
```

```python
from common import *
from p4 import *
from mlp import wp_task_dma, wp_task_finish

H01N = {'old': 8, '5': 32, '6': 8, '7': 32}[MLPV]
H01O = 8 if MLPV == '7' else 4
PHI_PITCH, V_PITCH = 336, 208
LDS_V = 128 * PHI_PITCH
L_KVT = 68 * K
L_PF, L_WP = 128 * K, 136 * K
A_FR, A_XF, A_PF = 0, 64, 96
ACC = lambda T: 128 + 16 * T
S_G = S_ROLE
SRD_KVS, SRD_PH, SRD_DB = 24, 92, 96
S_X2 = S_X
V_C = V_MU
BMU, CSA = 32, 40

def softmax_head(Dr, E, P):
    r = []
    tm = Dr + 10
    M, N, U, SP, SN = tm, tm + 1, tm + 2, tm + 3, tm + 4
    x = [Dr + i for i in range(10)]
    r.append(I(f'v_max3_f32 v{M}, v{x[0]}, v{x[1]}, v{x[2]}'))
    r.append(I(f'v_max3_f32 v{N}, -v{x[0]}, -v{x[1]}, -v{x[2]}'))
    for k in (3, 5, 7):
        r.append(I(f'v_max3_f32 v{M}, v{M}, v{x[k]}, v{x[k+1]}'))
        r.append(I(f'v_max3_f32 v{N}, v{N}, -v{x[k]}, -v{x[k+1]}'))
    r.append(I(f'v_max_f32 v{M}, v{M}, v{x[9]}'))
    r.append(I(f'v_max_f32_e64 v{N}, v{N}, -v{x[9]}'))
    r.append(I(f'v_permlane32_swap_b32 v{M}, v{N}'))
    r.append(I(f'v_max_f32 v{M}, v{M}, v{N}'))
    r.append(I(f'v_mul_f32 v{M}, v{V_C}, v{M}'))
    r.append(I(f'v_mov_b32 v{U}, v{M}'))
    r.append(I(f'v_permlane32_swap_b32 v{M}, v{U}'))
    for i in range(10):
        r.append(I(f'v_fma_f32 v{E+i}, v{x[i]}, v{V_C}, -v{M}'))
        r.append(I(f'v_fma_f32 v{x[i]}, -v{x[i]}, v{V_C}, -v{U}'))
    for i in range(10):
        r.append(I(f'v_exp_f32 v{E+i}, v{E+i}'))
        r.append(I(f'v_exp_f32 v{x[i]}, v{x[i]}'))
    r.append(I(f'v_add_f32 v{SP}, v{E}, v{E+1}')); r.append(I(f'v_add_f32 v{SN}, v{x[0]}, v{x[1]}'))
    for i in range(2, 10):
        r.append(I(f'v_add_f32 v{SP}, v{SP}, v{E+i}')); r.append(I(f'v_add_f32 v{SN}, v{SN}, v{x[i]}'))
    r.append(I(f'v_permlane32_swap_b32 v{SP}, v{SN}'))
    r.append(I(f'v_add_f32 v{SP}, v{SP}, v{SN}'))
    r.append(I(f'v_rcp_f32 v{SP}, v{SP}'))
    r.append(I(f'v_mov_b32 v{SN}, v{SP}'))
    r.append(I(f'v_permlane32_swap_b32 v{SP}, v{SN}'))
    for i in range(10):
        r.append(I(f'v_mul_f32 v{E+i}, v{E+i}, v{SP}')); r.append(I(f'v_mul_f32 v{x[i]}, v{x[i]}, v{SN}'))
    for p in range(5): r.append(I(f'v_cvt_pk_bf16_f32 v{P+p}, v{E+2*p}, v{E+2*p+1}'))
    for p in range(5): r.append(I(f'v_cvt_pk_bf16_f32 v{P+5+p}, v{x[2*p]}, v{x[2*p+1]}'))
    return r

def feature_maps(acc0, dest, sink, between):
    KB, DV, E = 64, (84, 100), 116
    def phi(h):
        r = []
        for dl in range(2):
            d = vr(DV[h % 2], 16)
            r.append(I(f'v_mfma_f32_32x32x16_bf16 {d}, {ar(A_PF + 4*(2*h+dl))}, {vr(KB + 4*(h+dl))}, {"0" if dl == 0 else d}'))
        return r
    r = [I(f'v_cvt_pk_bf16_f32 v{KB+k}, v{acc0+2*k}, v{acc0+2*k+1}') for k in range(20)]
    r += phi(0)
    r += between
    for h in range(4):
        sm = softmax_head(DV[h % 2], E, dest(h))
        if h + 1 < 4: sm = sm[:12] + phi(h + 1) + sm[12:]
        r += sm
        r += sink(h)
    return r

def wo_task_setup(vb, t0):
    c = []
    A = lambda t: c.append(I(t))
    A(f's_lshl_b32 s64, s{S_I}, 3'); A(f's_add_u32 s64, s64, s{S_G}'); A('s_lshl_b32 s64, s64, 2'); A(f's_add_u32 s64, s64, s{S_WAVE}')
    A('s_lshr_b32 s89, s64, 3'); A('s_and_b32 s65, s64, 7')
    A('s_mul_i32 s66, s65, 160')
    srd(c, SRD_T, S_WO, 's66', None)
    A('s_cmp_lt_u32 s89, 20'); A(f's_cselect_b32 s{SRD_T+2}, {639*1280+160}, 0')
    A('s_lshl_b32 s67, s89, 2')
    for p in range(5):
        a, b, d, e = t0, t0 + 1, t0 + 2, t0 + 3
        A(f'v_add_u32 v{a}, {64*p}, v{V_LANE}')
        A(f'v_mul_u32_u24 v{b}, 6554, v{a}'); A(f'v_lshrrev_b32 v{b}, 16, v{b}')
        A(f'v_mul_u32_u24 v{d}, 10, v{b}'); A(f'v_sub_u32 v{a}, v{a}, v{d}')
        A(f'v_lshrrev_b32 v{d}, 3, v{b}'); A(f'v_add_u32 v{d}, s67, v{d}')
        A(f'v_and_b32 v{b}, 7, v{b}')
        A(f'v_mul_u32_u24 v{e}, 6554, v{d}'); A(f'v_lshrrev_b32 v{e}, 16, v{e}')
        A(f'v_mul_u32_u24 v{t0+4}, 10, v{e}'); A(f'v_sub_u32 v{d}, v{d}, v{t0+4}')
        A(f'v_mul_u32_u24 v{e}, 80, v{e}')
        A(f'v_lshrrev_b32 v{t0+4}, 1, v{d}'); A(f'v_mul_u32_u24 v{t0+4}, 20, v{t0+4}')
        A(f'v_and_b32 v{t0+5}, 1, v{d}'); A(f'v_lshl_add_u32 v{t0+4}, v{t0+5}, 2, v{t0+4}')
        A(f'v_lshrrev_b32 v{t0+5}, 2, v{b}'); A(f'v_lshl_add_u32 v{t0+4}, v{t0+5}, 3, v{t0+4}')
        A(f'v_mul_u32_u24 v{t0+5}, 20, v{t0+5}'); A(f'v_subrev_u32 v{t0+6}, 8, v{d}'); A(f'v_mul_u32_u24 v{t0+6}, 40, v{t0+6}')
        A(f'v_add_u32 v{t0+5}, v{t0+5}, v{t0+6}'); A(f'v_add_u32 v{t0+5}, 16, v{t0+5}')
        c.append([I(f'v_cmp_gt_u32 vcc, 8, v{d}'), I(f'v_and_b32 v{b}, 3, v{b}'), I(f'v_cndmask_b32 v{t0+4}, v{t0+5}, v{t0+4}, vcc')])
        A(f'v_add_u32 v{e}, v{e}, v{b}'); A(f'v_add_u32 v{e}, v{e}, v{t0+4}')
        A(f'v_mul_u32_u24 v{e}, 1280, v{e}'); A(f'v_lshl_add_u32 v{e}, v{a}, 4, v{e}')
        A(f'v_subrev_u32 v{vb+p}, {(p % 4)*1024}, v{e}')
    A(f's_mul_i32 s65, s65, {NKS}'); A('s_add_u32 s65, s65, s89'); A('s_add_u32 s65, s65, 54'); A('s_mul_i32 s65, s65, 5120'); A(f's_add_u32 s65, s65, {WP_OFF}')
    A(f's_add_u32 s90, s{S_WS}, s65'); A(f's_addc_u32 s91, s{S_WS+1}, 0')
    return c

def att_role(c0, st):
    c = c0
    A = lambda t, **k: c.append(I(t, **k))
    NM, NB = OPT['nm'], OPT['nb']
    V_KVD, V_QD = 16, 21
    V_KVA, V_QA = 24, 26
    V_CA, V_CB = 30, 31
    V_W0, V_W1, V_W2, V_W3 = 8, 9, 10, 11
    S_W3 = 74
    srd(c, SRD_W, S_WQKV, None, D * 3 * D * 2)
    A(f's_mul_i32 s{S_T0}, s{S_G}, 160'); A(f's_mul_i32 s{S_T1}, s{S_WAVE}, {16*3840}'); A(f's_add_u32 s{S_T0}, s{S_T0}, s{S_T1}')
    A(f's_mul_i32 s{S_W5K}, s{S_WAVE}, 5120'); A(f's_mul_i32 s{S_W3}, s{S_WAVE}, 3072')
    for p in range(5):
        A(f'v_add_u32 v32, {64*p}, v{V_LANE}')
        A('v_mul_u32_u24 v33, 3277, v32'); A('v_lshrrev_b32 v33, 16, v33')
        A('v_mul_u32_u24 v34, 20, v33'); A('v_sub_u32 v34, v32, v34')
        A('v_cmp_gt_u32 vcc, 10, v34')
        A('v_lshlrev_b32 v34, 4, v34')
        A('v_mul_u32_u24 v33, 3840, v33')
        A(f'v_add_u32 v35, {1280}, v34'); A(f'v_add_u32 v36, {2560-160}, v34')
        A('v_cndmask_b32 v34, v36, v35, vcc')
        A('v_add_u32 v33, v33, v34'); A(f'v_add_u32 v33, s{S_T0}, v33')
        A(f'v_subrev_u32 v{V_KVD+p}, {(p % 4)*1024}, v33')
    for p in range(3):
        A(f'v_add_u32 v32, {64*p}, v{V_LANE}')
        A('v_mul_u32_u24 v33, 5462, v32'); A('v_lshrrev_b32 v33, 16, v33')
        A('v_mul_u32_u24 v34, 12, v33'); A('v_sub_u32 v34, v32, v34')
        A('v_mul_u32_u24 v33, 3840, v33'); A('v_lshl_add_u32 v33, v34, 4, v33'); A(f'v_add_u32 v33, s{S_T0}, v33')
        A(f'v_subrev_u32 v{V_QD+p}, {p*1024}, v33')
    TOUCH = OPT.get('touch', 0)
    V_TX, V_TW, V_TD, SRD_TX = 4, 5, 0, 28
    def touch(n):
        return [I(f's_mul_i32 s72, s{S_KB+n}, 1920'),
                I(f'buffer_load_dword v{V_TD}, v{V_TW}, s[{SRD_W}:{SRD_W+3}], s72 offen', tag='tch'),
                I(f'buffer_load_dword v{V_TD}, v{V_TX}, s[{SRD_TX}:{SRD_TX+3}], s{S_KB+n} offen', tag='tch')]
    if TOUCH:
        A(f's_and_b32 s64, s{S_I}, 7'); A('s_lshl_b32 s64, s64, 3'); A(f's_lshl_b32 s65, s{S_WAVE}, 1'); A('s_add_u32 s64, s64, s65')
        A(f'v_lshrrev_b32 v34, 4, v{V_LANE}'); A('v_and_b32 v35, 1, v34'); A('v_add_u32 v35, s64, v35'); A('v_mul_u32_u24 v35, 3840, v35')
        A(f'v_and_b32 v36, 3, v{V_LANE}'); A('v_lshl_add_u32 v35, v36, 6, v35')
        A(f'v_bfe_u32 v36, v{V_LANE}, 2, 2'); A('v_mul_u32_u24 v37, 1280, v36'); A('v_add_u32 v35, v35, v37')
        A(f's_mul_i32 s64, s{S_G}, 160'); A('s_and_b32 s64, s64, 0xffffff80'); A('v_add_u32 v35, s64, v35')
        A('v_cmp_gt_u32 vcc, 3, v36'); A(f'v_mov_b32 v37, {OOB:#x}'); A('v_cndmask_b32 v35, v37, v35, vcc')
        A(f'v_cmp_gt_u32 vcc, 32, v{V_LANE}'); A(f'v_cndmask_b32 v{V_TW}, v37, v35, vcc')
        c.extend(touch_x_setup(V_TX, 34))
        A(f's_mul_i32 s64, s{S_I}, {128*1280}')
        srd(c, SRD_TX, S_X, 's64', 128 * 1280)
        for n in range(2, 10): c.extend(kb_entry(n))
        for n in range(TOUCH): c.extend(touch(n))
    ring = Ring()
    for n in range(10): ring.add_at(SLOT_A[n % 3], 32 * K)
    NE, LA = OPT['ea'], OPT['la']
    p4stages = [(('rot', n, NE, 0), 4) for n in range(NE)]
    KLATE = 4 * NE
    p4stages += [(54 + 4 * k, 4) for k in range(5)]
    p4stages += [(54 - LA + 4 * k, min(4, LA - 4 * k)) for k in range((LA + 3) // 4)]
    qorder = (4, 5, 6, 7, 0, 1, 2, 3)
    for k in range(len(p4stages)): ring.add_at(QSLOT[qorder[k % 8]], 20 * K, not_before=9)
    def pieces(n):
        if n >= 10: return p4.pieces(n - 10)
        base = ring.alloc[n][0]; r = []
        for p in range(5):
            g = [I(f's_mul_i32 s{S_SOFF2}, s{S_KB+n}, 1920')] if p == 0 else []
            g.append(dma(f'buffer_load_dwordx4 v{V_KVD+p}, s[{SRD_W}:{SRD_W+3}], s{S_SOFF2} offen offset:{(p%4)*1024} lds', (S_W5K, base + (4096 if p == 4 else 0)), tag=f'w{n}'))
            r.append(g)
        for p in range(3):
            r.append([dma(f'buffer_load_dwordx4 v{V_QD+p}, s[{SRD_W}:{SRD_W+3}], s{S_SOFF2} offen offset:{p*1024} lds', (S_W3, base + 20480), tag=f'w{n}')])
        return r
    stream = Stream(ring, pieces)
    stream.limit = 10
    V_L16, V_B1 = 12, 15
    V_WIN = (12, 13, 14)
    SRD_WP, SRD_PA = SRD_X, SRD_W2
    PACC = lambda ct, tg: 128 + 8 * ct + 4 * tg
    p4 = P4(stream, 10, p4stages,
            BF=lambda s, tg: ar(8 * (s % NB) + 4 * tg), AF=lambda s, ct: ar(96 + 20 * (s % 2) + 4 * ct),
            ACC=lambda ct, tg: vr(PACC(ct, tg)), v_l16=V_L16, v_b0=V_L16, v_b1=V_B1, srd_wp=SRD_WP, srd_act=SRD_PA, s_ao=70, s_wo=72)
    p0 = pieces(0)
    c.extend(flat(p0[:4]))
    st(c, 'iss')
    zero_stores(c, 40)
    if not TOUCH:
        for n in range(2, 10): c.extend(kb_entry(n))
    x_read_addrs(c)
    A(f's_mov_b32 s{S_MASK}, 0xffff0000')
    A(f'v_bfe_u32 v32, v{V_LANE}, 2, 2'); A(f'v_lshl_add_u32 v32, v{V_HH}, 3, v32')
    A(f'v_bfe_u32 v33, v{V_LANE}, 4, 1'); A('v_lshlrev_b32 v33, 5, v33')
    A(f'v_and_b32 v34, 3, v{V_LANE}'); A('v_lshl_add_u32 v33, v34, 3, v33')
    for (reg, pitch) in ((V_KVA, 320), (V_QA, 192)):
        A(f'v_mul_u32_u24 v34, {pitch}, v32'); A(f'v_add_u32 v{reg}, v34, v33'); A(f'v_add_u32 v{reg+1}, 0x10000, v{reg}')
    A(f's_lshl_b32 s{S_T0}, s{S_G}, 2'); A(f's_add_u32 s{S_T0}, s{S_T0}, s{S_WAVE}'); A(f's_mul_i32 s{S_T0}, s{S_T0}, 800')
    srd(c, SRD_PH, S_WPHI, f's{S_T0}', 800)
    A(f'v_lshlrev_b32 v32, 1, v{V_T}')
    A(f'v_subrev_u32 v33, 4, v32')
    A(f'v_cmp_gt_u32 vcc, 18, v{V_T}'); A('v_cndmask_b32 v33, v33, v32, vcc')
    A(f'v_and_b32 v34, 30, v{V_T}'); A('v_cmp_eq_u32 s[66:67], 20, v34'); A('s_nop 1'); A('s_or_b64 vcc, vcc, s[66:67]')
    A(f'v_mov_b32 v35, {OOB:#x}'); A('v_cndmask_b32 v33, v35, v33, vcc')
    A(f's_lshl_b32 s{S_T0}, s{S_WAVE}, 2')
    PFO, PFV = 108, 112
    for dl in range(2):
        for eh in range(2):
            A(f'v_lshlrev_b32 v36, 2, v{V_HH}'); A(f'v_add_u32 v36, {16*dl + 8*eh}, v36'); A(f'v_subrev_u32 v36, s{S_T0}, v36')
            A('v_cmp_gt_u32 vcc, 20, v36')
            A('v_mul_u32_u24 v37, 40, v36'); A('v_add_u32 v37, v37, v33')
            A(f'v_cndmask_b32 v{PFO + 2*dl + eh}, v35, v37, vcc')
    pf_loads = [I(f'buffer_load_ushort v{PFV + 8*dl + e}, v{PFO + 2*dl + (e >> 2)}, s[{SRD_PH}:{SRD_PH+3}], 0 offen offset:{(e & 3)*40}', tag='pf')
                for dl in range(2) for e in range(8)]
    act_lane_offset(c)
    srd(c, SRD_Z, S_WS, Z_OFF, Z_SIZE)
    p4_ids(c)
    A(f's_mul_i32 s{S_T0}, s{S_G}, 20480'); A(f's_add_u32 s{S_T0}, s{S_T0}, {Z_OFF + Z_KVS}')
    srd(c, SRD_KVS, S_WS, f's{S_T0}', 20480)
    ONE, V_PL, XT, STT, V_CSD, V_CF0, V_CF1 = 32, 37, 40, 56, 64, 96, 100
    V_SP, V_SA, V_CV, V_CAD = 28, 29, 104, 105
    V_A0, V_A1, V_A2 = 106, 107, 36
    S_CST = 75
    A(f's_lshl_b32 s{S_T0}, s{S_WAVE}, 6')
    A(f'v_add_u32 v{V_A0}, s{S_T0}, v{V_KVA}')
    A(f's_add_u32 s{S_T1}, s{S_T0}, {20480 - 64}')
    A(f's_mov_b32 s{S_CST}, 3072'); A('s_movk_i32 s64, 768')
    A(f's_cmp_eq_u32 s{S_WAVE}, 0'); A('s_cselect_b64 vcc, -1, 0'); A(f's_cselect_b32 s{S_CST}, 5120, s{S_CST}'); A('s_cselect_b32 s64, 1280, s64')
    A(f'v_add_u32 v32, 256, v{V_KVA}'); A(f'v_add_u32 v33, s{S_T1}, v{V_QA}')
    A(f'v_cndmask_b32 v{V_A1}, v33, v32, vcc'); A(f'v_add_u32 v{V_A2}, s64, v{V_A1}')
    for k in range(4): A(f'v_mov_b32 v{ONE+k}, 0x3f803f80')
    def reads(n, sp, T, dst):
        base = ring.alloc[n][0]; r = []
        for j in range(2):
            if T < 5: off, reg = base + sp * 5120 + j * 1280 + T * 64, V_KVA
            else: off, reg = base + 20480 + sp * 3072 + j * 768 + (T - 5) * 64, V_QA
            r.append(I(f'ds_read_b64_tr_b16 {ar(dst+2*j, 2)}, v{reg + (off >> 16)} offset:{off & 0xffff}'))
        return r
    afr = lambda s, T: A_FR + 32 * (s % 2) + 4 * T
    XA = lambda s: A_XF + 16 * ((s // 4) % 2) + 4 * (s % 4)
    st(c, 'setup')
    c.extend(flat(p0[4:]))
    c.extend(flat(x_dma(1)))
    p1 = pieces(1)
    c.extend(flat(p1[:OPT['p1']]))
    stream.next = 2
    stream.release(0)
    stream.push_front(p1[OPT['p1']:])
    stream.queue += [pf_loads[4*k:4*k+4] for k in range(4)]
    c.append(WaitTag(['x0', 'w0', 'zero'])); A('s_barrier')
    st(c, 'S0')
    c.append(x_read(0, 0, ar(XA(0)), tag='A0a'))
    for T in range(8):
        for ins in reads(0, 0, T, afr(0, T)):
            ins.tag = f'A0{"a" if T < 4 else "b"}'; c.append(ins)
    c.extend(zero_flag(60))
    hooks = {}
    def add(key, lst): hooks.setdefault(key, []).extend(lst)
    for n in range(10):
        for sub in range(1, 4):
            add((4 * n, sub - 1), [x_read(n, sub, ar(XA(4 * n + sub)), tag=f'A{4*n+sub}a')])
        if n + 2 < 10:
            if n == 0: hooks[('cb', 1, 0)] = lambda: stream.insert_after('w1', x_dma(2))
            else: hooks[('cb', 4 * n + 1, 0)] = (lambda nn: (lambda: stream.push_front(x_dma(nn))))(n + 2)
    if TOUCH:
        for n in range(10):
            if n + TOUCH < 10: add((4 * n + 3, 4), touch(n + TOUCH))
    for sub in range(4): add((0, sub), [x_read(0, sub, vr(XT + 4 * sub))])
    xhook = lambda s: [x_read(s // 4, 0, ar(XA(s)), tag=f'A{s}a')] if s % 4 == 0 else []
    fill = []
    for sp in range(4):
        g0 = 4 + 6 * sp
        for j in range(2): fill.append((g0, I(f'ds_read_b64_tr_b16 v[{V_CF0+2*j}:{V_CF0+2*j+1}], v{V_A0} offset:{sp*5120 + j*1280}'), 25))
        fill.append((g0, I(f'ds_read_b64_tr_b16 v[{V_CF1}:{V_CF1+1}], v{V_A1}'), 25))
        fill.append((g0, I(f'ds_read_b64_tr_b16 v[{V_CF1+2}:{V_CF1+3}], v{V_A2}'), 25))
        if sp < 3:
            fill.append((g0, I(f'v_add_u32 v{V_A1}, s{S_CST}, v{V_A1}'), 25)); fill.append((g0, I(f'v_add_u32 v{V_A2}, s{S_CST}, v{V_A2}'), 25))
        for t, f in enumerate((V_CF0, V_CF1)):
            d = V_CSD + 16 * t
            fill.append((g0 + 2, I(f'v_mfma_f32_32x32x16_bf16 {vr(d,16)}, {vr(ONE)}, {vr(f)}, {"0" if sp == 0 else vr(d,16)}'), 25))
    fill += [(32, [I(f'v_permlane32_swap_b32 v{V_CSD}, v{V_CSD+16}'), I(f'v_mov_b32 v{V_CV}, v{V_CSD}')], 50)]
    zd = [I(f'v_and_b32 v{V_CA}, 15, v{V_LANE}'), I(f'v_lshlrev_b32 v{V_CA}, 2, v{V_CA}'), I(f'v_mov_b32 v{V_CB}, 1')]
    srd(zd, SRD_DB, S_DBG, OPT.get('dbgoff', 0), 64); zd = atoms(zd)
    zd.append(poll_load('zd', SRD_DB, V_CA, V_PL))
    fill += [(33, i, 50) for i in zd]
    fill += [(34, i, 72) for i in stat_partial(XT, STT, V_SP)]
    fill += [(62, i, 80) for i in atoms(stat_addr(V_SA))]
    cad = [I(f's_lshl_b32 s64, s{S_J}, 11'), I(f's_add_u32 s64, s64, {Z_CS}'), I(f's_lshl_b32 s65, s{S_WAVE}, 8'), I('s_add_u32 s64, s64, s65'),
           [I(f's_cmp_lt_u32 s{S_I}, 10'), I(f's_cselect_b32 s64, s64, {OOB:#x}')],
           I(f'v_lshlrev_b32 v{V_CAD}, 2, v{V_LANE}'), I(f'v_add_u32 v{V_CAD}, s64, v{V_CAD}')]
    fill += [(62, i, 86) for i in cad]
    fill += [(91, I(f'buffer_atomic_add_f32 v{V_SP}, v{V_SA}, s[{SRD_Z}:{SRD_Z+3}], 0 offen', tag='sat'), 93),
             (91, I(f'buffer_atomic_add_f32 v{V_CV}, v{V_CAD}, s[{SRD_Z}:{SRD_Z+3}], 0 offen', tag='sat'), 94)]
    pfw = [I(f's_lshl_b32 s64, s{S_WAVE}, 11'), I(f's_add_u32 s64, s64, {L_PF}'), I(f'v_lshlrev_b32 v{V_A0}, 4, v{V_LANE}'), I(f'v_add_u32 v{V_A0}, s64, v{V_A0}')]
    for dl in range(2):
        for p in range(4): pfw.append(I(f'v_lshl_or_b32 v{PFV+4*dl+p}, v{PFV+8*dl+2*p+1}, 16, v{PFV+8*dl+2*p}'))
    for dl in range(2): pfw.append(I(f'ds_write_b128 v{V_A0}, {vr(PFV+4*dl)} offset:{dl*1024}'))
    fill += [(96, i, 118) for i in pfw]
    WOV = 40
    wos = atoms(wo_task_setup(WOV, 64))
    fill += [(100, i, 135) for i in wos[:len(wos)//2]]
    pfr = [I(f'v_lshlrev_b32 v{V_A1}, 4, v{V_LANE}'), I(f'v_add_u32 v{V_A1}, {L_PF}, v{V_A1}')]
    pfr += [I(f'ds_read_b128 {ar(A_PF+4*f)}, v{V_A1} offset:{f*1024}') for f in range(8)]
    fill += [(128, i, 146) for i in pfr]
    cadd = [I(f's_lshl_b32 s69, s{S_I}, {TSH}'), I(f's_lshr_b32 s68, 0x0aff, s{S_J}'), I('s_and_b32 s68, s68, 1'),
            [I('s_cmp_eq_u32 s68, 1'), I(f's_cselect_b32 s69, s69, {OOB:#x}')],
            I(f's_lshl_b32 s68, s{S_J}, {RSH}'), I(f's_add_u32 s68, s68, {Z_CNT_R}'),
            [I(f's_cmp_lt_u32 s{S_I}, 10'), I(f's_cselect_b32 s68, s68, {OOB:#x}')],
            [I(f's_cmp_eq_u32 s{S_WAVE}, 0'), I(f's_cselect_b32 s69, s69, {OOB:#x}'), I(f's_cselect_b32 s68, s68, {OOB:#x}')]]
    cadd += two_lane(V_SA, 's69', 's68', other=f'{OOB:#x}')
    fill += [(130, i, 152) for i in cadd]
    fill += [(155, cnt_add(V_SA, V_SP, 'c0'), 157)]
    fill += [(156, i, 185) for i in wos[len(wos)//2:]]
    fill += [(187, i, 191) for i in wp_task_dma(WOV, L_WP)]
    wpre, wrd, wst = wp_task_finish(L_WP, 64, True, 's_cmp_lt_u32 s89, 20')
    fill += [(192, [wpre[0], wpre[1]], 200), (192, [wpre[2], wpre[3]], 200)] + [(192, i, 205) for i in wpre[4:]]
    pl = tline(S_I, 0) + rline(0, 's65') + two_lane(V_CA, 's64', 's65') + [I(f'v_mov_b32 v{V_CB}, 10')]
    fill += [(200, i, 216) for i in pl]
    fill += [(219, poll_load('f0', SRD_Z, V_CA, V_PL), 222)]
    fill += [(236, wrd, 248)]
    VS, VC = 100, 102
    ld = [I(f's_lshl_b32 s64, s{S_I}, 2'), I(f's_add_u32 s64, s64, s{S_WAVE}'), I('s_lshl_b32 s64, s64, 8'), I(f's_add_u32 s64, s64, {Z_STAT}'),
          I(f'v_lshlrev_b32 v{V_CA}, 3, v{V_T}'),
          I(f'buffer_load_dwordx2 v[{VS}:{VS+1}], v{V_CA}, s[{SRD_Z}:{SRD_Z+3}], s64 offen sc1'),
          I(f's_lshl_b32 s64, s{S_J}, 11'), I(f's_add_u32 s64, s64, {Z_CS}'), I(f'v_lshlrev_b32 v{V_CA}, 2, v{V_LANE}')]
    ld += [I(f'buffer_load_dword v{VC+p}, v{V_CA}, s[{SRD_Z}:{SRD_Z+3}], s64 offen offset:{p*256} sc1') for p in range(4)]
    fill += [(251, i, 258) for i in ld]
    fill += [(259, i, 264) for i in wst]
    woc = rep_addr(V_SP, T_WO, [I('s_cmp_lt_u32 s89, 20')], [I(f's_and_b32 s65, s{S_G}, 3')])
    fill += [(266, i, 290) for i in woc]
    fin = ln_final(VS, BMU, 56)
    for p in range(4): fin += cs_frag(VC + p, CSA + 4 * p, 56) + [I(f'v_mov_b32 v{CSA+4*p+3}, 0')]
    fin.append(I(f'v_mul_f32 v{V_C}, 0x3fb8aa3b, v{V_RS}'))
    fill += [(298, i, 319) for i in fin]
    def sync_pre(n):
        if n == 2: return poll_check('zd', SRD_DB, V_CA, V_PL, V_CB)
        if n == 7: return poll_check('f0', SRD_Z, V_CA, V_PL, V_CB)
        return []
    tagsA = lambda n: {2: ['pf'], 4: ['sat']}.get(n, [])
    def gapsA(s):
        if s < 8: return list(range(OPT['g0'])) if s % 4 < 3 else [0, 1]
        return [0, 2, 4, 6] if s % 4 < 3 else []
    main = gemm(stream, st, 0, 10, 8, lambda T: vr(ACC(T), 16), afr, lambda s: ar(XA(s)), reads, [], 'A',
                hooks=hooks, sync_pre=sync_pre, sync_tags=tagsA, xhook=xhook, final_sync=False, gaps=gapsA)
    if OPT.get('nofilla'): fill = [f for f in fill if OPT['nofilla'](f)]
    c.extend(weave(main, fill)); st(c, 'PA')
    for T in (0, 1, 2, 3, 4, 5, 6, 7):
        A(f'v_mfma_f32_32x32x16_bf16 {vr(ACC(T),16)}, {vr(CSA + 4*(T % 4))}, {vr(BMU + 4*(T // 4))}, {vr(ACC(T),16)}')
    KACC, VACC, QACC = ACC(0), ACC(0) + 40, ACC(5)
    pre = [I(f'v_mul_u32_u24 v60, {PHI_PITCH}, v{V_T}'), I(f's_mul_i32 s{S_T0}, s{S_WAVE}, {32*PHI_PITCH}'), I(f'v_add_u32 v60, s{S_T0}, v60'),
           I(f'v_lshl_add_u32 v{V_W0}, v{V_HH}, 4, v60'), I(f'v_lshl_add_u32 v{V_W1}, v{V_HH}, 3, v60'),
           I(f'v_mul_u32_u24 v60, {V_PITCH}, v{V_T}'), I(f's_mul_i32 s{S_T0}, s{S_WAVE}, {32*V_PITCH}'), I(f's_add_u32 s{S_T0}, s{S_T0}, {LDS_V}'),
           I(f'v_add_u32 v60, s{S_T0}, v60'),
           I(f'v_lshl_add_u32 v{V_W2}, v{V_HH}, 3, v60'), I(f'v_lshl_add_u32 v{V_W3}, v{V_HH}, 4, v60')]
    c.extend(pre)
    c.extend(tline(S_PT, T_WD) + poll_weights(V_CA, V_CB, 's64', 12))
    c.append(poll_load('wd', SRD_Z, V_CA, 63))
    ep = [WaitTag('wps', lgkm0=True), I('s_barrier')] + cnt_add(V_SP, V_SA, 'cw')
    for b in range(10):
        a = VACC + 4 * b; t = 56 + 2 * (b % 2)
        ep += [I(f'v_mul_f32 v{a+k}, v{V_RS}, v{a+k}') for k in range(4)]
        ep += [I(f'v_cvt_pk_bf16_f32 v{t}, v{a}, v{a+1}'), I(f'v_cvt_pk_bf16_f32 v{t+1}, v{a+2}, v{a+3}')]
        Q0 = 2 * b
        off = 8 * Q0 + 8 * (Q0 // 5)
        reg = V_W3 if (2 * b + 1) % 5 == 0 else V_W2
        ep.append(I(f'ds_write_b64 v{reg}, v[{t}:{t+1}] offset:{off}'))
    ep += [I('v_mov_b32 v60, 0x3f803f80'), I('v_mov_b32 v61, 0x3f803f80'),
           I(f'v_mul_u32_u24 v62, 88, v{V_HH}'), I(f'v_add_u32 v62, v62, v{V_W2}')]
    ep += [I(f'ds_write_b64 v62, v[60:61] offset:{40}'), I(f'ds_write_b64 v62, v[60:61] offset:{88}')]
    KP = 44
    def ksink(h):
        return [I(f'ds_write_b128 v{V_W0}, {vr(KP)} offset:{h*80}'),
                I(f'ds_write_b128 v{V_W0}, {vr(KP+4)} offset:{h*80+32}'),
                I(f'ds_write_b64 v{V_W1}, v[{KP+8}:{KP+9}] offset:{h*80+64}')]
    c.extend(feature_maps(KACC, lambda h: KP, ksink, ep)); st(c, 'kphi')
    kvpre = [I(f'v_bfe_u32 v32, v{V_LANE}, 2, 2'), I(f'v_lshl_add_u32 v32, v{V_HH}, 3, v32'),
           I(f'v_and_b32 v33, 3, v{V_LANE}'), I(f'v_bfe_u32 v34, v{V_LANE}, 4, 1'),
           I(f'v_mul_u32_u24 v35, {PHI_PITCH}, v32'), I(f's_mul_i32 s{S_T0}, s{S_WAVE}, 80'), I(f'v_add_u32 v35, s{S_T0}, v35'),
           I(f'v_lshl_add_u32 v35, v33, 3, v35'),
           I(f'v_lshl_add_u32 v36, v34, 5, v35'),
           I(f'v_add_u32 v37, 64, v35'),
           I(f'v_mul_u32_u24 v35, {V_PITCH}, v32'), I(f's_mul_i32 s{S_T0}, s{S_WAVE}, 48'), I(f's_add_u32 s{S_T0}, s{S_T0}, {LDS_V}'),
           I(f'v_add_u32 v35, s{S_T0}, v35'),
           I('v_lshlrev_b32 v38, 3, v33'),
           I('v_min_u32 v39, 1, v33'), I('v_lshlrev_b32 v39, 3, v39'), I('v_add_u32 v39, 32, v39'),
           I('v_cmp_eq_u32 vcc, 0, v34'), I('s_nop 1'), I('v_cndmask_b32 v38, v39, v38, vcc'),
           I(f'v_add_u32 v38, v35, v38')]
    c.extend(kvpre)
    st(c, 'kvpre')
    c.extend(poll_check('wd', SRD_Z, V_CA, 63, V_CB))
    st(c, 'wdok')
    A('s_waitcnt lgkmcnt(0)'); A('s_barrier')
    FA = 64
    def kvreads(k):
        b = FA + 12 * (k % 2); r = []
        for j in range(2):
            r.append(I(f'ds_read_b64_tr_b16 v[{b+2*j}:{b+2*j+1}], v36 offset:{k*16*PHI_PITCH + j*4*PHI_PITCH}'))
            r.append(I(f'ds_read_b64_tr_b16 v[{b+4+2*j}:{b+5+2*j}], v37 offset:{k*16*PHI_PITCH + j*4*PHI_PITCH}'))
            r.append(I(f'ds_read_b64_tr_b16 v[{b+8+2*j}:{b+9+2*j}], v38 offset:{k*16*V_PITCH + j*4*V_PITCH}'))
        return r
    KV0, KV1 = 96, 112
    c.extend(kvreads(0))
    for k in range(8):
        b = FA + 12 * (k % 2)
        if k + 1 < 8: c.extend(kvreads(k + 1))
        A(f'v_mfma_f32_32x32x16_bf16 {vr(KV0,16)}, {vr(b)}, {vr(b+8)}, {"0" if k == 0 else vr(KV0,16)}')
        A(f'v_mfma_f32_32x32x16_bf16 {vr(KV1,16)}, {vr(b+4)}, {vr(b+8)}, {"0" if k == 0 else vr(KV1,16)}')
    st(c, 'kvm')
    A(f'v_lshlrev_b32 v40, 2, v{V_T}'); A(f'v_lshl_add_u32 v40, v{V_HH}, 9, v40')
    A(f's_mul_i32 s{S_T0}, s{S_WAVE}, 5120'); A(f'v_add_u32 v40, s{S_T0}, v40')
    A(f'v_cmp_ge_u32 vcc, 20, v{V_T}'); A(f'v_mov_b32 v41, {OOB:#x}'); A('v_cndmask_b32 v40, v41, v40, vcc')
    A('v_add_u32 v41, 4096, v40')
    for i in range(16):
        A(f'buffer_atomic_add_f32 v{KV0+i}, v40, s[{SRD_KVS}:{SRD_KVS+3}], 0 offen offset:{(8*(i>>2) + (i&3))*128}', tag='kvat')
    for i in range(4):
        A(f'buffer_atomic_add_f32 v{KV1+i}, v41, s[{SRD_KVS}:{SRD_KVS+3}], 0 offen offset:{i*128}', tag='kvat')
    st(c, 'kvat')
    PQ = 128
    zz = [I(f'v_mov_b32 v{PQ+12*h+10+z}, 0') for h in range(4) for z in range(2)]
    qe = feature_maps(QACC, lambda h: PQ + 12 * h, lambda h: [], zz)
    kvc = cnt_addr(42, rline(R_2))
    arrive = kvc + [WaitTag('kvat'), I('s_barrier')] + cnt_add(42, 43, 'arr')
    cut = OPT.get('arr_cut', 250)
    c.extend(qe[:cut] + arrive + qe[cut:]); st(c, 'qphi')
    if MLPV == '7':
        c.extend(tline(S_PT, T_H2, 's65') + poll_shards(V_CA, V_CB, 's65', 4, 8) + rline(R_2))
        A(f'v_writelane_b32 v{V_CA}, s64, 4'); A(f'v_writelane_b32 v{V_CB}, 16, 4')
    else:
        c.extend(rline(R_2) + tline(S_PT, T_H01, 's65'))
        c.extend(two_lane(V_CA, 's64', 's65'))
        A(f'v_mov_b32 v{V_CB}, 16'); A(f'v_writelane_b32 v{V_CB}, 8, 1')
    c.append(poll_load('kv', SRD_Z, V_CA, 44))
    pa = [I(f'v_lshlrev_b32 v{V_L16}, 4, v{V_LANE}'), I(f'v_add_u32 v13, 0x10000, v{V_L16}'), I(f'v_add_u32 v14, 0x20000, v{V_L16}'),
          I(f'v_add_u32 v{V_B1}, {NKS*1024}, v{V_L16}'),
          I(f's_mul_i32 s64, s{S_PC}, {NKS*5120}'), I(f's_add_u32 s64, s64, {WP_OFF}')]
    srd(pa, SRD_WP, S_WS, 's64', NKS * 5120)
    pa += [I(f's_lshl_b32 s64, s{S_PT}, 2'), I(f's_add_u32 s64, s64, s{S_WAVE}'), I(f's_mul_i32 s64, s64, {2*NKS*1024}')]
    srd(pa, SRD_PA, S_WS, 's64', 2 * NKS * 1024)
    pa += rot_code(NE)
    c.extend(pa)
    stream.limit = 10 + min(4, NE); stream.release(10)
    c.extend(stream.flush())
    c.extend(poll_check('kv', SRD_Z, V_CA, 44, V_CB))
    A('s_barrier')
    st(c, 'kvok')
    A(f'v_min_u32 v32, 20, v{V_T}'); A('v_lshlrev_b32 v32, 2, v32'); A(f's_mul_i32 s{S_T0}, s{S_WAVE}, 5120'); A(f'v_add_u32 v32, s{S_T0}, v32')
    A(f'v_lshl_add_u32 v33, v{V_HH}, 10, v32')
    A(f'v_lshl_add_u32 v34, v{V_HH}, 9, v32'); A('v_add_u32 v34, 4096, v34')
    KL = 88
    for s in range(2):
        for e in range(8):
            A(f'buffer_load_dword v{KL+8*s+e}, v33, s[{SRD_KVS}:{SRD_KVS+3}], 0 offen offset:{(16*s+e)*128} sc1')
    for e in range(4):
        A(f'buffer_load_dword v{KL+16+e}, v34, s[{SRD_KVS}:{SRD_KVS+3}], 0 offen offset:{e*128} sc1')
    nb0 = min(NB, KLATE, 8)
    p4.nb_issued = nb0
    for s in range(nb0 // 2): c.extend(p4.bload(s))
    KC = 108
    for p in range(10): A(f'v_cvt_pk_bf16_f32 v{KC+p}, v{KL+2*p}, v{KL+2*p+1}')
    A(f'v_mov_b32 v{KC+10}, 0'); A(f'v_mov_b32 v{KC+11}, 0')
    A(f's_mul_i32 s{S_T0}, s{S_WAVE}, 3072'); A(f's_add_u32 s{S_T0}, s{S_T0}, {L_KVT - 65536}')
    A(f'v_add_u32 v120, s{S_T0}, v13'); A(f'v_add_u32 v121, {L_KVT - 65536}, v13')
    for s in range(3): A(f'ds_write_b128 v120, {vr(KC+4*s)} offset:{s*1024}')
    st(c, 'kvl')
    A('s_waitcnt lgkmcnt(0)'); A('s_barrier')
    FR, DD, OP, TL = 32, 176, 240, 80
    for h in range(4):
        for s in range(3): A(f'ds_read_b128 {vr(FR+12*h+4*s)}, v121 offset:{h*3072+s*1024}')
    for s in range(nb0 // 2, nb0): c.extend(p4.bload(s))
    for h in range(4):
        for s in range(3):
            dd = vr(DD + 16 * h, 16)
            A(f'v_mfma_f32_32x32x16_bf16 {dd}, {vr(FR+12*h+4*s)}, {vr(PQ+12*h+4*s)}, {"0" if s == 0 else dd}')
    for h in range(4):
        d = DD + 16 * h
        A(f'v_add_f32 v122, 0x358637bd, v{d+12}'); A('v_rcp_f32 v122, v122')
        for i in range(12): A(f'v_mul_f32 v{d+i}, v{d+i}, v122')
        for p in range(4): A(f'v_cvt_pk_bf16_f32 v{OP+4*h+p}, v{d+2*p}, v{d+2*p+1}')
        tl = TL + 4 * (h >> 1) + 2 * (h & 1)
        for p in range(2): A(f'v_cvt_pk_bf16_f32 v{tl+p}, v{d+8+2*p}, v{d+9+2*p}')
    def okstep(q):
        return [I(f's_mul_i32 s{S_T0}, s{S_G}, 10'), I(f's_add_u32 s{S_T0}, s{S_T0}, {q}'),
                I(f's_lshr_b32 s{S_T1}, s{S_T0}, 2'), I(f's_and_b32 s{S_T0}, s{S_T0}, 3'),
                I(f's_add_u32 s{S_T1}, s{S_T1}, 54'), I(f's_lshl_b32 s{S_T1}, s{S_T1}, 10'), I(f's_lshl_b32 s{S_T0}, s{S_T0}, 8'),
                I(f's_add_u32 s{S_T0}, s{S_T0}, s{S_T1}')]
    for h in range(4):
        c.extend(okstep(2 * h))
        A(f'buffer_store_dwordx4 {vr(OP+4*h)}, v{V_ACTL}, s[{SRD_ACT}:{SRD_ACT+3}], s{S_T0} offen sc1', tag='o')
    A(f'v_cmp_eq_u32 vcc, 0, v{V_HH}'); A(f'v_mov_b32 v122, {OOB:#x}'); A(f'v_cndmask_b32 v122, v122, v{V_ACTL}, vcc')
    for j in range(2):
        c.extend(okstep(8 + j))
        A(f'buffer_store_dwordx4 {vr(TL+4*j)}, v122, s[{SRD_ACT}:{SRD_ACT+3}], s{S_T0} offen sc1', tag='o')
    st(c, 'o')
    c.append(WaitTag('w10', lgkm0=True)); A('s_barrier')
    stream.limit = stream.n; stream.release(10)
    c.extend(p4.areads(0, V_WIN))
    XR, PR = 208, 168
    fillP = []
    oc = tline(S_I, T_O) + wave_shard() + [I(f'v_mov_b32 v42, {OOB:#x}'), I('v_writelane_b32 v42, s64, 0')]
    OG = OPT['osig']
    fillP += [(2, i, 10) for i in oc] + [(OG, [WaitTag('o')] + cnt_add(42, 43, 'co'), OG + 1)]
    OCHK = NE - 1
    po = tline(S_PT, T_O) + poll_shards(V_CA, V_CB, 's64', 4, 8) + [poll_load('oc', SRD_Z, V_CA, 44)]
    g_o = 10 * (4 * OCHK + 3) - 35
    fillP += [(g_o, i, g_o + 9) for i in po]
    nst = len(p4stages); nk = p4.nk
    xs = [I(f's_lshl_b32 s64, s{S_PT}, 7'), I(f's_lshl_b32 s65, s{S_WAVE}, 5'), I('s_add_u32 s64, s64, s65'), I('s_mul_i32 s64, s64, 1280'),
          I(f's_mul_i32 s65, s{S_PC}, 160'), I('s_add_u32 s64, s64, s65')]
    SRD_XR, SRD_O = SRD_T, SRD_T2
    srd(xs, SRD_XR, S_X2, 's64', None); xs.append(I(f's_sub_u32 s{SRD_XR+2}, {S*D*2}, s64'))
    srd(xs, SRD_O, S_OUT, 's64', None); xs.append(I(f's_sub_u32 s{SRD_O+2}, {S*D*2}, s64'))
    xs += [I(f'v_and_b32 v45, 15, v{V_LANE}'), I('v_mul_u32_u24 v45, 1280, v45'), I(f'v_lshrrev_b32 v46, 4, v{V_LANE}'), I('v_lshl_add_u32 v45, v46, 3, v45'),
           I(f'v_add_u32 v46, {16*1280}, v45')]
    for ct in range(5):
        for tg in range(2):
            k = 2 * ct + tg
            xs.append(I(f'buffer_load_dwordx2 v[{XR+2*k}:{XR+2*k+1}], v{45+tg}, s[{SRD_XR}:{SRD_XR+3}], 0 offen offset:{ct*32}'))
    g_x = 10 * (nk - 16)
    fillP += [(g_x, i, g_x + 40) for i in atoms(xs)]
    PCHK = nst - 3
    kp = [s for s, (n, k) in enumerate(p4.ks) if n == PCHK][-1]
    pp = [I(f's_lshl_b32 s64, s{S_PT}, {TSH}'), I(f's_lshl_b32 s65, s{S_PC}, 7'), I('s_add_u32 s64, s64, s65'), I(f's_add_u32 s64, s64, {T_P}'),
          I(f'v_mov_b32 v{V_CA}, s64'), I(f'v_mov_b32 v{V_CB}, 1'), poll_load('pc', SRD_Z, V_CA, 44)]
    fillP += [(10 * (kp - 5), i, 10 * (kp - 4)) for i in pp]
    pld = [I(f's_lshl_b32 s64, s{S_PT}, 3'), I(f's_add_u32 s64, s64, s{S_PC}'), I(f's_mul_i32 s64, s64, {PART_ONE}'),
           I(f's_mul_i32 s65, s{S_WAVE}, 10240'), I('s_add_u32 s64, s64, s65'), I(f's_add_u32 s64, s64, {PART_OFF}')]
    srd(pld, SRD_W, S_WS, 's64', 10240)
    for k in range(10):
        if k % 4 == 0: pld.append(I(f's_mov_b32 s65, {k*1024}'))
        pld.append(I(f'buffer_load_dwordx4 {vr(PR+4*k)}, v{V_L16}, s[{SRD_W}:{SRD_W+3}], s65 offen offset:{(k%4)*1024} sc1'))
    fillP += [(10 * kp + 2, i, 10 * kp + 35) for i in atoms(pld)]
    HCHK = NE + 2
    if LA:
        kh = [s for s, (n, k) in enumerate(p4.ks) if n == HCHK][-1]
        ph = tline(S_PT, T_H2) + poll_shards(47, 48, 's64', 4, 8) + [poll_load('h2', SRD_Z, 47, 49)]
        fillP += [(10 * (kh - 4), i, 10 * (kh - 3)) for i in ph]
    def spre(n):
        if LA and n == HCHK: return poll_check('h2', SRD_Z, 47, 49, 48)
        if n == OCHK: return poll_check('oc', SRD_Z, V_CA, 44, V_CB)
        if n == PCHK: return poll_check('pc', SRD_Z, V_CA, 44, V_CB)
        return []
    gate = lambda k, s: k < KLATE or (s >= 4 * OCHK + 3 and (k < KLATE + 20 or s >= 4 * HCHK + 3))
    mainP = p4.loop(st, V_WIN, NB, gate_b=gate, sync_pre=spre, stamp_at=OPT.get('pst', (7, 19)))
    c.extend(weave(mainP, sorted(fillP, key=lambda f: f[0]))); st(c, 'P4')
    assert stream.next == stream.n and not stream.queue
    for ct in range(5):
        for tg in range(2):
            k = 2 * ct + tg
            a, x, p = PACC(ct, tg), XR + 2 * k, PR + 4 * k
            A(f'v_lshlrev_b32 v50, 16, v{x}'); A(f'v_and_b32 v51, s{S_MASK}, v{x}')
            A(f'v_lshlrev_b32 v52, 16, v{x+1}'); A(f'v_and_b32 v53, s{S_MASK}, v{x+1}')
            for j in range(4): A(f'v_add_f32 v{a+j}, v{a+j}, v{p+j}')
            for j in range(4): A(f'v_add_f32 v{50+j}, v{50+j}, v{a+j}')
            A(f'v_cvt_pk_bf16_f32 v{54+2*(k%4)}, v50, v51'); A(f'v_cvt_pk_bf16_f32 v{55+2*(k%4)}, v52, v53')
            A(f'buffer_store_dwordx2 v[{54+2*(k%4)}:{55+2*(k%4)}], v{45+tg}, s[{SRD_O}:{SRD_O+3}], 0 offen offset:{ct*32}')
```

```python
from ir import *
from layout4 import *

def vr(b, n=4): return f'v[{b}:{b+n-1}]'
def ar(b, n=4): return f'a[{b}:{b+n-1}]'
K = 1024
OOB = 0x40000000

S_X, S_WQKV, S_WPHI, S_WO, S_BX, S_WG, S_WU, S_WD = 16, 18, 20, 22, 24, 26, 28, 30
S_OUT, S_DBG, S_WS = 32, 34, 36
S_WAVE, S_I, S_J, S_T0, S_T1, S_W4K = 38, 39, 40, 41, 42, 43
SRD_X, SRD_W, SRD_W2, SRD_ACT, SRD_Z = 44, 48, 52, 56, 60
SRD_T, SRD_T2 = 4, 12
S_SOFF, S_SOFF2, S_ROLE, S_MASK = 8, 9, 10, 11
S_KB = 76
S_PT, S_PC = 86, 87
S_W5K = 3
V_LANE, V_T, V_HH = 1, 2, 3
V_RS, V_MU = 4, 5
V_ACTL, V_ST = 6, 7
V_DMA, V_XR = 8, 12
XBASE = 96 * K
SLOT_A = (0, 32 * K, 64 * K)

OPT = dict(cpf=True, se=2, nm=4, nb=12, p1=4, g0=6, ea=3, la=0, h2g=60, hsig=40, osig=40)
if MLPV != '5': OPT.update(la=4, h2g=75)
if MLPV == '7': OPT.update(la=0, ea=3, h2g=75)

class Ring:
    def __init__(self): self.alloc = []; self.nb = {}
    def add_at(self, base, size, not_before=-1):
        self.alloc.append((base, size)); self.nb[len(self.alloc) - 1] = not_before
    def free_after(self, n):
        b, s = self.alloc[n]
        last = self.nb.get(n, -1)
        for m in range(n):
            bm, sm = self.alloc[m]
            if bm < b + s and b < bm + sm: last = max(last, m)
        return last

class Stream:
    def __init__(self, ring, pieces):
        self.ring = ring; self.pieces = pieces
        self.next = 0; self.queue = []; self.n = len(ring.alloc); self.limit = self.n
    def release(self, lim):
        self.lim = lim
        while self.next < min(self.n, self.limit) and self.ring.free_after(self.next) < lim:
            self.queue += self.pieces(self.next); self.next += 1
    def push_front(self, groups): self.queue = list(groups) + self.queue
    def insert_after(self, tag, groups):
        k = 0
        for j, g in enumerate(self.queue):
            if any(getattr(i, 'tag', None) == tag for i in g): k = j + 1
        self.queue[k:k] = list(groups)
    def take(self, k):
        out = []
        for _ in range(min(k, len(self.queue))): out += self.queue.pop(0)
        return out
    def flush(self): return self.take(len(self.queue))

class Stamps:
    def __init__(self, on, vreg=0, sreg=100): self.on = on; self.n = 0; self.v = vreg; self.s = sreg; self.pending = False; self.names = []
    def _commit(self, c):
        if self.pending:
            c.append(I('s_waitcnt lgkmcnt(0)'))
            c.append(I(f'v_writelane_b32 v{self.v}, s{self.s}, {self.n}')); self.n += 1; self.pending = False
    def __call__(self, c, name=''):
        if not self.on: return
        self._commit(c)
        c.append(I(f's_memtime s[{self.s}:{self.s+1}]')); self.pending = True; self.names.append(name)
    def real(self, c, name='real'):
        if not self.on: return
        self._commit(c)
        c.append(I(f's_memrealtime s[{self.s}:{self.s+1}]')); self.pending = True; self.names.append(name)
    def copy(self):
        o = Stamps(self.on, self.v, self.s); o.n = self.n; o.pending = self.pending; o.names = list(self.names); return o
    def dump(self, c, sel=None):
        if not self.on: return
        A = lambda t: c.append(I(t))
        self._commit(c)
        if sel is not None:
            wg, word0, names = sel
            A('s_waitcnt vmcnt(0) lgkmcnt(0)')
            A(f's_cmp_eq_u32 s2, {wg}'); A('s_cselect_b32 s6, 64, 0'); A(f's_cmp_eq_u32 s{S_WAVE}, 0'); A('s_cselect_b32 s6, s6, 0')
            A(f's_mov_b32 s4, s{S_DBG}'); A(f's_mov_b32 s5, s{S_DBG+1}'); A('s_mov_b32 s7, 0x00020000')
            for k, nme in enumerate(names):
                A(f'v_readlane_b32 s64, v{self.v}, {self.names.index(nme) if nme != "real2" else len(self.names) - 1}')
                A('s_nop 4')
                A('v_mov_b32 v1, s64'); A(f'v_mov_b32 v2, {(word0 + k) * 4}')
                A('buffer_store_dword v1, v2, s[4:7], 0 offen')
            A('s_waitcnt vmcnt(0)')
            return
        A('s_waitcnt vmcnt(0) lgkmcnt(0)')
        A(f's_lshl_b32 s64, s2, 2'); A(f's_add_u32 s64, s64, s{S_WAVE}'); A('s_lshl_b32 s64, s64, 8')
        A(f's_add_u32 s64, s64, {STAMP_OFF}')
        A(f's_add_u32 s4, s{S_WS}, s64'); A(f's_addc_u32 s5, s{S_WS+1}, 0')
        A('s_mov_b32 s6, 256'); A('s_mov_b32 s7, 0x00020000')
        A('v_mbcnt_lo_u32_b32 v1, -1, 0'); A('v_mbcnt_hi_u32_b32 v1, -1, v1'); A('v_lshlrev_b32 v1, 2, v1')
        A(f'buffer_store_dword v{self.v}, v1, s[4:7], 0 offen'); A('s_waitcnt vmcnt(0)')

def srd(c, d, base, off, nrec):
    if off is None:
        c += [I(f's_mov_b32 s{d}, s{base}'), I(f's_mov_b32 s{d+1}, s{base+1}')]
    else:
        c += [I(f's_add_u32 s{d}, s{base}, {off}'), I(f's_addc_u32 s{d+1}, s{base+1}, 0')]
    if nrec is not None: c.append(I(f's_mov_b32 s{d+2}, {nrec}'))
    c.append(I(f's_mov_b32 s{d+3}, 0x00020000'))

def code_prefetch(c, regions, vdst):
    A = lambda t, **k: c.append(I(t, **k))
    A('s_getpc_b64 s[4:5]')
    A('L_pc:')
    A('s_lshr_b32 s3, s2, 3'); A('s_lshl_b32 s3, s3, 9')
    A('v_lshrrev_b32 v33, 6, v0'); A('v_lshl_add_u32 v33, v33, 7, s3')
    A('v_and_b32 v34, 63, v0'); A('v_lshl_add_u32 v32, v34, 14, v33')
    lane = 0
    for lab, nblk in regions:
        if lane:
            A(f's_mov_b32 s3, {lab}-L_pc-{lane*16384}'); A(f'v_cmp_le_u32 vcc, {lane}, v34')
            A('v_lshl_add_u32 v35, v34, 14, v33'); A('v_add_u32 v35, s3, v35')
            A('v_cndmask_b32 v32, v32, v35, vcc')
        lane += nblk
    A('s_mov_b32 s6, L_code_end-L_pc'); A('s_mov_b32 s7, 0x00020000')
    A(f'v_cmp_le_u32 vcc, {lane}, v34'); A(f'v_mov_b32 v35, {OOB:#x}'); A('v_cndmask_b32 v32, v32, v35, vcc')
    A(f'buffer_load_dword v{vdst}, v32, s[4:7], 0 offen', tag='cpf')

def emit_wgmap(c):
    c += [I(f's_and_b32 s{S_T0}, s2, 7'), I(f's_lshr_b32 s{S_T1}, s2, 3'),
          I(f's_and_b32 s{S_I}, s{S_T0}, 1'), I(f's_lshl_b32 s{S_I}, s{S_I}, 3'),
          I(f's_and_b32 s{S_J}, s{S_T1}, 7'), I(f's_add_u32 s{S_I}, s{S_I}, s{S_J}'),
          I(f's_lshr_b32 s{S_J}, s{S_T0}, 1'), I(f's_lshl_b32 s{S_J}, s{S_J}, 2'),
          I(f's_lshr_b32 s{S_T1}, s{S_T1}, 3'), I(f's_add_u32 s{S_J}, s{S_J}, s{S_T1}')]

def kb_entry(n):
    if n == 0: return []
    return [I(f's_add_u32 s{S_KB+n}, s{S_KB+n-1}, 128'), I(f's_cmp_eq_u32 s{S_KB+n}, 1280'), I(f's_cselect_b32 s{S_KB+n}, 0, s{S_KB+n}')]

def x_dma(n):
    return [[dma(f'buffer_load_dwordx4 v{V_DMA+q}, s[{SRD_X}:{SRD_X+3}], s{S_KB+n} offen offset:{q*1024} lds',
                 (S_W4K, XBASE + (n % 2) * 16384), tag=f'x{n}')] for q in range(4)]

def x_read(n, sub, dst, tag=None):
    return I(f'ds_read_b128 {dst}, v{V_XR+sub} offset:{XBASE - 65536 + (n % 2) * 16384}', tag=tag)

def flat(groups): return [i for g in groups for i in g]

def prologue(c, st, regions):
    A = lambda t, **k: c.append(I(t, **k))
    A('s_load_dwordx16 s[16:31], s[0:1], 0')
    A('s_load_dwordx4 s[32:35], s[0:1], 64')
    A('s_load_dwordx2 s[36:37], s[0:1], 80')
    if OPT['cpf']: code_prefetch(c, regions, 63)
    A(f'v_and_b32 v{V_LANE}, 63, v0')
    A('v_lshrrev_b32 v32, 6, v0')
    A(f'v_lshrrev_b32 v33, 3, v{V_LANE}')
    A(f'v_readfirstlane_b32 s{S_WAVE}, v32')
    A(f'v_and_b32 v34, 7, v{V_LANE}')
    A('v_lshrrev_b32 v35, 1, v33')
    A('v_xor_b32 v34, v34, v35')
    A('v_mul_u32_u24 v33, 1280, v33')
    for q in range(4):
        A(f'v_xor_b32 v35, {4*(q&1)}, v34')
        A(f'v_lshl_add_u32 v35, v35, 4, v33')
        A(f'v_add_u32 v{V_DMA+q}, {q*(8*1280-1024)}, v35')
    emit_wgmap(c)
    A(f's_and_b32 s{S_T0}, s{S_J}, 3'); A(f's_mul_i32 s{S_T0}, s{S_T0}, 5'); A(f's_lshr_b32 s{S_T0}, s{S_T0}, 1')
    A(f's_lshr_b32 s{S_T1}, s{S_J}, 2'); A(f's_add_u32 s{S_T0}, s{S_T0}, s{S_T1}')
    rot = OPT.get('rot', 'ij')
    if rot == 'ij': A(f's_add_u32 s{S_T0}, s{S_T0}, s{S_I}')
    if rot == 'i': A(f's_mov_b32 s{S_T0}, s{S_I}')
    if rot == '0': A(f's_mov_b32 s{S_T0}, 0')
    for _ in range(2):
        A(f's_sub_u32 s{S_T1}, s{S_T0}, 10'); A(f's_cmp_ge_u32 s{S_T0}, 10'); A(f's_cselect_b32 s{S_T0}, s{S_T1}, s{S_T0}')
    A(f's_lshl_b32 s{S_KB}, s{S_T0}, 7')
    A(f's_lshl_b32 s{S_T0}, s{S_I}, 2'); A(f's_add_u32 s{S_T0}, s{S_T0}, s{S_WAVE}')
    A(f's_mul_i32 s{S_T1}, s{S_T0}, {32*1280}')
    A(f's_lshl_b32 s{S_W4K}, s{S_WAVE}, 12')
    A(f's_cmp_eq_u32 s{S_WAVE}, 0'); A(f's_cselect_b32 s73, 0, {OOB:#x}')
    A('s_waitcnt lgkmcnt(0)')
    srd(c, SRD_X, S_X, f's{S_T1}', 32 * 1280)
    c.extend(flat(x_dma(0)))
    A(f'v_and_b32 v{V_T}, 31, v{V_LANE}')
    A(f'v_lshrrev_b32 v{V_HH}, 5, v{V_LANE}')
    A(f's_lshr_b32 s{S_ROLE}, s{S_J}, 2'); A(f's_lshl_b32 s{S_ROLE}, s{S_ROLE}, 1')
    A(f's_and_b32 s{S_T0}, s{S_J}, 1'); A(f's_add_u32 s{S_ROLE}, s{S_ROLE}, s{S_T0}')
    c.extend(kb_entry(1))

def zero_stores(c, vt):
    A = lambda t, **k: c.append(I(t, **k))
    A(f's_mul_i32 s{S_T0}, s{S_J}, {Z_SHARE}'); A(f's_add_u32 s{S_T0}, s{S_T0}, {Z_OFF}')
    srd(c, SRD_T2, S_WS, f's{S_T0}', None)
    A(f's_cmp_eq_u32 s{S_I}, 0'); A(f's_cselect_b32 s{SRD_T2+2}, {Z_SHARE}, 0')
    for k in range(4): A(f'v_mov_b32 v{vt+k}, 0')
    A(f'v_lshlrev_b32 v{vt+4}, 4, v{V_LANE}'); A(f'v_add_u32 v{vt+4}, s{S_W4K}, v{vt+4}')
    for k in range(4):
        A(f'buffer_store_dwordx4 {vr(vt)}, v{vt+4}, s[{SRD_T2}:{SRD_T2+3}], 0 offen offset:{k*1024} sc1', tag='zero')
    A(f's_lshl_b32 s{S_T0}, s{S_WAVE}, 10'); A(f's_add_u32 s{S_T0}, s{S_T0}, 16384'); A(f'v_lshl_add_u32 v{vt+5}, v{V_LANE}, 4, s{S_T0}')
    A(f'buffer_store_dwordx4 {vr(vt)}, v{vt+5}, s[{SRD_T2}:{SRD_T2+3}], 0 offen sc1', tag='zero')

def zero_flag(vt):
    return [I(f's_or_b32 s{S_T0}, s{S_I}, s{S_WAVE}'), I(f's_cmp_eq_u32 s{S_T0}, 0'), I(f's_cselect_b32 s{SRD_T2+2}, 64, 0'),
            I(f's_add_u32 s{SRD_T2}, s{S_DBG}, {OPT.get("dbgoff", 0)}'), I(f's_addc_u32 s{SRD_T2+1}, s{S_DBG+1}, 0'),
            I(f's_lshl_b32 s{S_T0}, s{S_J}, 2'),
            I(f'v_mov_b32 v{vt}, 1'), I(f'v_lshlrev_b32 v{vt+1}, 6, v{V_LANE}'),
            I(f'buffer_store_dword v{vt}, v{vt+1}, s[{SRD_T2}:{SRD_T2+3}], s{S_T0} offen sc1', tag='zf')]

_lab = [0]
SPIN_SLOTS = ['zd', 'f0', 'wd', 'h01', 'h2', 'kv', 'oc', 'pc']
def poll_check(name, srd_, va, vp, ve):
    if OPT.get('nopoll'): return []
    _lab[0] += 1
    L = f'L_{name}_{_lab[0]}'
    dbg = OPT.get('spin')
    r = ([I('s_mov_b32 s69, 0')] if dbg else []) + [WaitTag(name), I(f'v_cmp_le_u32 vcc, v{ve}, v{vp}'), I('s_nop 1'), I('s_cmp_eq_u64 vcc, -1'), I(f's_cbranch_scc1 {L}_ok'),
         I(f's_cmp_lg_u32 s{S_WAVE}, 0'), I(f's_cbranch_scc1 {L}_ok')]
    r += offpath([I(f's_mov_b32 s69, {1 if dbg else 0}'), I(f'{L}_spin:'),
                  I(f'buffer_load_dword v{vp}, v{va}, s[{srd_}:{srd_+3}], 0 offen sc1'), I('s_waitcnt vmcnt(0)'),
                  I(f'v_cmp_le_u32 vcc, v{ve}, v{vp}'), I('s_nop 1'), I('s_cmp_eq_u64 vcc, -1'), I(f's_cbranch_scc1 {L}_ok'),
                  I('s_sleep 2'), I('s_add_u32 s69, s69, 1'), I('s_cmp_lt_u32 s69, 0x4000'), I(f's_cbranch_scc1 {L}_spin')])
    r.append(I(f'{L}_ok:'))
    if dbg:
        slot = 48 + SPIN_SLOTS.index(name)
        r.append(I(f'v_writelane_b32 v{V_ST}, s69, {slot}'))
    return r

S_W0 = 73
def poll_load(name, srd_, va, vp):
    return I(f'buffer_load_dword v{vp}, v{va}, s[{srd_}:{srd_+3}], s{S_W0} offen sc1', tag=name)

def two_lane(vd, sa, sb, other=None):
    r = [I(f'v_mov_b32 v{vd}, {sa if other is None else other}')]
    if other is not None: r.append(I(f'v_writelane_b32 v{vd}, {sa}, 0'))
    r.append(I(f'v_writelane_b32 v{vd}, {sb}, 1'))
    return r

def cnt_add(va, vone, tag):
    return [I(f'v_mov_b32 v{vone}, 1'), I(f'buffer_atomic_add v{vone}, v{va}, s[{SRD_Z}:{SRD_Z+3}], 0 offen', tag=tag)]

def cnt_addr(va, off_sreg_expr_code, cond_code=None):
    r = flat([x if isinstance(x, list) else [x] for x in off_sreg_expr_code])
    r += [I(f's_cmp_eq_u32 s{S_WAVE}, 0'), I(f's_cselect_b32 s64, s64, {OOB:#x}'),
          I(f'v_mov_b32 v{va}, {OOB:#x}'), I(f'v_writelane_b32 v{va}, s64, 0')]
    return r

def act_lane_offset(c):
    A = lambda t, **k: c.append(I(t, **k))
    A(f'v_lshrrev_b32 v32, 4, v{V_T}'); A(f'v_mul_u32_u24 v32, {NKS*1024}, v32')
    A(f'v_and_b32 v33, 15, v{V_T}'); A(f'v_lshl_add_u32 v33, v{V_HH}, 4, v33')
    A(f'v_lshl_add_u32 v{V_ACTL}, v33, 4, v32')
    A(f's_lshl_b32 s{S_T0}, s{S_I}, 2'); A(f's_add_u32 s{S_T0}, s{S_T0}, s{S_WAVE}')
    A(f's_mul_i32 s{S_T0}, s{S_T0}, {2*NKS*1024}')
    srd(c, SRD_ACT, S_WS, f's{S_T0}', 2 * NKS * 1024)

def x_read_addrs(c):
    A = lambda t, **k: c.append(I(t, **k))
    A(f'v_lshrrev_b32 v32, 1, v{V_T}'); A('v_and_b32 v32, 7, v32'); A(f'v_xor_b32 v32, v{V_HH}, v32')
    A(f'v_lshlrev_b32 v33, 7, v{V_T}'); A(f'v_add_u32 v33, s{S_W4K}, v33'); A('v_add_u32 v33, 0x10000, v33')
    for sub in range(4):
        A(f'v_xor_b32 v34, {2*sub}, v32'); A(f'v_lshl_add_u32 v{V_XR+sub}, v34, 4, v33')

def p4_ids(c):
    A = lambda t, **k: c.append(I(t, **k))
    A(f's_and_b32 s{S_PT}, s{S_I}, 11'); A(f's_and_b32 s{S_T0}, s{S_J}, 4'); A(f's_add_u32 s{S_PT}, s{S_PT}, s{S_T0}')
    A(f's_lshr_b32 s{S_PC}, s{S_J}, 3'); A(f's_lshl_b32 s{S_PC}, s{S_PC}, 2')
    A(f's_and_b32 s{S_T0}, s{S_J}, 1'); A(f's_lshl_b32 s{S_T0}, s{S_T0}, 1'); A(f's_add_u32 s{S_PC}, s{S_PC}, s{S_T0}')
    A(f's_bfe_u32 s{S_T0}, s{S_I}, 0x10002'); A(f's_add_u32 s{S_PC}, s{S_PC}, s{S_T0}')

def stat_partial(xt, t0, dst):
    r = [I(f'v_mov_b32 v{t0+4+k}, 0') for k in range(4)]
    for k in range(16):
        lo, hi = t0 + 2 * (k & 1), t0 + 2 * (k & 1) + 1
        r += [I(f'v_lshlrev_b32 v{lo}, 16, v{xt+k}'), I(f'v_and_b32 v{hi}, s{S_MASK}, v{xt+k}'),
              I(f'v_add_f32 v{t0+4}, v{t0+4}, v{lo}'), I(f'v_add_f32 v{t0+5}, v{t0+5}, v{hi}'),
              I(f'v_fmac_f32 v{t0+6}, v{lo}, v{lo}'), I(f'v_fmac_f32 v{t0+7}, v{hi}, v{hi}')]
    r += [I(f'v_add_f32 v{dst}, v{t0+4}, v{t0+5}'), I(f'v_add_f32 v{t0+6}, v{t0+6}, v{t0+7}'),
          I(f'v_permlane32_swap_b32 v{dst}, v{t0+6}'), I(f'v_add_f32 v{dst}, v{dst}, v{t0+6}')]
    return r

def stat_addr(va):
    return [I(f's_lshl_b32 s64, s{S_I}, 2'), I(f's_add_u32 s64, s64, s{S_WAVE}'), I('s_lshl_b32 s64, s64, 8'), I(f's_add_u32 s64, s64, {Z_STAT}'),
            I(f's_lshr_b32 s65, 0x0aff, s{S_J}'), I('s_and_b32 s65, s65, 1'), I('s_cmp_eq_u32 s65, 1'), I(f's_cselect_b32 s64, s64, {OOB:#x}'),
            I(f'v_lshlrev_b32 v{va}, 3, v{V_T}'), I(f'v_lshl_add_u32 v{va}, v{V_HH}, 2, v{va}'), I(f'v_add_u32 v{va}, s64, v{va}')]

def ln_final(vs, bmu, t0, V_RS=V_RS, V_MU=V_MU):
    A = []
    a = lambda t: A.append(I(t))
    a(f'v_mul_f32 v{V_MU}, {1.0/640!r}, v{vs}'); a(f'v_mul_f32 v{t0}, {1.0/640!r}, v{vs+1}')
    a(f'v_fma_f32 v{t0}, -v{V_MU}, v{V_MU}, v{t0}'); a(f'v_max_f32 v{t0}, 0, v{t0}'); a(f'v_add_f32 v{t0}, 0x3727c5ac, v{t0}')
    a(f'v_rsq_f32 v{V_RS}, v{t0}')
    n, hf, r1, mf, r2 = t0, t0 + 1, t0 + 2, t0 + 1, t0
    a(f'v_sub_f32 v{n}, 0, v{V_MU}')
    a(f'v_cvt_pk_bf16_f32 v{bmu}, v{n}, v{n}')
    a(f'v_and_b32 v{hf}, s{S_MASK}, v{bmu}'); a(f'v_sub_f32 v{r1}, v{n}, v{hf}')
    a(f'v_cvt_pk_bf16_f32 v{bmu+1}, v{r1}, v{n}')
    a(f'v_lshlrev_b32 v{mf}, 16, v{bmu+1}'); a(f'v_sub_f32 v{r2}, v{r1}, v{mf}')
    a(f'v_cvt_pk_bf16_f32 v{bmu+2}, v{r2}, v{r1}')
    a(f'v_cmp_eq_u32 vcc, 0, v{V_HH}')
    a(f'v_mov_b32 v{bmu+3}, 0'); a(f'v_mov_b32 v{bmu+7}, 0')
    for k in range(3): a(f'v_cndmask_b32 v{bmu+4+k}, v{bmu+k}, v{bmu+3}, vcc')
    for k in range(3): a(f'v_cndmask_b32 v{bmu+k}, v{bmu+3}, v{bmu+k}, vcc')
    return A

def cs_frag(vc, dst, t0):
    return [I(f'v_cvt_pk_bf16_f32 v{t0}, v{vc}, v{vc}'), I(f'v_and_b32 v{t0}, s{S_MASK}, v{t0}'), I(f'v_sub_f32 v{t0}, v{vc}, v{t0}'),
            I(f'v_cvt_pk_bf16_f32 v{dst}, v{vc}, v{t0}'), I(f'v_and_b32 v{t0+1}, s{S_MASK}, v{dst}'), I(f'v_sub_f32 v{t0}, v{t0}, v{t0+1}'),
            I(f'v_cvt_pk_bf16_f32 v{dst+1}, v{vc}, v{t0}'), I(f'v_mov_b32 v{dst+2}, v{dst}')]

def gemm(stream, st, st0, nst, ntile, acc, afr, bfr, reads, nxt_reads, pfx, hooks=None, sync_pre=None, sync_post=None,
         sync_tags=None, final_sync=True, xhook=None, gaps=None, sg=2, pre_stage=None):
    main = []
    hooks = hooks or {}
    nk = nst * 4
    h = ntile // 2
    SE = OPT['se']
    for s in range(nk):
        n = st0 + s // 4
        sp = s % 4
        last = sp == 3
        sync = last and (s + 1 < nk or final_sync)
        rd = []
        if s + 1 < nk:
            if xhook: rd += xhook(s + 1)
            for T in range(ntile):
                for ins in reads(n + (1 if last else 0), (s + 1) % 4, T, afr(s + 1, T)):
                    ins.tag = f'{pfx}{s+1}{"a" if T < h else "b"}'; rd.append(ins)
        else:
            rd = nxt_reads
        rgaps = list(range(sg if last else 0, ntile))
        share = [[] for _ in rgaps]
        for k, ins in enumerate(rd): share[k * len(rgaps) // max(len(rd), 1)].append(ins)
        for T in range(ntile):
            g = []
            if T == sg and sync:
                if sync_pre: g += sync_pre(n)
                g.append(WaitTag([f'w{n+1}', f'x{n+1}'] + (sync_tags(n) if sync_tags else []), lgkm0=True))
            elif T == h: g.append(WaitLg(f'{pfx}{s}b'))
            elif T == 0: g.append(WaitLg(f'{pfx}{s}a'))
            if T == 0 and pre_stage and (s in pre_stage): g += pre_stage[s]
            cc = '0' if s == 0 else acc(T)
            g.append(I(f'v_mfma_f32_32x32x16_bf16 {acc(T)}, {ar(afr(s,T))}, {bfr(s)}, {cc}'))
            if T == sg and sync:
                g.append(I('s_barrier'))
                if SE and (n % SE == 0): st(g, f'S{n+1}')
                stream.release(n + 1)
                if sync_post: g += sync_post(n)
            g += hooks.get((s, T), [])
            if T in rgaps: g += share[rgaps.index(T)]
            cb = hooks.get(('cb', s, T))
            if cb: cb()
            post = []
            for _ in range(gaps(s).count(T)): post += stream.take(1)
            main.append((g, post))
    return main

def finish(c, rep=None):
    c = place_m0(c)
    c = insert_waits(c, rep)
    c = insert_hazard_nops(c, rep)
    return c

def kd(name, vgpr, agpr_off, sgpr=96):
    return f""".amdhsa_kernel {name}
  .amdhsa_next_free_vgpr {vgpr}
  .amdhsa_next_free_sgpr {sgpr}
  .amdhsa_accum_offset {agpr_off}
  .amdhsa_group_segment_fixed_size 0
  .amdhsa_kernarg_size 88
  .amdhsa_user_sgpr_count 2
  .amdhsa_user_sgpr_kernarg_segment_ptr 1
  .amdhsa_system_sgpr_workgroup_id_x 1
.end_amdhsa_kernel
"""

def atoms(code):
    out = []
    for x in code:
        if isinstance(x, list): out.append(x); continue
        op = getattr(x, 'op', '')
        reads_scc = op in ('s_cselect_b32', 's_cselect_b64', 's_addc_u32', 's_subb_u32') or op.startswith('s_cbranch_scc')
        if reads_scc and out:
            prev = out[-1] if isinstance(out[-1], list) else [out[-1]]
            out[-1] = prev + [x]
        else:
            out.append(x)
    return out

def rep_addr(va, off, cond, shard):
    return [cond + [I(f's_cselect_b32 s64, 0, {OOB:#x}')],
            I(f's_or_b32 s64, s64, s{S_W0}'), shard + [I('s_lshl_b32 s65, s65, 7'), I('s_add_u32 s64, s64, s65')],
            I(f'v_lshlrev_b32 v{va}, {TSH}, v{V_LANE}'), I(f'v_add_u32 v{va}, {off}, v{va}'),
            [I(f'v_cmp_gt_u32 vcc, 16, v{V_LANE}'), I(f'v_mov_b32 v{va+1}, {OOB:#x}'), I(f'v_cndmask_b32 v{va}, v{va+1}, v{va}, vcc')],
            I(f'v_add_u32 v{va}, s64, v{va}')]

def tline(tile, off, dst='s64'):
    return [I(f's_lshl_b32 {dst}, s{tile}, {TSH}')] + ([I(f's_add_u32 {dst}, {dst}, {off}')] if off else [])

def rline(off, dst='s64'):
    return [I(f's_lshl_b32 {dst}, s{S_J}, {RSH}'), I(f's_add_u32 {dst}, {dst}, {Z_CNT_R + off}')]

def wave_shard(dst='s64', t='s65'):
    return [I(f's_lshl_b32 {t}, s{S_WAVE}, 7'), I(f's_add_u32 {dst}, {dst}, {t}')]

def poll_shards(va, ve, sbase, n, exp):
    return [I(f'v_min_u32 v{va}, {n-1}, v{V_LANE}'), I(f'v_lshl_add_u32 v{va}, v{va}, 7, {sbase}'), I(f'v_mov_b32 v{ve}, {exp}')]

def poll_weights(va, ve, sbase, n):
    return [I(f'v_min_u32 v{ve}, {n-1}, v{V_LANE}'), I(f'v_lshl_add_u32 v{va}, v{ve}, 7, {sbase}'), I(f'v_lshrrev_b32 v{ve}, 2, v{ve}'),
            I(f'v_mul_u32_u24 v{ve}, v{ve}, v{ve}'), I(f'v_sub_u32 v{ve}, 14, v{ve}')]

V_TX, V_TW, V_TD = 60, 61, 62
def touch_x_setup(vtx, t0):
    return [I(f's_and_b32 s64, s{S_J}, 3'), I('s_lshl_b32 s64, s64, 5'), I(f's_lshl_b32 s65, s{S_WAVE}, 3'), I('s_add_u32 s64, s64, s65'),
            I(f'v_lshrrev_b32 v{t0}, 1, v{V_LANE}'), I(f'v_add_u32 v{t0}, s64, v{t0}'), I(f'v_mul_u32_u24 v{t0}, 1280, v{t0}'),
            I(f'v_and_b32 v{t0+1}, 1, v{V_LANE}'), I(f'v_lshl_add_u32 v{t0}, v{t0+1}, 6, v{t0}'),
            I(f'v_cmp_gt_u32 vcc, 16, v{V_LANE}'), I(f'v_mov_b32 v{t0+1}, {OOB:#x}'), I(f'v_cndmask_b32 v{vtx}, v{t0+1}, v{t0}, vcc')]
```

```python
import numpy as np
S, D, F, H, DH = 2048, 640, 1728, 32, 20
NKS = 74
ACT_OFF = 0
ACT_SIZE = 128 * NKS * 1024
WP_OFF = 0xA00000
WP_SIZE = 8 * NKS * 5 * 1024
PART_OFF = 0xD00000
PART_ONE = 40960
Z_OFF = 0x1200000
TSH, RSH = 12, 8
T_ST, T_H01, T_H2, T_O, T_P, T_WD, T_WO = 0, 128, 256, 768, 1280, 2304, 3328
Z_CNT_R = 65536
R_2 = 128
Z_STAT = 69632
Z_CS = Z_STAT + 16384
Z_KVS = Z_CS + 32768
Z_SIZE = Z_KVS + 8 * 20480
Z_SHARE = Z_SIZE // 16
assert Z_SHARE * 16 == Z_SIZE and Z_SHARE % 16 == 0 and Z_SHARE <= 20 * 1024
STAMP_OFF = 0x1300000

import os
MLPV = os.environ.get('MLPV', 'old')
def ftile(s):
    if MLPV == '5': return s
    if s < 32: return 6 * (s >> 2) + (s & 3)
    if s < 48: return 6 * ((s - 32) >> 1) + 4 + (s & 1)
    return s

def krow(s, g, e):
    if s < 54:
        return 32 * ftile(s) + 16 * (g >> 1) + 8 * (e >> 2) + 4 * (g & 1) + (e & 3)
    J = 4 * (s - 54) + g
    G, q = divmod(J, 10)
    if q < 8:
        hp, hh = q >> 1, q & 1
        r = 20 * (4 * G + hp) + 4 * hh + 8 * (e >> 2) + (e & 3)
    else:
        j = q - 8
        r = 20 * (4 * G + 2 * j + (e >> 2)) + 16 + (e & 3)
    return F + r

KROW = np.array([[[krow(s, g, e) for e in range(8)] for g in range(4)] for s in range(NKS)])
assert sorted(KROW.reshape(-1).tolist()) == list(range(F + D))

def pack_act(act):
    l = np.arange(64)
    tok = (np.arange(128)[:, None] * 16 + (l & 15)[None, :])
    kr = KROW[:, l >> 4, :]
    return act[tok[:, None, :, None], kr[None, :, :, :]]

def pack_wp(wcat):
    l = np.arange(64)
    col = (80 * np.arange(8)[:, None, None] + 16 * np.arange(5)[None, :, None] + (l & 15)[None, None, :])
    kr = KROW[:, l >> 4, :]
    return wcat[kr[None, :, None, :, :], col[:, None, :, :, None]]

def wg_map(wg):
    xcd, q = wg & 7, wg >> 3
    i = 8 * (xcd & 1) + (q & 7)
    j = 4 * (xcd >> 1) + (q >> 3)
    return i, j

def role_index(j):
    return 2 * (j >> 2) + (j & 1)

def p4_map(i, j):
    return 8 * (i >> 3) + 4 * ((j >> 2) & 1) + (i & 3), 4 * (j >> 3) + 2 * (j & 1) + ((i >> 2) & 1)

def rot_of(i, j):
    return (i + (0, 2, 5, 7)[j & 3] + (j >> 2)) % 10

if __name__ == '__main__':
    for typ in (0, 2):
        seen = set()
        for wg in range(256):
            i, j = wg_map(wg)
            if (j & 2) == typ: seen.add(p4_map(i, j))
        assert len(seen) == 128
    for i in range(16):
        des = [0, 1, 2, 3, 4, 5, 6, 7, 9, 11]
        assert sorted(rot_of(i, j) for j in des) == list(range(10))
    for j in range(16):
        assert sorted(rot_of(i, j) for i in range(10)) == list(range(10))
    print('ok', Z_SIZE, Z_SHARE)
```

```python
from common import *
from p4 import *

XA = lambda s: 4 * s
AFB = 160
A_HU = 224
ACC = lambda u, T: 64 + 64 * u + 16 * T
V_WD, V_HD = 16, 20
V_AF, V_HA = 21, 27
V_CA, V_CB = 30, 31
BMU = 32
TT = 40
S_TK = 89

def wd_task_setup(c, vb):
    A = lambda t, **k: c.append(I(t, **k))
    A(f's_lshl_b32 s64, s{S_I}, 3'); A(f's_add_u32 s64, s64, s{S_ROLE}'); A('s_lshl_b32 s64, s64, 2'); A(f's_add_u32 s64, s64, s{S_WAVE}')
    A(f's_lshr_b32 s{S_TK}, s64, 3'); A('s_and_b32 s65, s64, 7')
    A(f's_lshr_b32 s66, s{S_TK}, 2'); A('s_mul_i32 s66, s66, 6'); A(f's_and_b32 s67, s{S_TK}, 3'); A('s_add_u32 s66, s66, s67')
    A(f's_sub_u32 s67, s{S_TK}, 32'); A('s_lshr_b32 s67, s67, 1'); A('s_mul_i32 s67, s67, 6'); A(f's_and_b32 s68, s{S_TK}, 1')
    A('s_add_u32 s67, s67, s68'); A('s_add_u32 s67, s67, 4')
    A(f's_cmp_lt_u32 s{S_TK}, 32'); A('s_cselect_b32 s66, s66, s67')
    A(f's_cmp_lt_u32 s{S_TK}, 48'); A(f's_cselect_b32 s66, s66, s{S_TK}')
    A(f's_mul_i32 s66, s66, {32*1280}'); A('s_mul_i32 s67, s65, 160'); A('s_add_u32 s66, s66, s67')
    srd(c, SRD_T, S_WD, 's66', None)
    A(f's_cmp_lt_u32 s{S_TK}, 54'); A(f's_cselect_b32 s{SRD_T+2}, {31*1280+160}, 0')
    for p in range(5):
        A(f'v_add_u32 v32, {64*p}, v{V_LANE}')
        A('v_mul_u32_u24 v33, 6554, v32'); A('v_lshrrev_b32 v33, 16, v33')
        A('v_mul_u32_u24 v34, 10, v33'); A('v_sub_u32 v34, v32, v34')
        A('v_mul_u32_u24 v33, 1280, v33'); A('v_lshl_add_u32 v33, v34, 4, v33')
        A(f'v_subrev_u32 v{vb+p}, {(p % 4)*1024}, v33')
    A(f's_mul_i32 s65, s65, {NKS}'); A(f's_add_u32 s65, s65, s{S_TK}'); A('s_mul_i32 s65, s65, 5120'); A(f's_add_u32 s65, s65, {WP_OFF}')
    A(f's_add_u32 s90, s{S_WS}, s65'); A(f's_addc_u32 s91, s{S_WS+1}, 0')

def wp_task_dma(vb, lds):
    return [dma(f'buffer_load_dwordx4 v{vb+p}, s[{SRD_T}:{SRD_T+3}], 0 offen offset:{(p % 4)*1024} lds',
                (S_W5K, lds + (4096 if p == 4 else 0)), tag='wp') for p in range(5)]

def wp_task_finish(lds, t0, dest_order, valid_cmp):
    r = [I(f's_mov_b32 s{SRD_T2}, s90'), I(f's_mov_b32 s{SRD_T2+1}, s91'), I(valid_cmp), I(f's_cselect_b32 s{SRD_T2+2}, 5120, 0')]
    if dest_order:
        r += [I(f'v_lshrrev_b32 v{t0}, 4, v{V_LANE}'), I(f'v_lshlrev_b32 v{t0}, 3, v{t0}')]
        jstep = 4 * 160
    else:
        r += [I(f'v_lshrrev_b32 v{t0}, 5, v{V_LANE}'), I(f'v_lshlrev_b32 v{t0}, 4, v{t0}'),
              I(f'v_bfe_u32 v{t0+1}, v{V_LANE}, 4, 1'), I(f'v_lshl_add_u32 v{t0}, v{t0+1}, 2, v{t0}')]
        jstep = 8 * 160
    r += [I(f'v_bfe_u32 v{t0+1}, v{V_LANE}, 2, 2'), I(f'v_add_u32 v{t0}, v{t0}, v{t0+1}'), I(f'v_mul_u32_u24 v{t0}, 160, v{t0}'),
          I(f'v_and_b32 v{t0+1}, 3, v{V_LANE}'), I(f'v_lshl_add_u32 v{t0}, v{t0+1}, 3, v{t0}'),
          I(f'v_add_u32 v{t0}, s{S_W5K}, v{t0}'), I(f'v_add_u32 v{t0}, {lds}, v{t0}'),
          I(f'v_lshlrev_b32 v{t0+1}, 4, v{V_LANE}')]
    rd = [WaitTag('wp')]
    for ct in range(5):
        d = t0 + 4 + 4 * ct
        for j in range(2):
            rd.append(I(f'ds_read_b64_tr_b16 v[{d+2*j}:{d+2*j+1}], v{t0} offset:{j*jstep + ct*32}'))
    stv = []
    for ct in range(5):
        d = t0 + 4 + 4 * ct
        off = f'offset:{ct*1024}' if ct < 4 else 'offset:0'
        so = '0' if ct < 4 else 's69'
        if ct == 4: stv.append(I('s_mov_b32 s69, 4096'))
        stv.append(I(f'buffer_store_dwordx4 {vr(d)}, v{t0+1}, s[{SRD_T2}:{SRD_T2+3}], {so} offen {off} sc1', tag='wps'))
    return r, rd, stv

def mlp_role(c0, st):
    c = c0
    A = lambda t, **k: c.append(I(t, **k))
    NM, NB = OPT['nm'], OPT['nb']
    S_T2K, SRD_DB = 92, 96
    A(f's_cmp_lt_u32 s{S_WAVE}, 2')
    A(f's_cselect_b32 s{SRD_W}, s{S_WG}, s{S_WU}'); A(f's_cselect_b32 s{SRD_W+1}, s{S_WG+1}, s{S_WU+1}')
    A(f's_cselect_b32 s{SRD_W2}, s{S_WG}, s{S_WU}'); A(f's_cselect_b32 s{SRD_W2+1}, s{S_WG+1}, s{S_WU+1}')
    A(f's_mov_b32 s{SRD_W+2}, {D*F*2}'); A(f's_mov_b32 s{SRD_W+3}, 0x00020000')
    A(f'v_lshrrev_b32 v32, 3, v{V_LANE}'); A(f'v_and_b32 v33, 7, v{V_LANE}')
    A('v_bfe_u32 v34, v32, 1, 1'); A('v_lshlrev_b32 v34, 2, v34'); A('v_xor_b32 v33, v33, v34')
    A(f's_and_b32 s{S_T0}, s{S_WAVE}, 1'); A(f's_lshl_b32 s{S_T0}, s{S_T0}, 3')
    A(f'v_add_u32 v32, s{S_T0}, v32'); A('v_mul_u32_u24 v32, 3456, v32'); A('v_lshl_add_u32 v32, v33, 4, v32')
    A(f's_mul_i32 s{S_T0}, s{S_ROLE}, 384')
    A(f'v_add_u32 v32, s{S_T0}, v32')
    for q in range(4): A(f'v_add_u32 v{V_WD+q}, {q*(16*3456-1024)}, v32')
    TOUCH = OPT.get('touch', 0)
    V_TX, V_TW, V_TD, SRD_TX = 4, 5, 0, 24
    def touch(n):
        k0 = n % 10
        r = [I(f's_mul_i32 s72, s{S_KB+k0}, 1728')]
        if n >= 10: r.append(I('s_add_u32 s72, s72, 256'))
        r.append(I(f'buffer_load_dword v{V_TD}, v{V_TW}, s[{SRD_W}:{SRD_W+3}], s72 offen', tag='tch'))
        if n < 10: r.append(I(f'buffer_load_dword v{V_TD}, v{V_TX}, s[{SRD_TX}:{SRD_TX+3}], s{S_KB+k0} offen', tag='tch'))
        return r
    if TOUCH:
        A(f's_and_b32 s64, s{S_I}, 7'); A('s_lshl_b32 s64, s64, 3'); A(f's_and_b32 s65, s{S_WAVE}, 1'); A('s_lshl_b32 s65, s65, 2'); A('s_add_u32 s64, s64, s65')
        A(f'v_lshrrev_b32 v34, 2, v{V_LANE}'); A('v_add_u32 v34, s64, v34'); A('v_mul_u32_u24 v34, 3456, v34')
        A(f'v_and_b32 v35, 3, v{V_LANE}'); A('v_lshl_add_u32 v34, v35, 6, v34'); A(f's_mul_i32 s64, s{S_ROLE}, 384'); A('v_add_u32 v34, s64, v34')
        A(f'v_cmp_gt_u32 vcc, 16, v{V_LANE}'); A(f'v_mov_b32 v35, {OOB:#x}'); A(f'v_cndmask_b32 v{V_TW}, v35, v34, vcc')
        c.extend(touch_x_setup(V_TX, 34))
        A(f's_mul_i32 s64, s{S_I}, {128*1280}')
        srd(c, SRD_TX, S_X, 's64', 128 * 1280)
        for n in range(2, 10): c.extend(kb_entry(n))
        for n in range(TOUCH): c.extend(touch(n))
    ring = Ring()
    for n in range(10): ring.add_at(SLOT_A[n % 3], 32 * K)
    SCR = 128 * K
    for k in range(10):
        ring.add_at((128, 32, 64, 96, 0)[k % 5] * K, 24 * K, not_before={0: 6, 3: 9}.get(k, -1))
    EA, LA = OPT['ea'], OPT['la']
    NE = 8 - EA
    NL = 22 - LA
    p4stages = [(('rot', n, NE, EA), 4) for n in range(NE)] + [(32 + 4 * k, min(4, NL - 4 * k)) for k in range((NL + 3) // 4)]
    qorder = (6, 7, 2, 3, 4, 5, 0, 1)
    for k in range(len(p4stages)): ring.add_at(QSLOT[qorder[k % 8]], 20 * K)
    V_L16, V_B1 = 8, 11
    V_WIN = (8, 9, 10)
    SRD_WP, SRD_PA = SRD_X, SRD_T
    def wpieces(n, base, tag):
        r = []
        units = (0, 1) if n < 10 else (2,)
        k0 = n % 10
        for ui, u in enumerate(units):
            for q in range(4):
                g = []
                if q == 0: g += [I(f's_mul_i32 s{S_SOFF2}, s{S_KB+k0}, 1728'), I(f's_add_u32 s{S_SOFF2}, s{S_SOFF2}, {u*128}')]
                g.append(dma(f'buffer_load_dwordx4 v{V_WD+q}, s[{SRD_W}:{SRD_W+3}], s{S_SOFF2} offen offset:{q*1024} lds', (S_W4K, base + ui * 16384), tag=tag))
                r.append(g)
        if n >= 10:
            for q in range(2):
                g = [I(f's_mul_i32 s{S_SOFF}, s{S_KB+k0}, 1728')] if q == 0 else [I(f's_add_u32 s{S_SOFF}, s{S_SOFF}, {16*3456-1024}')]
                g.append(dma(f'buffer_load_dwordx4 v{V_HD}, s[{SRD_W2}:{SRD_W2+3}], s{S_SOFF} offen offset:{q*1024} lds', (S_T2K, base + 16384), tag=tag))
                r.append(g)
        return r
    def pieces(n):
        if n >= 20: return p4.pieces(n - 20)
        return wpieces(n, ring.alloc[n][0], f'w{n}')
    stream = Stream(ring, pieces)
    stream.limit = 20
    p4 = P4(stream, 20, p4stages,
            BF=lambda s, tg: vr(64 + 8 * (s % NB) + 4 * tg), AF=lambda s, ct: ar(40 + 20 * (s % 2) + 4 * ct),
            ACC=lambda ct, tg: ar(8 * ct + 4 * tg), v_l16=V_L16, v_b0=V_L16, v_b1=V_B1, srd_wp=SRD_WP, srd_act=SRD_PA, s_ao=94, s_wo=93)
    p0 = pieces(0)
    c.extend(flat(p0[:4]))
    st(c, 'iss')
    zero_stores(c, 40)
    if not TOUCH:
        for n in range(2, 10): c.extend(kb_entry(n))
    A(f's_lshl_b32 s{S_T2K}, s{S_WAVE}, 11')
    A(f's_cmp_lt_u32 s{S_ROLE}, 6'); A(f's_cselect_b32 s{SRD_W2+2}, {D*F*2}, 0'); A(f's_mov_b32 s{SRD_W2+3}, 0x00020000')
    A(f'v_lshrrev_b32 v32, 2, v{V_LANE}'); A(f's_and_b32 s{S_T0}, s{S_WAVE}, 1'); A(f's_lshl_b32 s{S_T0}, s{S_T0}, 5')
    A(f'v_add_u32 v32, s{S_T0}, v32'); A('v_mul_u32_u24 v32, 3456, v32')
    A(f'v_and_b32 v33, 3, v{V_LANE}'); A('v_lshl_add_u32 v32, v33, 4, v32')
    A(f's_lshl_b32 s{S_T0}, s{S_ROLE}, 6'); A(f's_add_u32 s{S_T0}, s{S_T0}, {1536*2}'); A(f'v_add_u32 v{V_HD}, s{S_T0}, v32')
    x_read_addrs(c)
    A(f's_mov_b32 s{S_MASK}, 0xffff0000')
    A(f's_mul_i32 s{S_W5K}, s{S_WAVE}, 5120')
    A(f'v_lshrrev_b32 v32, 5, v{V_LANE}'); A('v_lshlrev_b32 v32, 12, v32')
    A(f'v_bfe_u32 v33, v{V_LANE}, 2, 2'); A('v_lshl_add_u32 v32, v33, 7, v32')
    A(f'v_bfe_u32 v34, v{V_LANE}, 4, 1'); A('v_lshl_add_u32 v32, v34, 5, v32')
    A(f'v_and_b32 v34, 3, v{V_LANE}'); A('v_lshl_add_u32 v32, v34, 3, v32')
    A('v_lshrrev_b32 v33, 1, v33'); A('v_lshlrev_b32 v33, 6, v33')
    for T in range(2):
        A(f'v_xor_b32 v34, {64*T}, v33'); A(f'v_add_u32 v{V_AF+3*T}, v32, v34')
        A(f'v_add_u32 v{V_AF+3*T+1}, 0x10000, v{V_AF+3*T}'); A(f'v_add_u32 v{V_AF+3*T+2}, 0x20000, v{V_AF+3*T}')
    A(f'v_bfe_u32 v32, v{V_LANE}, 2, 2'); A(f'v_lshl_add_u32 v32, v{V_HH}, 3, v32'); A('v_lshlrev_b32 v32, 6, v32')
    A(f'v_bfe_u32 v33, v{V_LANE}, 4, 1'); A('v_lshl_add_u32 v32, v33, 5, v32')
    A(f'v_and_b32 v33, 3, v{V_LANE}'); A(f'v_lshl_add_u32 v{V_HA}, v33, 3, v32')
    A(f'v_add_u32 v{V_HA+1}, 0x10000, v{V_HA}'); A(f'v_add_u32 v{V_HA+2}, 0x20000, v{V_HA}')
    WDV = 192
    V_PL, V_SP, V_SA, V_CV, V_CAD, V_CV2 = 197, 198, 199, 200, 201, 202
    V_CS0, V_CS1, V_ONE, V_CSD, V_CSF = 203, 204, 244, 208, 240
    V_C2 = 252
    A(f's_lshl_b32 s{S_T0}, s{S_WAVE}, 13')
    A(f'v_add_u32 v{V_CS0}, s{S_T0}, v{V_AF}'); A(f'v_add_u32 v{V_CS1}, s{S_T0}, v{V_AF+3}')
    for k in range(4): A(f'v_mov_b32 v{V_ONE+k}, 0x3f803f80')
    alu = []
    act_lane_offset(alu)
    srd(alu, SRD_Z, S_WS, Z_OFF, Z_SIZE)
    p4_ids(alu)
    wd_task_setup(alu, WDV)
    a2 = lambda t: alu.append(I(t))
    a2(f's_lshl_b32 s{S_T0}, s{S_WAVE}, 13'); a2(f's_add_u32 s{S_T0}, s{S_T0}, {SCR}')
    a2(f's_cmp_ge_u32 s{S_WAVE}, 2'); a2('s_cselect_b64 vcc, -1, 0')
    for t in range(2):
        for j in range(2):
            a2(f'v_add_u32 v32, s{S_T0}, v{V_AF+3*t}'); a2(f'v_add_u32 v32, {512*j}, v32')
            a2(f'v_add_u32 v33, {SCR + 16384 + 4096*t + 256*j}, v{V_HA}')
            a2(f'v_cndmask_b32 v{V_C2+2*t+j}, v32, v33, vcc')
    c.extend(alu)
    def reads(n, sp, T, dst):
        base = ring.alloc[n][0]; r = []
        for j in range(2):
            if n < 10 or T < 4:
                ui, T4 = divmod(T, 4)
                M, Tt = divmod(T4, 2)
                off = base + ui * 16384 + M * 8192 + sp * 1024 + j * 512
                r.append(I(f'ds_read_b64_tr_b16 {ar(dst+2*j, 2)}, v{V_AF+3*Tt+(off>>16)} offset:{off & 0xffff}'))
            else:
                off = base + 16384 + (T - 4) * 4096 + sp * 1024 + j * 256
                r.append(I(f'ds_read_b64_tr_b16 {ar(dst+2*j, 2)}, v{V_HA+(off>>16)} offset:{off & 0xffff}'))
        return r
    afr = lambda s, T: AFB + 32 * (s % 2) + 4 * T
    st(c, 'setup')
    c.extend(flat(p0[4:]))
    c.extend(flat(x_dma(1)))
    p1 = pieces(1)
    c.extend(flat(p1[:OPT['p1']]))
    stream.next = 2
    stream.release(0)
    stream.push_front(p1[OPT['p1']:])
    wb = wpieces(10, SCR, 'wb')
    wb[0] = [I(f's_cmp_lt_u32 s{S_I}, 10'), I(f's_cselect_b32 s{SRD_W+2}, {D*F*2}, 0'), I(f's_cselect_b32 s{SRD_W2+2}, s{SRD_W2+2}, 0')] + wb[0]
    wb[3] = wb[3] + [I(f's_mov_b32 s{SRD_W+2}, {D*F*2}')]
    wb[5] = wb[5] + [I(f's_cmp_lt_u32 s{S_ROLE}, 6'), I(f's_cselect_b32 s{SRD_W2+2}, {D*F*2}, 0')]
    stream.queue += wb
    c.append(WaitTag(['x0', 'w0', 'zero'])); A('s_barrier')
    st(c, 'S0')
    c.append(x_read(0, 0, ar(XA(0)), tag='A0a'))
    for T in range(8):
        for ins in reads(0, 0, T, afr(0, T)):
            ins.tag = f'A0{"a" if T < 4 else "b"}'; c.append(ins)
    c.extend(zero_flag(56))
    hooks = {}
    def add(key, lst): hooks.setdefault(key, []).extend(lst)
    for n in range(10):
        for sub in range(1, 4):
            add((4 * n, sub - 1), [x_read(n, sub, ar(XA(4 * n + sub)), tag=f'A{4*n+sub}a')])
        if n + 2 < 10:
            if n == 0: hooks[('cb', 1, 0)] = lambda: stream.insert_after('w1', x_dma(2))
            else: hooks[('cb', 4 * n + 1, 0)] = (lambda nn: (lambda: stream.push_front(x_dma(nn))))(n + 2)
    if TOUCH:
        for n in range(10):
            if n + TOUCH < 14 and n < 9: add((4 * n + 3, 4), touch(n + TOUCH))
    XT = TT
    for sub in range(4): add((0, sub), [x_read(0, sub, vr(XT + 4 * sub))])
    xhook = lambda s: [x_read(s // 4, 0, ar(XA(s)), tag=f'A{s}a')] if s % 4 == 0 else []
    fill = []
    def cs_block(g0, gmax, addr):
        r = []
        for sp in range(4):
            for t in range(2):
                f = V_CSF + 8 * t
                for j in range(2):
                    va, off = addr(t, j)
                    r.append((g0 + 6 * sp, I(f'ds_read_b64_tr_b16 v[{f+2*j}:{f+2*j+1}], v{va} offset:{off + sp*1024}'), gmax))
            for t in range(2):
                d = V_CSD + 16 * t
                r.append((g0 + 6 * sp + 2, I(f'v_mfma_f32_32x32x16_bf16 {vr(d,16)}, {vr(V_ONE)}, {vr(V_CSF + 8*t)}, {"0" if sp == 0 else vr(d,16)}'), gmax))
        return r
    fill += cs_block(4, 25, lambda t, j: ((V_CS0, V_CS1)[t], ring.alloc[0][0] + j * 512))
    fill += [(32, [I(f'v_permlane32_swap_b32 v{V_CSD}, v{V_CSD+16}'), I(f'v_mov_b32 v{V_CV}, v{V_CSD}')], 50)]
    zd = [I(f'v_and_b32 v{V_CA}, 15, v{V_LANE}'), I(f'v_lshlrev_b32 v{V_CA}, 2, v{V_CA}'), I(f'v_mov_b32 v{V_CB}, 1')]
    srd(zd, SRD_DB, S_DBG, OPT.get('dbgoff', 0), 64); zd = atoms(zd)
    zd.append(poll_load('zd', SRD_DB, V_CA, V_PL))
    fill += [(33, i, 50) for i in zd]
    fill += [(34, i, 70) for i in stat_partial(XT, 56, V_SP)]
    fill += [(60, i, 75) for i in atoms(stat_addr(V_SA))]
    cad = [I(f's_lshl_b32 s64, s{S_J}, 11'), I(f's_add_u32 s64, s64, {Z_CS}'), I(f's_lshl_b32 s65, s{S_WAVE}, 8'), I('s_add_u32 s64, s64, s65'),
           [I(f's_cmp_lt_u32 s{S_I}, 10'), I(f's_cselect_b32 s64, s64, {OOB:#x}')],
           I(f'v_lshlrev_b32 v{V_CAD}, 2, v{V_LANE}'), I(f'v_add_u32 v{V_CAD}, s64, v{V_CAD}')]
    fill += [(60, i, 78) for i in cad]
    fill += cs_block(64, 89, lambda t, j: (V_C2 + 2 * t + j, 0))
    fill += [(91, I(f'buffer_atomic_add_f32 v{V_SP}, v{V_SA}, s[{SRD_Z}:{SRD_Z+3}], 0 offen', tag='sat'), 93),
             (91, I(f'buffer_atomic_add_f32 v{V_CV}, v{V_CAD}, s[{SRD_Z}:{SRD_Z+3}], 0 offen', tag='sat'), 94)]
    fill += [(96, [I(f'v_permlane32_swap_b32 v{V_CSD}, v{V_CSD+16}'), I(f'v_mov_b32 v{V_CV2}, v{V_CSD}')], 110)]
    fill += [(96, i, 112) for i in [[I(f's_cmp_lt_u32 s{S_WAVE}, 3'), I(f's_cselect_b32 s64, 1024, {OOB:#x}')], I(f'v_add_u32 v{V_CAD}, s64, v{V_CAD}')]]
    fill += [(97, i, 120) for i in wp_task_dma(WDV, SCR)]
    fill += [(123, I(f'buffer_atomic_add_f32 v{V_CV2}, v{V_CAD}, s[{SRD_Z}:{SRD_Z+3}], 0 offen', tag='sat2'), 125)]
    wpre, wrd, wst = wp_task_finish(SCR, 208, False, f's_cmp_lt_u32 s{S_TK}, 54')
    cadd = [I(f's_lshl_b32 s64, s{S_I}, {TSH}'), I(f's_lshr_b32 s65, 0x0aff, s{S_J}'), I('s_and_b32 s65, s65, 1'),
            [I('s_cmp_eq_u32 s65, 1'), I(f's_cselect_b32 s64, s64, {OOB:#x}')],
            I(f's_lshl_b32 s65, s{S_J}, {RSH}'), I(f's_add_u32 s65, s65, {Z_CNT_R}'),
            [I(f's_cmp_lt_u32 s{S_I}, 10'), I(f's_cselect_b32 s65, s65, {OOB:#x}')],
            [I(f's_cmp_eq_u32 s{S_WAVE}, 0'), I(f's_cselect_b32 s64, s64, {OOB:#x}'), I(f's_cselect_b32 s65, s65, {OOB:#x}')]]
    cadd += two_lane(V_SA, 's64', 's65', other=f'{OOB:#x}')
    fill += [(126, i, 150) for i in cadd]
    fill += [(155, cnt_add(V_SA, V_SP, 'c0'), 157)]
    fill += [(158, [wpre[0], wpre[1]], 170), (158, [wpre[2], wpre[3]], 170)] + [(158, i, 174) for i in wpre[4:]]
    c2 = cnt_addr(V_CV, rline(R_2) + [ [I(f's_cmp_lt_u32 s{S_I}, 10'), I(f's_cselect_b32 s64, s64, {OOB:#x}')]])
    fill += [(160, i, 180) for i in atoms(c2)]
    fill += [(174, wrd, 184)]
    fill += [(187, cnt_add(V_CV, V_CV2, 'c2'), 188)]
    fill += [(188, i, 191) for i in wst]
    pl = tline(S_I, 0) + rline(0, 's65') + two_lane(V_CA, 's64', 's65') + [I(f'v_mov_b32 v{V_CB}, 10')]
    fill += [(200, i, 216) for i in pl]
    fill += [(219, poll_load('f0', SRD_Z, V_CA, V_PL), 222)]
    VS, VC = 198, 200
    wdc = rep_addr(195, T_WD, [I(f's_cmp_lt_u32 s{S_TK}, 54')], [I(f's_mov_b32 s65, s{S_ROLE}')])
    fill += [(224, i, 245) for i in wdc]
    ld = [I(f's_lshl_b32 s64, s{S_I}, 2'), I(f's_add_u32 s64, s64, s{S_WAVE}'), I('s_lshl_b32 s64, s64, 8'), I(f's_add_u32 s64, s64, {Z_STAT}'),
          I(f'v_lshlrev_b32 v{V_CA}, 3, v{V_T}'),
          I(f'buffer_load_dwordx2 v[{VS}:{VS+1}], v{V_CA}, s[{SRD_Z}:{SRD_Z+3}], s64 offen sc1'),
          I(f's_lshl_b32 s64, s{S_J}, 11'), I(f's_add_u32 s64, s64, {Z_CS}'), I(f'v_lshlrev_b32 v{V_CA}, 2, v{V_LANE}')]
    ld += [I(f'buffer_load_dword v{VC+p}, v{V_CA}, s[{SRD_Z}:{SRD_Z+3}], s64 offen offset:{p*256} sc1') for p in range(4)]
    fill += [(251, i, 258) for i in ld]
    fill += [(259, cnt_add(195, 205, 'cw'), 262)]
    CSA = 40
    fin = ln_final(VS, BMU, 56)
    for p in range(4): fin += cs_frag(VC + p, CSA + 4 * p, 56) + [I(f'v_mov_b32 v{CSA+4*p+3}, 0')]
    fin.append(I(f'v_mul_f32 v{V_RS}, v{V_RS}, v{V_RS}'))
    fill += [(298, i, 319) for i in fin]
    def sync_pre(n):
        if n == 2: return poll_check('zd', SRD_DB, V_CA, V_PL, V_CB)
        if n == 7: return poll_check('f0', SRD_Z, V_CA, V_PL, V_CB)
        return []
    tagsA = lambda n: {1: ['wb'], 4: ['sat'], 5: ['sat2'], 7: ['wps']}.get(n, [])
    def gapsA(s):
        if s < 8: return list(range(OPT['g0'])) if s % 4 < 3 else [0, 1]
        return [0, 2, 4, 6] if s % 4 < 3 else []
    afrB = lambda s, T: AFB + 24 * (s % 2) + 4 * T
    nxt = []
    for T in range(6):
        for ins in reads(10, 0, T, afrB(0, T)):
            ins.tag = f'B0{"a" if T < 3 else "b"}'; nxt.append(ins)
    main = gemm(stream, st, 0, 10, 8, lambda T: vr(ACC(T // 4, T % 4), 16), afr, lambda s: ar(XA(s)), reads, nxt, 'A',
                hooks=hooks, sync_pre=sync_pre, sync_tags=tagsA, xhook=xhook, gaps=gapsA)
    c.extend(weave(main, fill)); st(c, 'PA')
    def correction(regs, pair):
        return [I(f'v_mfma_f32_32x32x16_bf16 {rg}, {vr(pair)}, {vr(BMU + 4*t)}, {rg}') for t, rg in enumerate(regs)]
    def glu(g, up, ks, tag):
        r = []
        for i in range(0, 16, 2):
            r += [I(f'v_max_f32 v{g+i}, 0, v{g+i}'), I(f'v_max_f32 v{g+i+1}, 0, v{g+i+1}'),
                  I(f'v_mul_f32 v{up+i}, v{V_RS}, v{up+i}'), I(f'v_mul_f32 v{up+i+1}, v{V_RS}, v{up+i+1}'),
                  I(f'v_mul_f32 v{g+i}, v{g+i}, v{up+i}'), I(f'v_mul_f32 v{g+i+1}, v{g+i+1}, v{up+i+1}'),
                  I(f'v_cvt_pk_bf16_f32 v{g+i//2}, v{g+i}, v{g+i+1}')]
        r += ks
        for ch in range(2):
            r.append(I(f'buffer_store_dwordx4 {vr(g+4*ch)}, v{V_ACTL}, s[{SRD_ACT}:{SRD_ACT+3}], s{S_T0} offen offset:{ch*512} sc1', tag=tag))
        return r
    def epilogue(u, tag):
        r = []
        for T in range(2):
            if u < 2: ks = [I(f's_lshl_b32 s{S_T0}, s{S_ROLE}, 12'), I(f's_add_u32 s{S_T0}, s{S_T0}, {(2*u+T)*1024}')]
            else: ks = [I(f's_lshl_b32 s{S_T0}, s{S_ROLE}, 11'), I(f's_add_u32 s{S_T0}, s{S_T0}, {(32+T)*1024}')]
            r += glu(ACC(u, T), ACC(u, 2 + T), ks, tag)
        return r
    fillB = []
    for p in range(4):
        u, M = divmod(p, 2)
        fillB += [(1 + 2 * p, i, 24) for i in correction([vr(ACC(u, 2*M), 16), vr(ACC(u, 2*M+1), 16)], CSA + 4 * p)]
    fillB += [(10, i, 95) for i in epilogue(0, 'h01') + epilogue(1, 'h01')]
    pa = [I(f'v_lshlrev_b32 v{V_L16}, 4, v{V_LANE}'), I(f'v_add_u32 v9, 0x10000, v{V_L16}'), I(f'v_add_u32 v10, 0x20000, v{V_L16}'),
          I(f'v_add_u32 v{V_B1}, {NKS*1024}, v{V_L16}'),
          I(f's_mul_i32 s64, s{S_PC}, {NKS*5120}'), I(f's_add_u32 s64, s64, {WP_OFF}')]
    srd(pa, SRD_WP, S_WS, 's64', NKS * 5120)
    pa += [I(f's_lshl_b32 s64, s{S_PT}, 2'), I(f's_add_u32 s64, s64, s{S_WAVE}'), I(f's_mul_i32 s64, s64, {2*NKS*1024}')]
    srd(pa, SRD_PA, S_WS, 's64', 2 * NKS * 1024)
    pa += rot_code(NE)
    fillB += [(106, i, 126) for i in atoms(pa)]
    pw = tline(S_PT, T_WD) + rline(R_2, 's65') + poll_weights(V_CA, V_CB, 's64', 8)
    pw += [I(f'v_writelane_b32 v{V_CA}, s65, 8'), I(f'v_writelane_b32 v{V_CB}, 10, 8'), poll_load('wd', SRD_Z, V_CA, 40)]
    fillB += [(96, i, 105) for i in pw]
    hc = cnt_addr(41, [*tline(S_I, T_H01)])
    fillB += [(127, i, 138) for i in atoms(hc)] + [(140, cnt_add(41, 42, 'ch'), 141)]
    ph = tline(S_PT, T_H01) + [ I(f'v_mov_b32 v{V_CA}, s64'), I(f'v_mov_b32 v{V_CB}, 8'), poll_load('h01', SRD_Z, V_CA, 40)]
    fillB += [(180, i, 188) for i in ph]
    CSB = 44
    fb = []
    for p in range(3): fb += cs_frag(61 + p, CSB + 4 * p, 56) + [I(f'v_mov_b32 v{CSB+4*p+3}, 0')]
    l2 = [I(f's_lshl_b32 s64, s{S_J}, 11'), I(f's_add_u32 s64, s64, {Z_CS + 1024}'), I(f'v_lshlrev_b32 v43, 2, v{V_LANE}')]
    l2 += [I(f'buffer_load_dword v{61+p}, v43, s[{SRD_Z}:{SRD_Z+3}], s64 offen offset:{p*256} sc1') for p in range(3)]
    fillB += [(142, i, 149) for i in l2]
    fillB += [(192, i, 212) for i in fb]
    def syncB_pre(n):
        if n == 15: return poll_check('wd', SRD_Z, V_CA, 40, V_CB)
        if n == 18: return poll_check('h01', SRD_Z, V_CA, 40, V_CB)
        return []
    def syncB_post(n):
        if n == 15:
            stream.limit = stream.n; stream.release(16)
        return []
    accB = lambda T: vr(ACC(2, T), 16) if T < 4 else ar(A_HU + 16 * (T - 4), 16)
    nxtp = p4.areads(0, V_WIN)
    mainB = gemm(stream, st, 10, 10, 6, accB, afrB, lambda s: ar(XA(s)), reads, nxtp, 'B',
                 sync_pre=syncB_pre, sync_post=syncB_post, sync_tags=lambda n: ['h01'] if n == 15 else [], gaps=lambda s: [0, 2, 4] if s % 4 < 3 else [], sg=1)
    nb0 = min(NB, 8)
    bl = []
    for s in range(nb0): bl += p4.bload(s)
    p4.nb_issued = nb0
    fillB += [(213, i, 239) for i in bl]
    c.extend(weave(mainB, sorted(fillB, key=lambda f: f[0]))); st(c, 'PB')
    fe = correction([vr(ACC(2, 0), 16), vr(ACC(2, 1), 16)], CSB) + correction([vr(ACC(2, 2), 16), vr(ACC(2, 3), 16)], CSB + 4)
    fe += correction([ar(A_HU, 16), ar(A_HU + 16, 16)], CSB + 8)
    fillP = [(0, i, 6) for i in fe]
    ee = epilogue(2, 'h2')
    hu = [I(f'v_accvgpr_read_b32 v{224+k}, a{A_HU+k}') for k in range(32)]
    hk = [I(f's_add_u32 s{S_T0}, s{S_ROLE}, 48'), I(f's_lshl_b32 s{S_T0}, s{S_T0}, 10'),
          [I(f's_cmp_lt_u32 s{S_ROLE}, 6'), I(f's_cselect_b32 s{SRD_ACT+2}, s{SRD_ACT+2}, 0')]]
    hu += glu(224, 240, flat([[x] if not isinstance(x, list) else x for x in hk]), 'h2')
    fillP += [(4, i, 36) for i in atoms(ee + hu)]
    CHK = NE - 2
    h2c = tline(S_I, T_H2) + wave_shard() + [I(f'v_mov_b32 v41, {OOB:#x}'), I('v_writelane_b32 v41, s64, 0')]
    fillP += [(37, i, 44) for i in atoms(h2c)] + [(OPT['h2g'], [WaitTag('h2')] + cnt_add(41, 42, 'ch2'), OPT['h2g'] + 1)]
    if True:
        p2 = tline(S_PT, T_H2) + poll_shards(V_CA, V_CB, 's64', 4, 8) + [poll_load('h2', SRD_Z, V_CA, 40)]
        fillP += [(10 * (4 * CHK + 3) - 45, i, 10 * (4 * CHK + 3) - 35) for i in p2]
    spre = lambda n: poll_check('h2', SRD_Z, V_CA, 40, V_CB) if n == CHK else []
    gate = lambda k, s: k < 4 * NE or s >= 4 * CHK + 3
    mainP = p4.loop(st, V_WIN, NB, gate_b=gate, sync_pre=spre, stamp_at=OPT.get('pst', (7, 19)))
    c.extend(weave(mainP, sorted(fillP, key=lambda f: f[0]))); st(c, 'P4')
    assert stream.next == stream.n and not stream.queue
    A(f's_lshl_b32 s64, s{S_PT}, 3'); A(f's_add_u32 s64, s64, s{S_PC}'); A(f's_mul_i32 s64, s64, {PART_ONE}')
    A(f's_mul_i32 s65, s{S_WAVE}, 10240'); A('s_add_u32 s64, s64, s65'); A(f's_add_u32 s64, s64, {PART_OFF}')
    srd(c, SRD_T2, S_WS, 's64', 10240)
    for k in range(10):
        if k % 4 == 0: A(f's_mov_b32 s65, {k*1024}')
        A(f'buffer_store_dwordx4 {ar(4*k)}, v{V_L16}, s[{SRD_T2}:{SRD_T2+3}], s65 offen offset:{(k%4)*1024} sc1', tag='part')
    c.extend(flat([[x] if not isinstance(x, list) else x for x in cnt_addr(41, [I(f's_lshl_b32 s64, s{S_PT}, {TSH}'), I(f's_lshl_b32 s65, s{S_PC}, 7'),
                                                                              I('s_add_u32 s64, s64, s65'), I(f's_add_u32 s64, s64, {T_P}')])]))
    c.append(WaitTag('part')); A('s_barrier')
    c.extend(cnt_add(41, 42, 'cp'))
```

```python
from common import *

QSLOT = [20 * K * q for q in range(8)]

class P4:
    def __init__(self, stream, st0, stages, BF, AF, ACC, v_l16, v_b0, v_b1, srd_wp, srd_act, s_ao, s_wo, modb=' sc1'):
        self.stream, self.st0, self.stages = stream, st0, stages
        self.BF, self.AF, self.ACC = BF, AF, ACC
        self.v_l16, self.v_b0, self.v_b1 = v_l16, v_b0, v_b1
        self.srd_wp, self.srd_act, self.s_ao, self.s_wo = srd_wp, srd_act, s_ao, s_wo
        self.ks = [(n, k) for n, (f, cnt) in enumerate(stages) for k in range(cnt)]
        self.nk = len(self.ks)
        self.modb = modb
        self.ao_done = set()
    def first(self, n, dst, mul):
        f = self.stages[n][0]
        if isinstance(f, int): return [I(f's_mov_b32 s{dst}, {f * mul}')]
        _, idx, cnt, base = f[:4]
        sr = f[4] if len(f) > 4 else S_ROT8
        r = [I(f's_add_u32 s{dst}, s{sr}, {idx}'), I(f's_cmp_ge_u32 s{dst}, {cnt}'), I(f's_cselect_b32 s69, {cnt}, 0'),
             I(f's_sub_u32 s{dst}, s{dst}, s69')]
        if base: r.append(I(f's_add_u32 s{dst}, s{dst}, {base}'))
        return r + [I(f's_mul_i32 s{dst}, s{dst}, {4 * mul}')]
    def pieces(self, n):
        base = self.stream.ring.alloc[self.st0 + n][0]
        r = []
        for p in range(5):
            g = []
            if p == 0:
                g += self.first(n, self.s_wo, 5120) + [I(f's_add_u32 s{self.s_wo}, s{self.s_wo}, s{S_W5K}')]
                if self.stages[n][1] < 4:
                    g += [I(f's_cmp_lt_u32 s{S_WAVE}, {self.stages[n][1]}'), I(f's_cselect_b32 s{self.s_wo}, s{self.s_wo}, {OOB:#x}')]
            if p == 4: g += [I(f's_add_u32 s{self.s_wo}, s{self.s_wo}, 4096')]
            g.append(dma(f'buffer_load_dwordx4 v{self.v_l16}, s[{self.srd_wp}:{self.srd_wp+3}], s{self.s_wo} offen offset:{(p % 4)*1024} sc1 lds',
                         (S_W5K, base + (4096 if p == 4 else 0)), tag=f'w{self.st0+n}'))
            r.append(g)
        return r
    def bload(self, s):
        n, k = self.ks[s]
        r = []
        so = self.s_ao + (n % 2)
        if n not in self.ao_done:
            self.ao_done.add(n); r += self.first(n, so, 1024)
        for tg, v in enumerate((self.v_b0, self.v_b1)):
            r.append(I(f'buffer_load_dwordx4 {self.BF(s, tg)}, v{v}, s[{self.srd_act}:{self.srd_act+3}], s{so} offen offset:{k*1024}{self.modb}', tag=f'pb{s}'))
        return r
    def areads(self, s, v_win):
        n, k = self.ks[s]
        base = self.stream.ring.alloc[self.st0 + n][0]
        r = []
        for ct in range(5):
            off = base + k * 5120 + ct * 1024
            r.append(I(f'ds_read_b128 {self.AF(s, ct)}, v{v_win[off >> 16]} offset:{off & 0xffff}', tag=f'pa{s}'))
        return r
    def loop(self, st, v_win, NB, gate_b=None, sync_pre=None, sync_post=None, sync_tags=None, hooks=None, stamp_at=()):
        main = []
        hooks = hooks or {}
        pend = list(range(self.nb_issued, self.nk))
        for s in range(self.nk):
            n, k = self.ks[s]
            lastk = s + 1 < self.nk and self.ks[s + 1][0] != n
            nxt = self.areads(s + 1, v_win) if s + 1 < self.nk else []
            for j in range(10):
                ct, tg = j // 2, j % 2
                g = []
                if j == 0 and not lastk: g.append(WaitLg(f'pa{s}'))
                if j == 0 and lastk:
                    if sync_pre: g += sync_pre(n)
                    g.append(WaitTag([f'w{self.st0+n+1}'] + (sync_tags(n) if sync_tags else []), lgkm0=True))
                if j == 0: g.append(WaitTag(f'pb{s}'))
                cc = '0' if s == 0 else self.ACC(ct, tg)
                g.append(I(f'v_mfma_f32_16x16x32_bf16 {self.ACC(ct, tg)}, {self.AF(s, ct)}, {self.BF(s, tg)}, {cc}'))
                if j == 0 and lastk:
                    g.append(I('s_barrier'))
                    self.stream.release(self.st0 + n + 1)
                    if sync_post: g += sync_post(n)
                g += hooks.get((s, j), [])
                if j % 2 == 1 and nxt: g.append(nxt[j // 2])
                post = []
                if j in (2, 6): post += self.stream.take(1)
                if j == 9:
                    cnt = 0
                    while pend and pend[0] - NB <= s and cnt < 2 and (gate_b is None or gate_b(pend[0], s)):
                        post += self.bload(pend.pop(0)); cnt += 1
                main.append((g, post))
            if s in stamp_at: st(main[-1][0], f'k{s}')
        assert not pend
        return main

S_ROT8 = 88

def rot_code(cnt, S_ROT8=S_ROT8):
    magic = next(m for m in range(1, 256) if all((x * m) >> 8 == x // cnt for x in range(23)))
    return [I(f's_add_u32 s{S_ROT8}, s{S_PC}, s{S_PT}'), I(f's_mul_i32 s69, s{S_ROT8}, {magic}'), I('s_lshr_b32 s69, s69, 8'),
            I(f's_mul_i32 s69, s69, {cnt}'), I(f's_sub_u32 s{S_ROT8}, s{S_ROT8}, s69')]
```

```python
from ir import *
from layout4 import *

def vr(b, n=4): return f'v[{b}:{b+n-1}]'
def ar(b, n=4): return f'a[{b}:{b+n-1}]'
K = 1024
OOB = 0x40000000

S_X, S_WQKV, S_WPHI, S_WO, S_BX, S_WG, S_WU, S_WD = 16, 18, 20, 22, 24, 26, 28, 30
S_OUT, S_DBG, S_WS = 32, 34, 36
S_WAVE, S_I, S_J, S_T0, S_T1, S_W4K = 38, 39, 40, 41, 42, 43
SRD_X, SRD_W, SRD_W2, SRD_ACT, SRD_Z = 44, 48, 52, 56, 60
SRD_T, SRD_T2 = 4, 12
S_SOFF, S_SOFF2, S_ROLE, S_MASK = 8, 9, 10, 11
S_KB = 76
S_PT, S_PC = 86, 87
S_W5K = 3
V_LANE, V_T, V_HH = 1, 2, 3
V_RS, V_MU = 4, 5
V_ACTL, V_ST = 6, 7
V_DMA, V_XR = 8, 12
XBASE = 96 * K
SLOT_A = (0, 32 * K, 64 * K)

OPT = dict(cpf=True, se=2, nm=4, nb=12, p1=4, g0=6, ea=3, la=0, h2g=60, hsig=40, osig=40)
if MLPV != '5': OPT.update(la=4, h2g=75)
if MLPV == '7': OPT.update(la=0, ea=2, h2g=75)
if MLPV == '8': OPT.update(la=0, ea=3, h2chk=3, pback=2, zearly=1, wlim=4, late1a=1, wpx=1)

_lab = [0]
class Ring:
    def __init__(self): self.alloc = []; self.nb = {}
    def add_at(self, base, size, not_before=-1):
        self.alloc.append((base, size)); self.nb[len(self.alloc) - 1] = not_before
    def free_after(self, n):
        b, s = self.alloc[n]
        last = self.nb.get(n, -1)
        for m in range(n):
            bm, sm = self.alloc[m]
            if bm < b + s and b < bm + sm: last = max(last, m)
        return last

class Stream:
    def __init__(self, ring, pieces):
        self.ring = ring; self.pieces = pieces
        self.next = 0; self.queue = []; self.n = len(ring.alloc); self.limit = self.n
    def release(self, lim):
        self.lim = lim
        while self.next < min(self.n, self.limit) and self.ring.free_after(self.next) < lim:
            self.queue += self.pieces(self.next); self.next += 1
    def push_front(self, groups): self.queue = list(groups) + self.queue
    def insert_after(self, tag, groups):
        k = 0
        for j, g in enumerate(self.queue):
            if any(getattr(i, 'tag', None) == tag for i in g): k = j + 1
        self.queue[k:k] = list(groups)
    def take(self, k):
        out = []
        for _ in range(min(k, len(self.queue))): out += self.queue.pop(0)
        return out
    def flush(self): return self.take(len(self.queue))
    def issued(self, tags, st0=0):
        for g in self.queue:
            for i in g: assert getattr(i, 'tag', None) not in tags, f'awaited piece still queued: {i.tag}'
        for t in tags:
            if t[0] == 'w' and t[1:].isdigit(): assert int(t[1:]) < self.next or int(t[1:]) >= self.n, f'awaited stage not released: {t}'

class Stamps:
    def __init__(self, on, vreg=0, sreg=100): self.on = on; self.n = 0; self.v = vreg; self.s = sreg; self.pending = False; self.names = []
    def _commit(self, c):
        if self.pending:
            c.append(I('s_waitcnt lgkmcnt(0)'))
            c.append(I(f'v_writelane_b32 v{self.v}, s{self.s}, {self.n}')); self.n += 1; self.pending = False
    def __call__(self, c, name=''):
        if not self.on: return
        self._commit(c)
        c.append(I(f's_memtime s[{self.s}:{self.s+1}]')); self.pending = True; self.names.append(name)
    def real(self, c, name='real'):
        if not self.on: return
        self._commit(c)
        c.append(I(f's_memrealtime s[{self.s}:{self.s+1}]')); self.pending = True; self.names.append(name)
    def copy(self):
        o = Stamps(self.on, self.v, self.s); o.n = self.n; o.pending = self.pending; o.names = list(self.names); return o
    def dump(self, c, sel=None):
        if not self.on: return
        A = lambda t: c.append(I(t))
        self._commit(c)
        if sel is not None:
            wg, word0, names = sel
            A('s_waitcnt vmcnt(0) lgkmcnt(0)')
            A(f's_cmp_eq_u32 s2, {wg}'); A('s_cselect_b32 s6, 64, 0'); A(f's_cmp_eq_u32 s{S_WAVE}, 0'); A('s_cselect_b32 s6, s6, 0')
            A(f's_mov_b32 s4, s{S_DBG}'); A(f's_mov_b32 s5, s{S_DBG+1}'); A('s_mov_b32 s7, 0x00020000')
            for k, nme in enumerate(names):
                A(f'v_readlane_b32 s64, v{self.v}, {self.names.index(nme) if nme != "real2" else len(self.names) - 1}')
                A('s_nop 4')
                A('v_mov_b32 v1, s64'); A(f'v_mov_b32 v2, {(word0 + k) * 4}')
                A('buffer_store_dword v1, v2, s[4:7], 0 offen')
            A('s_waitcnt vmcnt(0)')
            return
        A('s_waitcnt vmcnt(0) lgkmcnt(0)')
        A(f's_lshl_b32 s64, s2, 2'); A(f's_add_u32 s64, s64, s{S_WAVE}'); A('s_lshl_b32 s64, s64, 8')
        A(f's_add_u32 s64, s64, {STAMP_OFF}')
        A(f's_add_u32 s4, s{S_WS}, s64'); A(f's_addc_u32 s5, s{S_WS+1}, 0')
        A('s_mov_b32 s6, 256'); A('s_mov_b32 s7, 0x00020000')
        A('v_mbcnt_lo_u32_b32 v1, -1, 0'); A('v_mbcnt_hi_u32_b32 v1, -1, v1'); A('v_lshlrev_b32 v1, 2, v1')
        A(f'buffer_store_dword v{self.v}, v1, s[4:7], 0 offen'); A('s_waitcnt vmcnt(0)')

def srd(c, d, base, off, nrec):
    if off is None:
        c += [I(f's_mov_b32 s{d}, s{base}'), I(f's_mov_b32 s{d+1}, s{base+1}')]
    else:
        c += [I(f's_add_u32 s{d}, s{base}, {off}'), I(f's_addc_u32 s{d+1}, s{base+1}, 0')]
    if nrec is not None: c.append(I(f's_mov_b32 s{d+2}, {nrec}'))
    c.append(I(f's_mov_b32 s{d+3}, 0x00020000'))

def code_prefetch(c, regions, vdst):
    A = lambda t, **k: c.append(I(t, **k))
    A('s_getpc_b64 s[4:5]')
    A('L_pc:')
    A('s_lshr_b32 s3, s2, 3'); A('s_lshl_b32 s3, s3, 9')
    A('v_lshrrev_b32 v33, 6, v0'); A('v_lshl_add_u32 v33, v33, 7, s3')
    A('v_and_b32 v34, 63, v0'); A('v_lshl_add_u32 v32, v34, 14, v33')
    lane = 0
    for lab, nblk in regions:
        if lane:
            A(f's_mov_b32 s3, {lab}-L_pc-{lane*16384}'); A(f'v_cmp_le_u32 vcc, {lane}, v34')
            A('v_lshl_add_u32 v35, v34, 14, v33'); A('v_add_u32 v35, s3, v35')
            A('v_cndmask_b32 v32, v32, v35, vcc')
        lane += nblk
    A('s_mov_b32 s6, L_code_end-L_pc'); A('s_mov_b32 s7, 0x00020000')
    A(f'v_cmp_le_u32 vcc, {lane}, v34'); A(f'v_mov_b32 v35, {OOB:#x}'); A('v_cndmask_b32 v32, v32, v35, vcc')
    A(f'buffer_load_dword v{vdst}, v32, s[4:7], 0 offen', tag='cpf')

def emit_wgmap(c):
    c += [I(f's_and_b32 s{S_T0}, s2, 7'), I(f's_lshr_b32 s{S_T1}, s2, 3'),
          I(f's_and_b32 s{S_I}, s{S_T0}, 1'), I(f's_lshl_b32 s{S_I}, s{S_I}, 3'),
          I(f's_and_b32 s{S_J}, s{S_T1}, 7'), I(f's_add_u32 s{S_I}, s{S_I}, s{S_J}'),
          I(f's_lshr_b32 s{S_J}, s{S_T0}, 1'), I(f's_lshl_b32 s{S_J}, s{S_J}, 2'),
          I(f's_lshr_b32 s{S_T1}, s{S_T1}, 3'), I(f's_add_u32 s{S_J}, s{S_J}, s{S_T1}')]

def kb_entry(n):
    if n == 0: return []
    return [I(f's_add_u32 s{S_KB+n}, s{S_KB+n-1}, 128'), I(f's_cmp_eq_u32 s{S_KB+n}, 1280'), I(f's_cselect_b32 s{S_KB+n}, 0, s{S_KB+n}')]

def x_dma(n):
    return [[dma(f'buffer_load_dwordx4 v{V_DMA+q}, s[{SRD_X}:{SRD_X+3}], s{S_KB+n} offen offset:{q*1024} lds',
                 (S_W4K, XBASE + (n % 2) * 16384), tag=f'x{n}')] for q in range(4)]

def x_read(n, sub, dst, tag=None):
    return I(f'ds_read_b128 {dst}, v{V_XR+sub} offset:{XBASE - 65536 + (n % 2) * 16384}', tag=tag)

def flat(groups): return [i for g in groups for i in g]

def prologue(c, st, regions):
    A = lambda t, **k: c.append(I(t, **k))
    A('s_load_dwordx16 s[16:31], s[0:1], 0')
    A('s_load_dwordx4 s[32:35], s[0:1], 64')
    A('s_load_dwordx2 s[36:37], s[0:1], 80')
    if OPT['cpf']: code_prefetch(c, regions, V_MU)
    A(f'v_and_b32 v{V_LANE}, 63, v0')
    A('v_lshrrev_b32 v32, 6, v0')
    A(f'v_lshrrev_b32 v33, 3, v{V_LANE}')
    A(f'v_readfirstlane_b32 s{S_WAVE}, v32')
    A(f'v_and_b32 v34, 7, v{V_LANE}')
    A('v_lshrrev_b32 v35, 1, v33')
    A('v_xor_b32 v34, v34, v35')
    A('v_mul_u32_u24 v33, 1280, v33')
    for q in range(4):
        A(f'v_xor_b32 v35, {4*(q&1)}, v34')
        A(f'v_lshl_add_u32 v35, v35, 4, v33')
        A(f'v_add_u32 v{V_DMA+q}, {q*(8*1280-1024)}, v35')
    emit_wgmap(c)
    A(f's_and_b32 s{S_T0}, s{S_J}, 3'); A(f's_mul_i32 s{S_T0}, s{S_T0}, 5'); A(f's_lshr_b32 s{S_T0}, s{S_T0}, 1')
    A(f's_lshr_b32 s{S_T1}, s{S_J}, 2'); A(f's_add_u32 s{S_T0}, s{S_T0}, s{S_T1}')
    rot = OPT.get('rot', 'ij')
    if rot == 'ij': A(f's_add_u32 s{S_T0}, s{S_T0}, s{S_I}')
    if rot == 'i': A(f's_mov_b32 s{S_T0}, s{S_I}')
    if rot == '0': A(f's_mov_b32 s{S_T0}, 0')
    if rot == 'x4':
        A(f's_lshr_b32 s{S_T1}, s{S_J}, 2'); A(f's_lshl_b32 s{S_T1}, s{S_T1}, 2'); A(f's_lshr_b32 s{S_T0}, 0x8630, s{S_T1}'); A(f's_and_b32 s{S_T0}, s{S_T0}, 15')
        A(f's_lshr_b32 s{S_T1}, s{S_I}, 3'); A(f's_mul_i32 s{S_T1}, s{S_T1}, 5'); A(f's_add_u32 s{S_T0}, s{S_T0}, s{S_T1}')
    if rot == 'x2':
        A(f's_lshr_b32 s{S_T1}, s{S_J}, 2'); A(f's_lshl_b32 s{S_T1}, s{S_T1}, 2'); A(f's_lshr_b32 s{S_T0}, 0x8630, s{S_T1}'); A(f's_and_b32 s{S_T0}, s{S_T0}, 15')
        A(f's_and_b32 s{S_T1}, s{S_I}, 1'); A(f's_mul_i32 s{S_T1}, s{S_T1}, 5'); A(f's_add_u32 s{S_T0}, s{S_T0}, s{S_T1}')
    for _ in range(2):
        A(f's_sub_u32 s{S_T1}, s{S_T0}, 10'); A(f's_cmp_ge_u32 s{S_T0}, 10'); A(f's_cselect_b32 s{S_T0}, s{S_T1}, s{S_T0}')
    A(f's_lshl_b32 s{S_KB}, s{S_T0}, 7')
    A(f's_lshl_b32 s{S_T0}, s{S_I}, 2'); A(f's_add_u32 s{S_T0}, s{S_T0}, s{S_WAVE}')
    A(f's_mul_i32 s{S_T1}, s{S_T0}, {32*1280}')
    A(f's_lshl_b32 s{S_W4K}, s{S_WAVE}, 12')
    A(f's_cmp_eq_u32 s{S_WAVE}, 0'); A(f's_cselect_b32 s73, 0, {OOB:#x}')
    A('s_waitcnt lgkmcnt(0)')
    srd(c, SRD_X, S_X, f's{S_T1}', 32 * 1280)
    if OPT.get('zearly'): zero_stores(c, 40)
    c.extend(flat(x_dma(0)))
    A(f'v_and_b32 v{V_T}, 31, v{V_LANE}')
    A(f'v_lshrrev_b32 v{V_HH}, 5, v{V_LANE}')
    A(f's_lshr_b32 s{S_ROLE}, s{S_J}, 2'); A(f's_lshl_b32 s{S_ROLE}, s{S_ROLE}, 1')
    A(f's_and_b32 s{S_T0}, s{S_J}, 1'); A(f's_add_u32 s{S_ROLE}, s{S_ROLE}, s{S_T0}')
    c.extend(kb_entry(1))

TAIL = []
def zero_stores(c, vt):
    A = lambda t, **k: c.append(I(t, **k))
    body = []
    B = lambda t, **k: body.append(I(t, **k))
    B(f's_mul_i32 s{S_T0}, s{S_J}, {Z_SHARE}'); B(f's_add_u32 s{S_T0}, s{S_T0}, {Z_OFF}')
    srd(body, SRD_T2, S_WS, f's{S_T0}', Z_SHARE)
    for k in range(4): B(f'v_mov_b32 v{vt+k}, 0')
    B(f'v_lshlrev_b32 v{vt+4}, 4, v{V_LANE}'); B(f'v_add_u32 v{vt+4}, s{S_W4K}, v{vt+4}')
    B(f's_lshl_b32 s{S_T0}, s{S_WAVE}, 10'); B(f's_add_u32 s{S_T0}, s{S_T0}, 16384'); B(f'v_lshl_add_u32 v{vt+5}, v{V_LANE}, 4, s{S_T0}')
    B('s_nop 1')
    for k in range(4):
        B(f'buffer_store_dwordx4 {vr(vt)}, v{vt+4}, s[{SRD_T2}:{SRD_T2+3}], 0 offen offset:{k*1024} sc1')
    B(f'buffer_store_dwordx4 {vr(vt)}, v{vt+5}, s[{SRD_T2}:{SRD_T2+3}], 0 offen sc1')
    A(f's_cmp_eq_u32 s{S_I}, 0'); A('s_cbranch_scc1 L_zs'); A('L_zs_ret:')
    mark = I('s_nop 0', tag='zero'); mark.kind = 'vstore'; c.append(mark)
    TAIL.append([I('L_zs:')] + body + [I('s_branch L_zs_ret')])

def zero_early(c, vt):
    _lab[0] += 1; L = f'L_zf_{_lab[0]}'
    k = max(i for i, x in enumerate(ALLC[0] + c) if getattr(x, 'tag', None) == 'zero')
    younger = sum(1 for x in (ALLC[0] + c)[k+1:] if x.kind in VM_KINDS)
    c.extend([I(f's_mov_b32 s{SRD_T2+3}, 0x00020000'), I(f's_cmp_eq_u32 s{S_I}, 0'), I(f's_cbranch_scc1 {L}'), I(f'{L}_ret:')])
    TAIL.append([I(f'{L}:'), I(f's_waitcnt vmcnt({younger})'), I('s_barrier')] + zero_flag(vt) + [I(f's_branch {L}_ret')])
ALLC = [[]]

def tlb_touch(c, vt, srd_, with_wo):
    A = lambda t, **k: c.append(I(t, **k))
    A(f'v_lshlrev_b32 v{vt}, 21, v{V_LANE}'); A(f'v_add_u32 v{vt}, {OPT.get("tlboff", 0x1fff80)}, v{vt}')
    srd(c, srd_, S_WS, None, 0x1A00000)
    A(f'buffer_load_dword v{vt+1}, v{vt}, s[{srd_}:{srd_+3}], 0 offen', tag='tlb')
    A(f'v_lshlrev_b32 v{vt}, 20, v{V_LANE}')
    for ptr, size in ((S_OUT, S * D * 2), (S_WD, F * D * 2)) + (((S_WO, D * D * 2),) if with_wo else ()):
        srd(c, srd_, ptr, None, size)
        A(f'buffer_load_dword v{vt+1}, v{vt}, s[{srd_}:{srd_+3}], 0 offen', tag='tlb')

def zero_flag(vt):
    return [I(f's_or_b32 s{S_T0}, s{S_I}, s{S_WAVE}'), I(f's_cmp_eq_u32 s{S_T0}, 0'), I(f's_cselect_b32 s{SRD_T2+2}, 64, 0'),
            I(f's_add_u32 s{SRD_T2}, s{S_DBG}, {OPT.get("dbgoff", 0)}'), I(f's_addc_u32 s{SRD_T2+1}, s{S_DBG+1}, 0'),
            I(f's_lshl_b32 s{S_T0}, s{S_J}, 2'),
            I(f'v_mov_b32 v{vt}, 1'), I(f'v_lshlrev_b32 v{vt+1}, 6, v{V_LANE}'),
            I(f'buffer_store_dword v{vt}, v{vt+1}, s[{SRD_T2}:{SRD_T2+3}], s{S_T0} offen sc1', tag='zf')]

SPIN_SLOTS = ['zd', 'f0', 'wd', 'h01', 'h2', 'kv', 'oc', 'pc']
def poll_check(name, srd_, va, vp, ve):
    if OPT.get('nopoll'): return []
    _lab[0] += 1
    L = f'L_{name}_{_lab[0]}'
    dbg = OPT.get('spin')
    r = ([I('s_mov_b32 s69, 0')] if dbg else []) + [WaitTag(name), I(f'v_cmp_le_u32 vcc, v{ve}, v{vp}'), I('s_nop 1'), I('s_cmp_eq_u64 vcc, -1'), I(f's_cbranch_scc1 {L}_ok'),
         I(f's_cmp_lg_u32 s{S_WAVE}, 0'), I(f's_cbranch_scc1 {L}_ok')]
    r += offpath([I(f's_mov_b32 s69, {1 if dbg else 0}'), I(f'{L}_spin:'),
                  I(f'buffer_load_dword v{vp}, v{va}, s[{srd_}:{srd_+3}], 0 offen sc1'), I('s_waitcnt vmcnt(0)'),
                  I(f'v_cmp_le_u32 vcc, v{ve}, v{vp}'), I('s_nop 1'), I('s_cmp_eq_u64 vcc, -1'), I(f's_cbranch_scc1 {L}_ok'),
                  I('s_sleep 2'), I('s_add_u32 s69, s69, 1'), I('s_cmp_lt_u32 s69, 0x4000'), I(f's_cbranch_scc1 {L}_spin')])
    r.append(I(f'{L}_ok:'))
    if dbg:
        slot = 48 + SPIN_SLOTS.index(name)
        r.append(I(f'v_writelane_b32 v{V_ST}, s69, {slot}'))
    return r

S_W0 = 73
def poll_load(name, srd_, va, vp):
    return I(f'buffer_load_dword v{vp}, v{va}, s[{srd_}:{srd_+3}], s{S_W0} offen sc1', tag=name)

def two_lane(vd, sa, sb, other=None):
    r = [I(f'v_mov_b32 v{vd}, {sa if other is None else other}')]
    if other is not None: r.append(I(f'v_writelane_b32 v{vd}, {sa}, 0'))
    r.append(I(f'v_writelane_b32 v{vd}, {sb}, 1'))
    return r

def cnt_add(va, vone, tag):
    return [I(f'v_mov_b32 v{vone}, 1'), I(f'buffer_atomic_add v{vone}, v{va}, s[{SRD_Z}:{SRD_Z+3}], 0 offen', tag=tag)]

def cnt_addr(va, off_sreg_expr_code, cond_code=None):
    r = flat([x if isinstance(x, list) else [x] for x in off_sreg_expr_code])
    r += [I(f's_cmp_eq_u32 s{S_WAVE}, 0'), I(f's_cselect_b32 s64, s64, {OOB:#x}'),
          I(f'v_mov_b32 v{va}, {OOB:#x}'), I(f'v_writelane_b32 v{va}, s64, 0')]
    return r

def act_lane_offset(c):
    A = lambda t, **k: c.append(I(t, **k))
    A(f'v_lshrrev_b32 v32, 4, v{V_T}'); A(f'v_mul_u32_u24 v32, {NKS*1024}, v32')
    A(f'v_and_b32 v33, 15, v{V_T}'); A(f'v_lshl_add_u32 v33, v{V_HH}, 4, v33')
    A(f'v_lshl_add_u32 v{V_ACTL}, v33, 4, v32')
    A(f's_lshl_b32 s{S_T0}, s{S_I}, 2'); A(f's_add_u32 s{S_T0}, s{S_T0}, s{S_WAVE}')
    A(f's_mul_i32 s{S_T0}, s{S_T0}, {2*NKS*1024}')
    srd(c, SRD_ACT, S_WS, f's{S_T0}', 2 * NKS * 1024)

def x_read_addrs(c):
    A = lambda t, **k: c.append(I(t, **k))
    A(f'v_lshrrev_b32 v32, 1, v{V_T}'); A('v_and_b32 v32, 7, v32'); A(f'v_xor_b32 v32, v{V_HH}, v32')
    A(f'v_lshlrev_b32 v33, 7, v{V_T}'); A(f'v_add_u32 v33, s{S_W4K}, v33'); A('v_add_u32 v33, 0x10000, v33')
    for sub in range(4):
        A(f'v_xor_b32 v34, {2*sub}, v32'); A(f'v_lshl_add_u32 v{V_XR+sub}, v34, 4, v33')

def p4_ids(c):
    A = lambda t, **k: c.append(I(t, **k))
    A(f's_and_b32 s{S_PT}, s{S_I}, 11'); A(f's_and_b32 s{S_T0}, s{S_J}, 4'); A(f's_add_u32 s{S_PT}, s{S_PT}, s{S_T0}')
    A(f's_lshr_b32 s{S_PC}, s{S_J}, 3'); A(f's_lshl_b32 s{S_PC}, s{S_PC}, 2')
    A(f's_and_b32 s{S_T0}, s{S_J}, 1'); A(f's_lshl_b32 s{S_T0}, s{S_T0}, 1'); A(f's_add_u32 s{S_PC}, s{S_PC}, s{S_T0}')
    A(f's_bfe_u32 s{S_T0}, s{S_I}, 0x10002'); A(f's_add_u32 s{S_PC}, s{S_PC}, s{S_T0}')

def stat_partial(xt, t0, dst):
    r = [I(f'v_mov_b32 v{t0+4+k}, 0') for k in range(4)]
    for k in range(16):
        lo, hi = t0 + 2 * (k & 1), t0 + 2 * (k & 1) + 1
        r += [I(f'v_lshlrev_b32 v{lo}, 16, v{xt+k}'), I(f'v_and_b32 v{hi}, s{S_MASK}, v{xt+k}'),
              I(f'v_add_f32 v{t0+4}, v{t0+4}, v{lo}'), I(f'v_add_f32 v{t0+5}, v{t0+5}, v{hi}'),
              I(f'v_fmac_f32 v{t0+6}, v{lo}, v{lo}'), I(f'v_fmac_f32 v{t0+7}, v{hi}, v{hi}')]
    r += [I(f'v_add_f32 v{dst}, v{t0+4}, v{t0+5}'), I(f'v_add_f32 v{t0+6}, v{t0+6}, v{t0+7}'),
          I(f'v_permlane32_swap_b32 v{dst}, v{t0+6}'), I(f'v_add_f32 v{dst}, v{dst}, v{t0+6}')]
    return r

def stat_addr(va):
    return [I(f's_lshl_b32 s64, s{S_I}, 2'), I(f's_add_u32 s64, s64, s{S_WAVE}'), I('s_lshl_b32 s64, s64, 8'), I(f's_add_u32 s64, s64, {Z_STAT}'),
            I(f's_lshr_b32 s65, 0x0aff, s{S_J}'), I('s_and_b32 s65, s65, 1'), I('s_cmp_eq_u32 s65, 1'), I(f's_cselect_b32 s64, s64, {OOB:#x}'),
            I(f'v_lshlrev_b32 v{va}, 3, v{V_T}'), I(f'v_lshl_add_u32 v{va}, v{V_HH}, 2, v{va}'), I(f'v_add_u32 v{va}, s64, v{va}')]

def ln_final(vs, bmu, t0, V_RS=V_RS, V_MU=V_MU):
    A = []
    a = lambda t: A.append(I(t))
    a(f'v_mul_f32 v{V_MU}, {1.0/640!r}, v{vs}'); a(f'v_mul_f32 v{t0}, {1.0/640!r}, v{vs+1}')
    a(f'v_fma_f32 v{t0}, -v{V_MU}, v{V_MU}, v{t0}'); a(f'v_max_f32 v{t0}, 0, v{t0}'); a(f'v_add_f32 v{t0}, 0x3727c5ac, v{t0}')
    a(f'v_rsq_f32 v{V_RS}, v{t0}')
    n, hf, r1, mf, r2 = t0, t0 + 1, t0 + 2, t0 + 1, t0
    a(f'v_sub_f32 v{n}, 0, v{V_MU}')
    a(f'v_cvt_pk_bf16_f32 v{bmu}, v{n}, v{n}')
    a(f'v_and_b32 v{hf}, s{S_MASK}, v{bmu}'); a(f'v_sub_f32 v{r1}, v{n}, v{hf}')
    a(f'v_cvt_pk_bf16_f32 v{bmu+1}, v{r1}, v{n}')
    a(f'v_lshlrev_b32 v{mf}, 16, v{bmu+1}'); a(f'v_sub_f32 v{r2}, v{r1}, v{mf}')
    a(f'v_cvt_pk_bf16_f32 v{bmu+2}, v{r2}, v{r1}')
    a(f'v_cmp_eq_u32 vcc, 0, v{V_HH}')
    a(f'v_mov_b32 v{bmu+3}, 0'); a(f'v_mov_b32 v{bmu+7}, 0')
    for k in range(3): a(f'v_cndmask_b32 v{bmu+4+k}, v{bmu+k}, v{bmu+3}, vcc')
    for k in range(3): a(f'v_cndmask_b32 v{bmu+k}, v{bmu+3}, v{bmu+k}, vcc')
    return A

def cs_frag(vc, dst, t0):
    return [I(f'v_cvt_pk_bf16_f32 v{t0}, v{vc}, v{vc}'), I(f'v_and_b32 v{t0}, s{S_MASK}, v{t0}'), I(f'v_sub_f32 v{t0}, v{vc}, v{t0}'),
            I(f'v_cvt_pk_bf16_f32 v{dst}, v{vc}, v{t0}'), I(f'v_and_b32 v{t0+1}, s{S_MASK}, v{dst}'), I(f'v_sub_f32 v{t0}, v{t0}, v{t0+1}'),
            I(f'v_cvt_pk_bf16_f32 v{dst+1}, v{vc}, v{t0}'), I(f'v_mov_b32 v{dst+2}, v{dst}')]

def gemm(stream, st, st0, nst, ntile, acc, afr, bfr, reads, nxt_reads, pfx, hooks=None, sync_pre=None, sync_post=None,
         sync_tags=None, final_sync=True, xhook=None, gaps=None, sg=2, pre_stage=None):
    main = []
    hooks = hooks or {}
    nk = nst * 4
    h = ntile // 2
    SE = OPT['se']
    for s in range(nk):
        n = st0 + s // 4
        sp = s % 4
        last = sp == 3
        sync = last and (s + 1 < nk or final_sync)
        rd = []
        if s + 1 < nk:
            if xhook: rd += xhook(s + 1)
            for T in range(ntile):
                for ins in reads(n + (1 if last else 0), (s + 1) % 4, T, afr(s + 1, T)):
                    ins.tag = f'{pfx}{s+1}{"a" if T < h else "b"}'; rd.append(ins)
        else:
            rd = nxt_reads
        rgaps = list(range(sg if last else 0, ntile))
        share = [[] for _ in rgaps]
        for k, ins in enumerate(rd): share[k * len(rgaps) // max(len(rd), 1)].append(ins)
        for T in range(ntile):
            g = []
            if T == sg and sync:
                if sync_pre: g += sync_pre(n)
                tg_ = [f'w{n+1}', f'x{n+1}'] + (sync_tags(n) if sync_tags else [])
                stream.issued(tg_)
                g.append(WaitTag(tg_, lgkm0=True))
            elif T == h: g.append(WaitLg(f'{pfx}{s}b'))
            elif T == 0: g.append(WaitLg(f'{pfx}{s}a'))
            if T == 0 and pre_stage and (s in pre_stage): g += pre_stage[s]
            cc = '0' if s == 0 else acc(T)
            g.append(I(f'v_mfma_f32_32x32x16_bf16 {acc(T)}, {ar(afr(s,T))}, {bfr(s)}, {cc}'))
            if T == sg and sync:
                g.append(I('s_barrier'))
                if SE and (n % SE == 0): st(g, f'S{n+1}')
                stream.release(n + 1)
                if sync_post: g += sync_post(n)
            g += hooks.get((s, T), [])
            if T in rgaps: g += share[rgaps.index(T)]
            cb = hooks.get(('cb', s, T))
            if cb: cb()
            post = []
            for _ in range(gaps(s).count(T)): post += stream.take(1)
            main.append((g, post))
    return main

def finish(c, rep=None):
    c = place_m0(c)
    c = insert_waits(c, rep)
    c = insert_hazard_nops(c, rep)
    return c

def kd(name, vgpr, agpr_off, sgpr=96):
    return f""".amdhsa_kernel {name}
  .amdhsa_next_free_vgpr {vgpr}
  .amdhsa_next_free_sgpr {sgpr}
  .amdhsa_accum_offset {agpr_off}
  .amdhsa_group_segment_fixed_size 0
  .amdhsa_kernarg_size 88
  .amdhsa_user_sgpr_count 2
  .amdhsa_user_sgpr_kernarg_segment_ptr 1
  .amdhsa_system_sgpr_workgroup_id_x 1
.end_amdhsa_kernel
"""

def spread(items, g0, g1, gmax=None):
    n = len(items)
    return [(g0 + (g1 - g0) * k // n, it, gmax if gmax is not None else g1 + 4) for k, it in enumerate(items)]

def atoms(code):
    out = []
    for x in code:
        if isinstance(x, list): out.append(x); continue
        op = getattr(x, 'op', '')
        reads_scc = op in ('s_cselect_b32', 's_cselect_b64', 's_addc_u32', 's_subb_u32') or op.startswith('s_cbranch_scc')
        if reads_scc and out:
            prev = out[-1] if isinstance(out[-1], list) else [out[-1]]
            out[-1] = prev + [x]
        else:
            out.append(x)
    return out

def rep_addr(va, off, cond, shard):
    return [cond + [I(f's_cselect_b32 s64, 0, {OOB:#x}')],
            I(f's_or_b32 s64, s64, s{S_W0}'), shard + [I('s_lshl_b32 s65, s65, 7'), I('s_add_u32 s64, s64, s65')],
            I(f'v_lshlrev_b32 v{va}, {TSH}, v{V_LANE}'), I(f'v_add_u32 v{va}, {off}, v{va}'),
            [I(f'v_cmp_gt_u32 vcc, 16, v{V_LANE}'), I(f'v_mov_b32 v{va+1}, {OOB:#x}'), I(f'v_cndmask_b32 v{va}, v{va+1}, v{va}, vcc')],
            I(f'v_add_u32 v{va}, s64, v{va}')]

def tline(tile, off, dst='s64'):
    return [I(f's_lshl_b32 {dst}, s{tile}, {TSH}')] + ([I(f's_add_u32 {dst}, {dst}, {off}')] if off else [])

def rline(off, dst='s64'):
    return [I(f's_lshl_b32 {dst}, s{S_J}, {RSH}'), I(f's_add_u32 {dst}, {dst}, {Z_CNT_R + off}')]

def wave_shard(dst='s64', t='s65'):
    return [I(f's_lshl_b32 {t}, s{S_WAVE}, 7'), I(f's_add_u32 {dst}, {dst}, {t}')]

def poll_shards(va, ve, sbase, n, exp):
    return [I(f'v_min_u32 v{va}, {n-1}, v{V_LANE}'), I(f'v_lshl_add_u32 v{va}, v{va}, 7, {sbase}'), I(f'v_mov_b32 v{ve}, {exp}')]

def poll_weights(va, ve, sbase, n):
    return [I(f'v_min_u32 v{ve}, {n-1}, v{V_LANE}'), I(f'v_lshl_add_u32 v{va}, v{ve}, 7, {sbase}'), I(f'v_lshrrev_b32 v{ve}, 2, v{ve}'),
            I(f'v_mul_u32_u24 v{ve}, v{ve}, v{ve}'), I(f'v_sub_u32 v{ve}, 14, v{ve}')]

V_TX, V_TW, V_TD = 60, 61, 62
def touch_x_setup(vtx, t0):
    return [I(f's_and_b32 s64, s{S_J}, 3'), I('s_lshl_b32 s64, s64, 5'), I(f's_lshl_b32 s65, s{S_WAVE}, 3'), I('s_add_u32 s64, s64, s65'),
            I(f'v_lshrrev_b32 v{t0}, 1, v{V_LANE}'), I(f'v_add_u32 v{t0}, s64, v{t0}'), I(f'v_mul_u32_u24 v{t0}, 1280, v{t0}'),
            I(f'v_and_b32 v{t0+1}, 1, v{V_LANE}'), I(f'v_lshl_add_u32 v{t0}, v{t0+1}, 6, v{t0}'),
            I(f'v_cmp_gt_u32 vcc, 16, v{V_LANE}'), I(f'v_mov_b32 v{t0+1}, {OOB:#x}'), I(f'v_cndmask_b32 v{vtx}, v{t0+1}, v{t0}, vcc')]

def stage1_issue(c, stream, p1):
    pace = OPT.get('pace', 0); n1 = OPT['p1']
    if pace == 0:
        c.extend(flat(x_dma(1))); c.extend(flat(p1[:n1])); rest = p1[n1:]
    elif pace == 1:
        c.append(WaitTag('x0')); c.extend(flat(x_dma(1)))
        if n1: c.append(WaitTag('w0a')); c.extend(flat(p1[:n1]))
        rest = p1[n1:]
    elif pace == 2:
        rest = x_dma(1) + p1
    elif pace == 3:
        c.append(WaitTag('x0')); c.extend(flat(p1[:n1])); rest = x_dma(1) + p1[n1:]
    return rest
```

```python
import numpy as np
S, D, F, H, DH = 2048, 640, 1728, 32, 20
NKS = 74
ACT_OFF = 0
ACT_SIZE = 128 * NKS * 1024
WP_OFF = 0xA00000
WP_SIZE = 8 * NKS * 5 * 1024
PART_OFF = 0xD00000
PART_ONE = 40960
Z_OFF = 0x1800000
TSH, RSH = 12, 8
T_XC = 3840
T_ST, T_H01, T_H2, T_O, T_P, T_WD, T_WO = 0, 128, 256, 768, 1280, 2304, 3328
Z_CNT_R = 65536
R_2 = 128
Z_STAT = 69632
Z_CS = Z_STAT + 16384
Z_KVS = Z_CS + 32768
Z_SIZE = Z_KVS + 8 * 20480
Z_SHARE = Z_SIZE // 16
assert Z_SHARE * 16 == Z_SIZE and Z_SHARE % 16 == 0 and Z_SHARE <= 20 * 1024
STAMP_OFF = 0x1900000

import os
MLPV = os.environ.get('MLPV', 'old')
def ftile(s):
    if MLPV == '5': return s
    if s < 32: return 6 * (s >> 2) + (s & 3)
    if s < 48: return 6 * ((s - 32) >> 1) + 4 + (s & 1)
    return s

def krow(s, g, e):
    if s < 54:
        return 32 * ftile(s) + 16 * (g >> 1) + 8 * (e >> 2) + 4 * (g & 1) + (e & 3)
    J = 4 * (s - 54) + g
    G, q = divmod(J, 10)
    if q < 8:
        hp, hh = q >> 1, q & 1
        r = 20 * (4 * G + hp) + 4 * hh + 8 * (e >> 2) + (e & 3)
    else:
        j = q - 8
        r = 20 * (4 * G + 2 * j + (e >> 2)) + 16 + (e & 3)
    return F + r

KROW = np.array([[[krow(s, g, e) for e in range(8)] for g in range(4)] for s in range(NKS)])
assert sorted(KROW.reshape(-1).tolist()) == list(range(F + D))

def pack_act(act):
    l = np.arange(64)
    tok = (np.arange(128)[:, None] * 16 + (l & 15)[None, :])
    kr = KROW[:, l >> 4, :]
    return act[tok[:, None, :, None], kr[None, :, :, :]]

def pack_wp(wcat):
    l = np.arange(64)
    col = (80 * np.arange(8)[:, None, None] + 16 * np.arange(5)[None, :, None] + (l & 15)[None, None, :])
    kr = KROW[:, l >> 4, :]
    return wcat[kr[None, :, None, :, :], col[:, None, :, :, None]]

def wg_map(wg):
    xcd, q = wg & 7, wg >> 3
    i = 8 * (xcd & 1) + (q & 7)
    j = 4 * (xcd >> 1) + (q >> 3)
    return i, j

def role_index(j):
    return 2 * (j >> 2) + (j & 1)

def p4_map(i, j):
    return 8 * (i >> 3) + 4 * ((j >> 2) & 1) + (i & 3), 4 * (j >> 3) + 2 * (j & 1) + ((i >> 2) & 1)

def rot_of(i, j):
    return (i + (0, 2, 5, 7)[j & 3] + (j >> 2)) % 10

if __name__ == '__main__':
    for typ in (0, 2):
        seen = set()
        for wg in range(256):
            i, j = wg_map(wg)
            if (j & 2) == typ: seen.add(p4_map(i, j))
        assert len(seen) == 128
    for i in range(16):
        des = [0, 1, 2, 3, 4, 5, 6, 7, 9, 11]
        assert sorted(rot_of(i, j) for j in des) == list(range(10))
    for j in range(16):
        assert sorted(rot_of(i, j) for i in range(10)) == list(range(10))
    print('ok', Z_SIZE, Z_SHARE)
```

```python
import sys, json
from common import *
import common
import importlib
from layout4 import MLPV
mlp_role = importlib.import_module({'old': 'mlp', '5': 'mlp5', '6': 'mlp6', '7': 'mlp7', '8': 'mlp8'}[MLPV]).mlp_role
import os
att_role = importlib.import_module('att2' if os.environ.get('ATTV') == '2' else 'att').att_role
from build_util import assemble_check
NAME = 'parallel_sum__linear_kernel_hedgehog__glu_gated_reglu__prompt'
KN = NAME + '_kernel'
HEADER = open('cdna_kernels/' + NAME + '.s.ref').read().split('; Override launch geometry')[0]

def gen(stamps):
    common._lab[0] = 0
    del common.TAIL[:]
    c = []
    st = Stamps(stamps, vreg=V_ST, sreg=100)
    A = lambda t, **k: c.append(I(t, **k))
    A(f'{KN}:')
    A('s_cmp_ge_u32 s2, 256')
    A('s_cbranch_scc1 L_end')
    if stamps: A(f'v_mov_b32 v{V_ST}, 0')
    st.real(c); st(c, 'start')
    prologue(c, st, [('L_pc', OPT.get('blk_m', 3)), ('L_att', OPT.get('blk_a', 3))])
    st(c, 'x0')
    if stamps: st._commit(c)
    common.ALLC[0] = list(c)
    A(f's_and_b32 s{S_T0}, s{S_J}, 2')
    A(f's_cmp_eq_u32 s{S_T0}, 0')
    A('s_cbranch_scc1 L_att')
    cm = []; stm = st.copy()
    mlp_role(cm, stm)
    stm(cm, 'end'); stm.real(cm); stm.dump(cm, OPT.get('sel_m'))
    cm.append(I('s_endpgm'))
    ca = [I('L_att:')]; sta = st.copy()
    att_role(ca, sta)
    sta(ca, 'end'); sta.real(ca); sta.dump(ca, OPT.get('sel_a'))
    ca.append(I('L_end:')); ca.append(I('s_endpgm'))
    return c, cm, ca, stm.names, sta.names

def build(path, stamps=False, check=True):
    rep = []
    c, cm, ca, nm, na = gen(stamps)
    full_m = finish(c + cm, rep)
    full_a = finish(c + ca, rep)
    last = c[-1]
    im = full_m.index(last); ia = full_a.index(last)
    assert [x.text for x in full_m[:im+1]] == [x.text for x in full_a[:ia+1]]
    code = full_m + full_a[ia+1:]
    for blk in common.TAIL: code += blk
    if stamps: json.dump(dict(mlp=nm, att=na), open(path[:-2] + '.json', 'w'))
    txt = HEADER
    txt += '; @launch grid=(256,1,1) block=(256,1,1) lds=163840\n'
    txt += '.amdgcn_target "amdgcn-amd-amdhsa--gfx950"\n.text\n'
    txt += f'.globl {KN}\n.p2align 8\n.type {KN},@function\n' + render(code) + 'L_code_end:\n'
    txt += '.section .rodata,"a"\n.p2align 6\n' + kd(KN, 512, 256, 102)
    open(path, 'w').write(txt)
    from collections import Counter
    print(path, 'est', est_cycles(full_m), est_cycles(full_a), 'instrs', len(full_m), len(full_a), 'bytes', len(txt), Counter(r.split(' before')[0] for r in rep))
    if check: assemble_check(path, KN, lists=False)
    return full_m, full_a

if __name__ == '__main__':
    import os
    OPT.update(eval(os.environ.get('OPTS', '{}')))
    build('v4.s', stamps=False)
    OPT['se'] = int(sys.argv[1]) if len(sys.argv) > 1 else 2
    OPT['spin'] = 1
    build('v4_st.s', stamps=True)
```

```python
from ir import *
from layout4 import *

def vr(b, n=4): return f'v[{b}:{b+n-1}]'
def ar(b, n=4): return f'a[{b}:{b+n-1}]'
K = 1024
OOB = 0x40000000

S_X, S_WQKV, S_WPHI, S_WO, S_BX, S_WG, S_WU, S_WD = 16, 18, 20, 22, 24, 26, 28, 30
S_OUT, S_DBG, S_WS = 32, 34, 36
S_WAVE, S_I, S_J, S_T0, S_T1, S_W4K = 38, 39, 40, 41, 42, 43
SRD_X, SRD_W, SRD_W2, SRD_ACT, SRD_Z = 44, 48, 52, 56, 60
SRD_T, SRD_T2 = 4, 12
S_SOFF, S_SOFF2, S_ROLE, S_MASK = 8, 9, 10, 11
S_KB = 76
S_PT, S_PC = 86, 87
S_W5K = 3
V_LANE, V_T, V_HH = 1, 2, 3
V_RS, V_MU = 4, 5
V_ACTL, V_ST = 6, 7
V_DMA, V_XR = 8, 12
XBASE = 96 * K
SLOT_A = (0, 32 * K, 64 * K)

OPT = dict(cpf=True, se=2, nm=4, nb=12, p1=4, g0=6, ea=3, la=0, h2g=60, hsig=40, osig=40)
if MLPV != '5': OPT.update(la=4, h2g=75)
if MLPV == '7': OPT.update(la=0, ea=2, h2g=75)
if MLPV == '8': OPT.update(la=0, ea=3, h2chk=3, pback=2, zearly=1, wlim=2, late1a=1, wpx=1, tswap=1, wchk=16, hchk=17, late1m=1, kvp=190, kvc=290, p1a=5, wlim2=4, pbfin=0, kvt=0, wde=1, h2gw=14, osig=16, p4early=2, gx=30)

_lab = [0]
class Ring:
    def __init__(self): self.alloc = []; self.nb = {}
    def add_at(self, base, size, not_before=-1):
        self.alloc.append((base, size)); self.nb[len(self.alloc) - 1] = not_before
    def free_after(self, n):
        b, s = self.alloc[n]
        last = self.nb.get(n, -1)
        for m in range(n):
            bm, sm = self.alloc[m]
            if bm < b + s and b < bm + sm: last = max(last, m)
        return last

class Stream:
    def __init__(self, ring, pieces):
        self.ring = ring; self.pieces = pieces
        self.next = 0; self.queue = []; self.n = len(ring.alloc); self.limit = self.n
    def release(self, lim):
        self.lim = lim
        while self.next < min(self.n, self.limit) and self.ring.free_after(self.next) < lim:
            self.queue += self.pieces(self.next); self.next += 1
    def push_front(self, groups): self.queue = list(groups) + self.queue
    def insert_after(self, tag, groups):
        k = 0
        for j, g in enumerate(self.queue):
            if any(getattr(i, 'tag', None) == tag for i in g): k = j + 1
        self.queue[k:k] = list(groups)
    def take(self, k):
        out = []
        for _ in range(min(k, len(self.queue))): out += self.queue.pop(0)
        return out
    def flush(self): return self.take(len(self.queue))
    def issued(self, tags, st0=0):
        for g in self.queue:
            for i in g: assert getattr(i, 'tag', None) not in tags, f'awaited piece still queued: {i.tag}'
        for t in tags:
            if t[0] == 'w' and t[1:].isdigit(): assert int(t[1:]) < self.next or int(t[1:]) >= self.n, f'awaited stage not released: {t}'

class Stamps:
    def __init__(self, on, vreg=0, sreg=100): self.on = on; self.n = 0; self.v = vreg; self.s = sreg; self.pending = False; self.names = []
    def _commit(self, c):
        if self.pending:
            c.append(I('s_waitcnt lgkmcnt(0)'))
            c.append(I(f'v_writelane_b32 v{self.v}, s{self.s}, {self.n}')); self.n += 1; self.pending = False
    def __call__(self, c, name=''):
        if not self.on: return
        self._commit(c)
        c.append(I(f's_memtime s[{self.s}:{self.s+1}]')); self.pending = True; self.names.append(name)
    def real(self, c, name='real'):
        if not self.on: return
        self._commit(c)
        c.append(I(f's_memrealtime s[{self.s}:{self.s+1}]')); self.pending = True; self.names.append(name)
    def copy(self):
        o = Stamps(self.on, self.v, self.s); o.n = self.n; o.pending = self.pending; o.names = list(self.names); return o
    def dump(self, c, sel=None):
        if not self.on: return
        A = lambda t: c.append(I(t))
        self._commit(c)
        if sel is not None:
            wg, word0, names = sel
            A('s_waitcnt vmcnt(0) lgkmcnt(0)')
            A(f's_cmp_eq_u32 s2, {wg}'); A('s_cselect_b32 s6, 64, 0'); A(f's_cmp_eq_u32 s{S_WAVE}, 0'); A('s_cselect_b32 s6, s6, 0')
            A(f's_mov_b32 s4, s{S_DBG}'); A(f's_mov_b32 s5, s{S_DBG+1}'); A('s_mov_b32 s7, 0x00020000')
            for k, nme in enumerate(names):
                A(f'v_readlane_b32 s64, v{self.v}, {self.names.index(nme) if nme != "real2" else len(self.names) - 1}')
                A('s_nop 4')
                A('v_mov_b32 v1, s64'); A(f'v_mov_b32 v2, {(word0 + k) * 4}')
                A('buffer_store_dword v1, v2, s[4:7], 0 offen')
            A('s_waitcnt vmcnt(0)')
            return
        A('s_waitcnt vmcnt(0) lgkmcnt(0)')
        A(f's_lshl_b32 s64, s2, 2'); A(f's_add_u32 s64, s64, s{S_WAVE}'); A('s_lshl_b32 s64, s64, 8')
        A(f's_add_u32 s64, s64, {STAMP_OFF}')
        A(f's_add_u32 s4, s{S_WS}, s64'); A(f's_addc_u32 s5, s{S_WS+1}, 0')
        A('s_mov_b32 s6, 256'); A('s_mov_b32 s7, 0x00020000')
        A('v_mbcnt_lo_u32_b32 v1, -1, 0'); A('v_mbcnt_hi_u32_b32 v1, -1, v1'); A('v_lshlrev_b32 v1, 2, v1')
        A(f'buffer_store_dword v{self.v}, v1, s[4:7], 0 offen'); A('s_waitcnt vmcnt(0)')

def srd(c, d, base, off, nrec):
    if off is None:
        c += [I(f's_mov_b32 s{d}, s{base}'), I(f's_mov_b32 s{d+1}, s{base+1}')]
    else:
        c += [I(f's_add_u32 s{d}, s{base}, {off}'), I(f's_addc_u32 s{d+1}, s{base+1}, 0')]
    if nrec is not None: c.append(I(f's_mov_b32 s{d+2}, {nrec}'))
    c.append(I(f's_mov_b32 s{d+3}, 0x00020000'))

def code_prefetch(c, regions, vdst):
    A = lambda t, **k: c.append(I(t, **k))
    A('s_getpc_b64 s[4:5]')
    A('L_pc:')
    A('s_lshr_b32 s3, s2, 3'); A('s_lshl_b32 s3, s3, 9')
    A('v_lshrrev_b32 v33, 6, v0'); A('v_lshl_add_u32 v33, v33, 7, s3')
    A('v_and_b32 v34, 63, v0'); A('v_lshl_add_u32 v32, v34, 14, v33')
    lane = 0
    for lab, nblk in regions:
        if lane:
            A(f's_mov_b32 s3, {lab}-L_pc-{lane*16384}'); A(f'v_cmp_le_u32 vcc, {lane}, v34')
            A('v_lshl_add_u32 v35, v34, 14, v33'); A('v_add_u32 v35, s3, v35')
            A('v_cndmask_b32 v32, v32, v35, vcc')
        lane += nblk
    A('s_mov_b32 s6, L_code_end-L_pc'); A('s_mov_b32 s7, 0x00020000')
    A(f'v_cmp_le_u32 vcc, {lane}, v34'); A(f'v_mov_b32 v35, {OOB:#x}'); A('v_cndmask_b32 v32, v32, v35, vcc')
    A(f'buffer_load_dword v{vdst}, v32, s[4:7], 0 offen', tag='cpf')

def emit_wgmap(c):
    c += [I(f's_and_b32 s{S_T0}, s2, 7'), I(f's_lshr_b32 s{S_T1}, s2, 3'),
          I(f's_and_b32 s{S_I}, s{S_T0}, 1'), I(f's_lshl_b32 s{S_I}, s{S_I}, 3'),
          I(f's_and_b32 s{S_J}, s{S_T1}, 7'), I(f's_add_u32 s{S_I}, s{S_I}, s{S_J}'),
          I(f's_lshr_b32 s{S_J}, s{S_T0}, 1'), I(f's_lshl_b32 s{S_J}, s{S_J}, 2'),
          I(f's_lshr_b32 s{S_T1}, s{S_T1}, 3'), I(f's_add_u32 s{S_J}, s{S_J}, s{S_T1}')]

def kb_entry(n):
    if n == 0: return []
    return [I(f's_add_u32 s{S_KB+n}, s{S_KB+n-1}, 128'), I(f's_cmp_eq_u32 s{S_KB+n}, 1280'), I(f's_cselect_b32 s{S_KB+n}, 0, s{S_KB+n}')]

def x_dma(n):
    return [[dma(f'buffer_load_dwordx4 v{V_DMA+q}, s[{SRD_X}:{SRD_X+3}], s{S_KB+n} offen offset:{q*1024} lds',
                 (S_W4K, XBASE + (n % 2) * 16384), tag=f'x{n}')] for q in range(4)]

def x_read(n, sub, dst, tag=None):
    return I(f'ds_read_b128 {dst}, v{V_XR+sub} offset:{XBASE - 65536 + (n % 2) * 16384}', tag=tag)

def flat(groups): return [i for g in groups for i in g]

def prologue(c, st, regions):
    A = lambda t, **k: c.append(I(t, **k))
    A('s_load_dwordx16 s[16:31], s[0:1], 0')
    A('s_load_dwordx4 s[32:35], s[0:1], 64')
    A('s_load_dwordx2 s[36:37], s[0:1], 80')
    if OPT['cpf'] and not OPT.get('cpfl'): code_prefetch(c, regions, V_MU)
    A(f'v_and_b32 v{V_LANE}, 63, v0')
    A('v_lshrrev_b32 v32, 6, v0')
    A(f'v_lshrrev_b32 v33, 3, v{V_LANE}')
    A(f'v_readfirstlane_b32 s{S_WAVE}, v32')
    A(f'v_and_b32 v34, 7, v{V_LANE}')
    A('v_lshrrev_b32 v35, 1, v33')
    A('v_xor_b32 v34, v34, v35')
    A('v_mul_u32_u24 v33, 1280, v33')
    for q in range(4):
        A(f'v_xor_b32 v35, {4*(q&1)}, v34')
        A(f'v_lshl_add_u32 v35, v35, 4, v33')
        A(f'v_add_u32 v{V_DMA+q}, {q*(8*1280-1024)}, v35')
    emit_wgmap(c)
    A(f's_and_b32 s{S_T0}, s{S_J}, 3'); A(f's_mul_i32 s{S_T0}, s{S_T0}, 5'); A(f's_lshr_b32 s{S_T0}, s{S_T0}, 1')
    A(f's_lshr_b32 s{S_T1}, s{S_J}, 2'); A(f's_add_u32 s{S_T0}, s{S_T0}, s{S_T1}')
    rot = OPT.get('rot', 'ij')
    if rot == 'ij': A(f's_add_u32 s{S_T0}, s{S_T0}, s{S_I}')
    if rot == 'i5':
        A(f's_and_b32 s{S_T1}, s{S_I}, 7'); A(f's_lshl_b32 s{S_T1}, s{S_T1}, 2'); A(f's_lshr_b32 s{S_T1}, 0x42086420, s{S_T1}'); A(f's_and_b32 s{S_T1}, s{S_T1}, 15')
        A(f's_add_u32 s{S_T0}, s{S_T0}, s{S_T1}'); A(f's_lshr_b32 s{S_T1}, s{S_I}, 3'); A(f's_add_u32 s{S_T0}, s{S_T0}, s{S_T1}')
    if rot == 'i4':
        A(f's_and_b32 s{S_T1}, s{S_I}, 7'); A(f's_lshl_b32 s{S_T1}, s{S_T1}, 2'); A(f's_lshr_b32 s{S_T1}, 0x85308530, s{S_T1}'); A(f's_and_b32 s{S_T1}, s{S_T1}, 15')
        A(f's_add_u32 s{S_T0}, s{S_T0}, s{S_T1}'); A(f's_lshr_b32 s{S_T1}, s{S_I}, 3'); A(f's_add_u32 s{S_T0}, s{S_T0}, s{S_T1}')
    if rot == 'i': A(f's_mov_b32 s{S_T0}, s{S_I}')
    if rot == '0': A(f's_mov_b32 s{S_T0}, 0')
    if rot == 'x4':
        A(f's_lshr_b32 s{S_T1}, s{S_J}, 2'); A(f's_lshl_b32 s{S_T1}, s{S_T1}, 2'); A(f's_lshr_b32 s{S_T0}, 0x8630, s{S_T1}'); A(f's_and_b32 s{S_T0}, s{S_T0}, 15')
        A(f's_lshr_b32 s{S_T1}, s{S_I}, 3'); A(f's_mul_i32 s{S_T1}, s{S_T1}, 5'); A(f's_add_u32 s{S_T0}, s{S_T0}, s{S_T1}')
    if rot == 'x2':
        A(f's_lshr_b32 s{S_T1}, s{S_J}, 2'); A(f's_lshl_b32 s{S_T1}, s{S_T1}, 2'); A(f's_lshr_b32 s{S_T0}, 0x8630, s{S_T1}'); A(f's_and_b32 s{S_T0}, s{S_T0}, 15')
        A(f's_and_b32 s{S_T1}, s{S_I}, 1'); A(f's_mul_i32 s{S_T1}, s{S_T1}, 5'); A(f's_add_u32 s{S_T0}, s{S_T0}, s{S_T1}')
    for _ in range(2 if rot in ('ij', 'i', '0') else 3):
        A(f's_sub_u32 s{S_T1}, s{S_T0}, 10'); A(f's_cmp_ge_u32 s{S_T0}, 10'); A(f's_cselect_b32 s{S_T0}, s{S_T1}, s{S_T0}')
    A(f's_lshl_b32 s{S_KB}, s{S_T0}, 7')
    A(f's_lshl_b32 s{S_T0}, s{S_I}, 2'); A(f's_add_u32 s{S_T0}, s{S_T0}, s{S_WAVE}')
    A(f's_mul_i32 s{S_T1}, s{S_T0}, {32*1280}')
    A(f's_lshl_b32 s{S_W4K}, s{S_WAVE}, 12')
    A(f's_cmp_eq_u32 s{S_WAVE}, 0'); A(f's_cselect_b32 s73, 0, {OOB:#x}')
    A('s_waitcnt lgkmcnt(0)')
    srd(c, SRD_X, S_X, f's{S_T1}', 32 * 1280)
    if OPT.get('zearly'): zero_stores(c, 40)
    c.extend(flat(x_dma(0)))
    if OPT['cpf'] and OPT.get('cpfl'): code_prefetch(c, regions, V_MU)
    A(f'v_and_b32 v{V_T}, 31, v{V_LANE}')
    A(f'v_lshrrev_b32 v{V_HH}, 5, v{V_LANE}')
    A(f's_lshr_b32 s{S_ROLE}, s{S_J}, 2'); A(f's_lshl_b32 s{S_ROLE}, s{S_ROLE}, 1')
    A(f's_and_b32 s{S_T0}, s{S_J}, 1'); A(f's_add_u32 s{S_ROLE}, s{S_ROLE}, s{S_T0}')
    c.extend(kb_entry(1))

TAIL = []
def zero_stores(c, vt):
    A = lambda t, **k: c.append(I(t, **k))
    body = []
    B = lambda t, **k: body.append(I(t, **k))
    B(f's_mul_i32 s{S_T0}, s{S_J}, {Z_SHARE}'); B(f's_add_u32 s{S_T0}, s{S_T0}, {Z_OFF}')
    srd(body, SRD_T2, S_WS, f's{S_T0}', Z_SHARE)
    for k in range(4): B(f'v_mov_b32 v{vt+k}, 0')
    B(f'v_lshlrev_b32 v{vt+4}, 4, v{V_LANE}'); B(f'v_add_u32 v{vt+4}, s{S_W4K}, v{vt+4}')
    B(f's_lshl_b32 s{S_T0}, s{S_WAVE}, 10'); B(f's_add_u32 s{S_T0}, s{S_T0}, 16384'); B(f'v_lshl_add_u32 v{vt+5}, v{V_LANE}, 4, s{S_T0}')
    B('s_nop 1')
    for k in range(4):
        B(f'buffer_store_dwordx4 {vr(vt)}, v{vt+4}, s[{SRD_T2}:{SRD_T2+3}], 0 offen offset:{k*1024} sc1')
    B(f'buffer_store_dwordx4 {vr(vt)}, v{vt+5}, s[{SRD_T2}:{SRD_T2+3}], 0 offen sc1')
    A(f's_cmp_eq_u32 s{S_I}, 0'); A('s_cbranch_scc1 L_zs'); A('L_zs_ret:')
    mark = I('s_nop 0', tag='zero'); mark.kind = 'vstore'; c.append(mark)
    TAIL.append([I('L_zs:')] + body + [I('s_branch L_zs_ret')])

def zero_early(c, vt):
    _lab[0] += 1; L = f'L_zf_{_lab[0]}'
    k = max(i for i, x in enumerate(ALLC[0] + c) if getattr(x, 'tag', None) == 'zero')
    younger = sum(1 for x in (ALLC[0] + c)[k+1:] if x.kind in VM_KINDS)
    c.extend([I(f's_mov_b32 s{SRD_T2+3}, 0x00020000'), I(f's_cmp_eq_u32 s{S_I}, 0'), I(f's_cbranch_scc1 {L}'), I(f'{L}_ret:')])
    TAIL.append([I(f'{L}:'), I(f's_waitcnt vmcnt({younger})'), I('s_barrier')] + zero_flag(vt) + [I(f's_branch {L}_ret')])
ALLC = [[]]

def tlb_touch(c, vt, srd_, with_wo):
    A = lambda t, **k: c.append(I(t, **k))
    A(f'v_lshlrev_b32 v{vt}, 21, v{V_LANE}'); A(f'v_add_u32 v{vt}, {OPT.get("tlboff", 0x1fff80)}, v{vt}')
    srd(c, srd_, S_WS, None, 0x1A00000)
    A(f'buffer_load_dword v{vt+1}, v{vt}, s[{srd_}:{srd_+3}], 0 offen', tag='tlb')
    A(f'v_lshlrev_b32 v{vt}, 20, v{V_LANE}')
    for ptr, size in ((S_OUT, S * D * 2), (S_WD, F * D * 2)) + (((S_WO, D * D * 2),) if with_wo else ()):
        srd(c, srd_, ptr, None, size)
        A(f'buffer_load_dword v{vt+1}, v{vt}, s[{srd_}:{srd_+3}], 0 offen', tag='tlb')

def zero_flag(vt):
    return [I(f's_or_b32 s{S_T0}, s{S_I}, s{S_WAVE}'), I(f's_cmp_eq_u32 s{S_T0}, 0'), I(f's_cselect_b32 s{SRD_T2+2}, 64, 0'),
            I(f's_add_u32 s{SRD_T2}, s{S_DBG}, {OPT.get("dbgoff", 0)}'), I(f's_addc_u32 s{SRD_T2+1}, s{S_DBG+1}, 0'),
            I(f's_lshl_b32 s{S_T0}, s{S_J}, 2'),
            I(f'v_mov_b32 v{vt}, 1'), I(f'v_lshlrev_b32 v{vt+1}, 6, v{V_LANE}'),
            I(f'buffer_store_dword v{vt}, v{vt+1}, s[{SRD_T2}:{SRD_T2+3}], s{S_T0} offen sc1', tag='zf')]

SPIN_SLOTS = ['zd', 'f0', 'wd', 'h01', 'h2', 'kv', 'oc', 'pc']
def poll_check(name, srd_, va, vp, ve):
    if OPT.get('nopoll'): return []
    _lab[0] += 1
    L = f'L_{name}_{_lab[0]}'
    dbg = OPT.get('spin')
    r = ([I('s_mov_b32 s69, 0')] if dbg else []) + [WaitTag(name), I(f'v_cmp_le_u32 vcc, v{ve}, v{vp}'), I('s_nop 1'), I('s_cmp_eq_u64 vcc, -1'), I(f's_cbranch_scc1 {L}_ok'),
         I(f's_cmp_lg_u32 s{S_WAVE}, 0'), I(f's_cbranch_scc1 {L}_ok')]
    ld = lambda: I(f'buffer_load_dword v{vp}, v{va}, s[{srd_}:{srd_+3}], 0 offen sc1')
    sp2 = OPT.get('spin2', 0)
    if sp2:
        r += offpath([I(f's_mov_b32 s69, {1 if dbg else 0}'), ld(), I(f's_sleep {sp2}'), I(f'{L}_spin:'),
                      ld(), I('s_waitcnt vmcnt(1)'),
                      I(f'v_cmp_le_u32 vcc, v{ve}, v{vp}'), I('s_nop 1'), I('s_cmp_eq_u64 vcc, -1'), I(f's_cbranch_scc1 {L}_ok'),
                      I('s_add_u32 s69, s69, 1'), I('s_cmp_lt_u32 s69, 0x8000'), I(f's_cbranch_scc1 {L}_spin')])
    else:
        r += offpath([I(f's_mov_b32 s69, {1 if dbg else 0}'), I(f'{L}_spin:'),
                      ld(), I('s_waitcnt vmcnt(0)'),
                      I(f'v_cmp_le_u32 vcc, v{ve}, v{vp}'), I('s_nop 1'), I('s_cmp_eq_u64 vcc, -1'), I(f's_cbranch_scc1 {L}_ok'),
                      I(f's_sleep {OPT.get("slp", 2)}'), I('s_add_u32 s69, s69, 1'), I('s_cmp_lt_u32 s69, 0x4000'), I(f's_cbranch_scc1 {L}_spin')])
    r.append(I(f'{L}_ok:'))
    if dbg:
        slot = 48 + SPIN_SLOTS.index(name)
        r.append(I(f'v_writelane_b32 v{V_ST}, s69, {slot}'))
    return r

S_W0 = 73
def poll_load(name, srd_, va, vp):
    return I(f'buffer_load_dword v{vp}, v{va}, s[{srd_}:{srd_+3}], s{S_W0} offen sc1', tag=name)

def two_lane(vd, sa, sb, other=None):
    r = [I(f'v_mov_b32 v{vd}, {sa if other is None else other}')]
    if other is not None: r.append(I(f'v_writelane_b32 v{vd}, {sa}, 0'))
    r.append(I(f'v_writelane_b32 v{vd}, {sb}, 1'))
    return r

def cnt_add(va, vone, tag):
    return [I(f'v_mov_b32 v{vone}, 1'), I(f'buffer_atomic_add v{vone}, v{va}, s[{SRD_Z}:{SRD_Z+3}], 0 offen', tag=tag)]

def cnt_addr(va, off_sreg_expr_code, cond_code=None):
    r = flat([x if isinstance(x, list) else [x] for x in off_sreg_expr_code])
    r += [I(f's_cmp_eq_u32 s{S_WAVE}, 0'), I(f's_cselect_b32 s64, s64, {OOB:#x}'),
          I(f'v_mov_b32 v{va}, {OOB:#x}'), I(f'v_writelane_b32 v{va}, s64, 0')]
    return r

def act_lane_offset(c):
    A = lambda t, **k: c.append(I(t, **k))
    A(f'v_lshrrev_b32 v32, 4, v{V_T}'); A(f'v_mul_u32_u24 v32, {NKS*1024}, v32')
    A(f'v_and_b32 v33, 15, v{V_T}'); A(f'v_lshl_add_u32 v33, v{V_HH}, 4, v33')
    A(f'v_lshl_add_u32 v{V_ACTL}, v33, 4, v32')
    A(f's_lshl_b32 s{S_T0}, s{S_I}, 2'); A(f's_add_u32 s{S_T0}, s{S_T0}, s{S_WAVE}')
    A(f's_mul_i32 s{S_T0}, s{S_T0}, {2*NKS*1024}')
    srd(c, SRD_ACT, S_WS, f's{S_T0}', 2 * NKS * 1024)

def x_read_addrs(c):
    A = lambda t, **k: c.append(I(t, **k))
    A(f'v_lshrrev_b32 v32, 1, v{V_T}'); A('v_and_b32 v32, 7, v32'); A(f'v_xor_b32 v32, v{V_HH}, v32')
    A(f'v_lshlrev_b32 v33, 7, v{V_T}'); A(f'v_add_u32 v33, s{S_W4K}, v33'); A('v_add_u32 v33, 0x10000, v33')
    for sub in range(4):
        A(f'v_xor_b32 v34, {2*sub}, v32'); A(f'v_lshl_add_u32 v{V_XR+sub}, v34, 4, v33')

def p4_ids(c):
    A = lambda t, **k: c.append(I(t, **k))
    A(f's_and_b32 s{S_PT}, s{S_I}, 11'); A(f's_and_b32 s{S_T0}, s{S_J}, 4'); A(f's_add_u32 s{S_PT}, s{S_PT}, s{S_T0}')
    A(f's_lshr_b32 s{S_PC}, s{S_J}, 3'); A(f's_lshl_b32 s{S_PC}, s{S_PC}, 2')
    A(f's_and_b32 s{S_T0}, s{S_J}, 1'); A(f's_lshl_b32 s{S_T0}, s{S_T0}, 1'); A(f's_add_u32 s{S_PC}, s{S_PC}, s{S_T0}')
    A(f's_bfe_u32 s{S_T0}, s{S_I}, 0x10002'); A(f's_add_u32 s{S_PC}, s{S_PC}, s{S_T0}')

def stat_partial(xt, t0, dst):
    r = [I(f'v_mov_b32 v{t0+4+k}, 0') for k in range(4)]
    for k in range(16):
        lo, hi = t0 + 2 * (k & 1), t0 + 2 * (k & 1) + 1
        r += [I(f'v_lshlrev_b32 v{lo}, 16, v{xt+k}'), I(f'v_and_b32 v{hi}, s{S_MASK}, v{xt+k}'),
              I(f'v_add_f32 v{t0+4}, v{t0+4}, v{lo}'), I(f'v_add_f32 v{t0+5}, v{t0+5}, v{hi}'),
              I(f'v_fmac_f32 v{t0+6}, v{lo}, v{lo}'), I(f'v_fmac_f32 v{t0+7}, v{hi}, v{hi}')]
    r += [I(f'v_add_f32 v{dst}, v{t0+4}, v{t0+5}'), I(f'v_add_f32 v{t0+6}, v{t0+6}, v{t0+7}'),
          I(f'v_permlane32_swap_b32 v{dst}, v{t0+6}'), I(f'v_add_f32 v{dst}, v{dst}, v{t0+6}')]
    return r

def stat_addr(va):
    return [I(f's_lshl_b32 s64, s{S_I}, 2'), I(f's_add_u32 s64, s64, s{S_WAVE}'), I('s_lshl_b32 s64, s64, 8'), I(f's_add_u32 s64, s64, {Z_STAT}'),
            I(f's_lshr_b32 s65, 0x0aff, s{S_J}'), I('s_and_b32 s65, s65, 1'), I('s_cmp_eq_u32 s65, 1'), I(f's_cselect_b32 s64, s64, {OOB:#x}'),
            I(f'v_lshlrev_b32 v{va}, 3, v{V_T}'), I(f'v_lshl_add_u32 v{va}, v{V_HH}, 2, v{va}'), I(f'v_add_u32 v{va}, s64, v{va}')]

def ln_final(vs, bmu, t0, V_RS=V_RS, V_MU=V_MU):
    A = []
    a = lambda t: A.append(I(t))
    a(f'v_mul_f32 v{V_MU}, {1.0/640!r}, v{vs}'); a(f'v_mul_f32 v{t0}, {1.0/640!r}, v{vs+1}')
    a(f'v_fma_f32 v{t0}, -v{V_MU}, v{V_MU}, v{t0}'); a(f'v_max_f32 v{t0}, 0, v{t0}'); a(f'v_add_f32 v{t0}, 0x3727c5ac, v{t0}')
    a(f'v_rsq_f32 v{V_RS}, v{t0}')
    n, hf, r1, mf, r2 = t0, t0 + 1, t0 + 2, t0 + 1, t0
    a(f'v_sub_f32 v{n}, 0, v{V_MU}')
    a(f'v_cvt_pk_bf16_f32 v{bmu}, v{n}, v{n}')
    a(f'v_and_b32 v{hf}, s{S_MASK}, v{bmu}'); a(f'v_sub_f32 v{r1}, v{n}, v{hf}')
    a(f'v_cvt_pk_bf16_f32 v{bmu+1}, v{r1}, v{n}')
    a(f'v_lshlrev_b32 v{mf}, 16, v{bmu+1}'); a(f'v_sub_f32 v{r2}, v{r1}, v{mf}')
    a(f'v_cvt_pk_bf16_f32 v{bmu+2}, v{r2}, v{r1}')
    a(f'v_cmp_eq_u32 vcc, 0, v{V_HH}')
    a(f'v_mov_b32 v{bmu+3}, 0'); a(f'v_mov_b32 v{bmu+7}, 0')
    for k in range(3): a(f'v_cndmask_b32 v{bmu+4+k}, v{bmu+k}, v{bmu+3}, vcc')
    for k in range(3): a(f'v_cndmask_b32 v{bmu+k}, v{bmu+3}, v{bmu+k}, vcc')
    return A

def cs_frag(vc, dst, t0):
    return [I(f'v_cvt_pk_bf16_f32 v{t0}, v{vc}, v{vc}'), I(f'v_and_b32 v{t0}, s{S_MASK}, v{t0}'), I(f'v_sub_f32 v{t0}, v{vc}, v{t0}'),
            I(f'v_cvt_pk_bf16_f32 v{dst}, v{vc}, v{t0}'), I(f'v_and_b32 v{t0+1}, s{S_MASK}, v{dst}'), I(f'v_sub_f32 v{t0}, v{t0}, v{t0+1}'),
            I(f'v_cvt_pk_bf16_f32 v{dst+1}, v{vc}, v{t0}'), I(f'v_mov_b32 v{dst+2}, v{dst}')]

def gemm(stream, st, st0, nst, ntile, acc, afr, bfr, reads, nxt_reads, pfx, hooks=None, sync_pre=None, sync_post=None,
         sync_tags=None, final_sync=True, xhook=None, gaps=None, sg=2, pre_stage=None):
    main = []
    hooks = hooks or {}
    nk = nst * 4
    h = ntile // 2
    SE = OPT['se']
    for s in range(nk):
        n = st0 + s // 4
        sp = s % 4
        last = sp == 3
        sync = last and (s + 1 < nk or final_sync)
        rd = []
        if s + 1 < nk:
            if xhook: rd += xhook(s + 1)
            for T in range(ntile):
                for ins in reads(n + (1 if last else 0), (s + 1) % 4, T, afr(s + 1, T)):
                    ins.tag = f'{pfx}{s+1}{"a" if T < h else "b"}'; rd.append(ins)
        else:
            rd = nxt_reads
        rgaps = list(range(sg if last else 0, ntile))
        share = [[] for _ in rgaps]
        for k, ins in enumerate(rd): share[k * len(rgaps) // max(len(rd), 1)].append(ins)
        for T in range(ntile):
            g = []
            if T == sg and sync:
                if sync_pre: g += sync_pre(n)
                tg_ = [f'w{n+1}', f'x{n+1}'] + (sync_tags(n) if sync_tags else [])
                stream.issued(tg_)
                g.append(WaitTag(tg_, lgkm0=True))
            elif T == h: g.append(WaitLg(f'{pfx}{s}b'))
            elif T == 0: g.append(WaitLg(f'{pfx}{s}a'))
            if T == 0 and pre_stage and (s in pre_stage): g += pre_stage[s]
            cc = '0' if s == 0 else acc(T)
            g.append(I(f'v_mfma_f32_32x32x16_bf16 {acc(T)}, {ar(afr(s,T))}, {bfr(s)}, {cc}'))
            if T == sg and sync:
                g.append(I('s_barrier'))
                if SE and (n % SE == 0): st(g, f'S{n+1}')
                stream.release(n + 1)
                if sync_post: g += sync_post(n)
            g += hooks.get((s, T), [])
            if T in rgaps: g += share[rgaps.index(T)]
            cb = hooks.get(('cb', s, T))
            if cb: cb()
            post = []
            for _ in range(gaps(s).count(T)): post += stream.take(1)
            main.append((g, post))
    return main

def finish(c, rep=None):
    c = place_m0(c)
    c = insert_waits(c, rep)
    c = insert_hazard_nops(c, rep)
    return c

def kd(name, vgpr, agpr_off, sgpr=96):
    return f""".amdhsa_kernel {name}
  .amdhsa_next_free_vgpr {vgpr}
  .amdhsa_next_free_sgpr {sgpr}
  .amdhsa_accum_offset {agpr_off}
  .amdhsa_group_segment_fixed_size 0
  .amdhsa_kernarg_size 88
  .amdhsa_user_sgpr_count 2
  .amdhsa_user_sgpr_kernarg_segment_ptr 1
  .amdhsa_system_sgpr_workgroup_id_x 1
.end_amdhsa_kernel
"""

def spread(items, g0, g1, gmax=None):
    n = len(items)
    return [(g0 + (g1 - g0) * k // n, it, gmax if gmax is not None else g1 + 4) for k, it in enumerate(items)]

def atoms(code):
    out = []
    for x in code:
        if isinstance(x, list): out.append(x); continue
        op = getattr(x, 'op', '')
        reads_scc = op in ('s_cselect_b32', 's_cselect_b64', 's_addc_u32', 's_subb_u32') or op.startswith('s_cbranch_scc')
        if reads_scc and out:
            prev = out[-1] if isinstance(out[-1], list) else [out[-1]]
            out[-1] = prev + [x]
        else:
            out.append(x)
    return out

def rep_addr(va, off, cond, shard):
    return [cond + [I(f's_cselect_b32 s64, 0, {OOB:#x}')],
            I(f's_or_b32 s64, s64, s{S_W0}'), shard + [I('s_lshl_b32 s65, s65, 7'), I('s_add_u32 s64, s64, s65')],
            I(f'v_lshlrev_b32 v{va}, {TSH}, v{V_LANE}'), I(f'v_add_u32 v{va}, {off}, v{va}'),
            [I(f'v_cmp_gt_u32 vcc, 16, v{V_LANE}'), I(f'v_mov_b32 v{va+1}, {OOB:#x}'), I(f'v_cndmask_b32 v{va}, v{va+1}, v{va}, vcc')],
            I(f'v_add_u32 v{va}, s64, v{va}')]

def tline(tile, off, dst='s64'):
    return [I(f's_lshl_b32 {dst}, s{tile}, {TSH}')] + ([I(f's_add_u32 {dst}, {dst}, {off}')] if off else [])

def rline(off, dst='s64'):
    return [I(f's_lshl_b32 {dst}, s{S_J}, {RSH}'), I(f's_add_u32 {dst}, {dst}, {Z_CNT_R + off}')]

def wave_shard(dst='s64', t='s65'):
    return [I(f's_lshl_b32 {t}, s{S_WAVE}, 7'), I(f's_add_u32 {dst}, {dst}, {t}')]

def poll_shards(va, ve, sbase, n, exp):
    return [I(f'v_min_u32 v{va}, {n-1}, v{V_LANE}'), I(f'v_lshl_add_u32 v{va}, v{va}, 7, {sbase}'), I(f'v_mov_b32 v{ve}, {exp}')]

def poll_weights(va, ve, sbase, n):
    return [I(f'v_min_u32 v{ve}, {n-1}, v{V_LANE}'), I(f'v_lshl_add_u32 v{va}, v{ve}, 7, {sbase}'), I(f'v_lshrrev_b32 v{ve}, 2, v{ve}'),
            I(f'v_mul_u32_u24 v{ve}, v{ve}, v{ve}'), I(f'v_sub_u32 v{ve}, 14, v{ve}')]

V_TX, V_TW, V_TD = 60, 61, 62
def touch_x_setup(vtx, t0):
    return [I(f's_and_b32 s64, s{S_J}, 3'), I('s_lshl_b32 s64, s64, 5'), I(f's_lshl_b32 s65, s{S_WAVE}, 3'), I('s_add_u32 s64, s64, s65'),
            I(f'v_lshrrev_b32 v{t0}, 1, v{V_LANE}'), I(f'v_add_u32 v{t0}, s64, v{t0}'), I(f'v_mul_u32_u24 v{t0}, 1280, v{t0}'),
            I(f'v_and_b32 v{t0+1}, 1, v{V_LANE}'), I(f'v_lshl_add_u32 v{t0}, v{t0+1}, 6, v{t0}'),
            I(f'v_cmp_gt_u32 vcc, 16, v{V_LANE}'), I(f'v_mov_b32 v{t0+1}, {OOB:#x}'), I(f'v_cndmask_b32 v{vtx}, v{t0+1}, v{t0}, vcc')]

def stage1_issue(c, stream, p1, n1=None):
    pace = OPT.get('pace', 0); n1 = OPT['p1'] if n1 is None else n1
    if pace == 0:
        c.extend(flat(x_dma(1))); c.extend(flat(p1[:n1])); rest = p1[n1:]
    elif pace == 1:
        c.append(WaitTag('x0')); c.extend(flat(x_dma(1)))
        if n1: c.append(WaitTag('w0a')); c.extend(flat(p1[:n1]))
        rest = p1[n1:]
    elif pace == 2:
        rest = x_dma(1) + p1
    elif pace == 3:
        c.append(WaitTag('x0')); c.extend(flat(p1[:n1])); rest = x_dma(1) + p1[n1:]
    return rest
```

```python
from ir import *
from layout4 import *

def vr(b, n=4): return f'v[{b}:{b+n-1}]'
def ar(b, n=4): return f'a[{b}:{b+n-1}]'
K = 1024
OOB = 0x40000000

S_X, S_WQKV, S_WPHI, S_WO, S_BX, S_WG, S_WU, S_WD = 16, 18, 20, 22, 24, 26, 28, 30
S_OUT, S_DBG, S_WS = 32, 34, 36
S_WAVE, S_I, S_J, S_T0, S_T1, S_W4K = 38, 39, 40, 41, 42, 43
SRD_X, SRD_W, SRD_W2, SRD_ACT, SRD_Z = 44, 48, 52, 56, 60
SRD_T, SRD_T2 = 4, 12
S_SOFF, S_SOFF2, S_ROLE, S_MASK = 8, 9, 10, 11
S_KB = 76
S_PT, S_PC = 86, 87
S_W5K = 3
V_LANE, V_T, V_HH = 1, 2, 3
V_RS, V_MU = 4, 5
V_ACTL, V_ST = 6, 7
V_DMA, V_XR = 8, 12
XBASE = 96 * K
SLOT_A = (0, 32 * K, 64 * K)

OPT = dict(cpf=True, se=2, nm=4, nb=12, p1=4, g0=6, ea=3, la=0, h2g=60, hsig=40, osig=40)
if MLPV != '5': OPT.update(la=4, h2g=75)
if MLPV == '7': OPT.update(la=0, ea=2, h2g=75)
if MLPV == '8': OPT.update(la=2, ea=3, h2chk=3, pback=2, zearly=1, wlim=2, late1a=1, wpx=1, tswap=1, wchk=16, hchk=17, late1m=1, kvp=190, kvc=290, p1a=5, wlim2=4, pbfin=0, kvt=0, wde=1, h2gw=14, osig=16, p4early=2, gx=30, xq=2, lfirst=0)

_lab = [0]
class Ring:
    def __init__(self): self.alloc = []; self.nb = {}
    def add_at(self, base, size, not_before=-1):
        self.alloc.append((base, size)); self.nb[len(self.alloc) - 1] = not_before
    def free_after(self, n):
        b, s = self.alloc[n]
        last = self.nb.get(n, -1)
        for m in range(n):
            bm, sm = self.alloc[m]
            if bm < b + s and b < bm + sm: last = max(last, m)
        return last

class Stream:
    def __init__(self, ring, pieces):
        self.ring = ring; self.pieces = pieces
        self.next = 0; self.queue = []; self.n = len(ring.alloc); self.limit = self.n
    def release(self, lim):
        self.lim = lim
        while self.next < min(self.n, self.limit) and self.ring.free_after(self.next) < lim:
            self.queue += self.pieces(self.next); self.next += 1
    def push_front(self, groups): self.queue = list(groups) + self.queue
    def insert_after(self, tag, groups):
        k = 0
        for j, g in enumerate(self.queue):
            if any(getattr(i, 'tag', None) == tag for i in g): k = j + 1
        self.queue[k:k] = list(groups)
    def take(self, k):
        out = []
        for _ in range(min(k, len(self.queue))): out += self.queue.pop(0)
        return out
    def flush(self): return self.take(len(self.queue))
    def issued(self, tags, st0=0):
        for g in self.queue:
            for i in g: assert getattr(i, 'tag', None) not in tags, f'awaited piece still queued: {i.tag}'
        for t in tags:
            if t[0] == 'w' and t[1:].isdigit(): assert int(t[1:]) < self.next or int(t[1:]) >= self.n, f'awaited stage not released: {t}'

class Stamps:
    def __init__(self, on, vreg=0, sreg=100): self.on = on; self.n = 0; self.v = vreg; self.s = sreg; self.pending = False; self.names = []
    def _commit(self, c):
        if self.pending:
            c.append(I('s_waitcnt lgkmcnt(0)'))
            c.append(I(f'v_writelane_b32 v{self.v}, s{self.s}, {self.n}')); self.n += 1; self.pending = False
    def __call__(self, c, name=''):
        if not self.on: return
        self._commit(c)
        c.append(I(f's_memtime s[{self.s}:{self.s+1}]')); self.pending = True; self.names.append(name)
    def real(self, c, name='real'):
        if not self.on: return
        self._commit(c)
        c.append(I(f's_memrealtime s[{self.s}:{self.s+1}]')); self.pending = True; self.names.append(name)
    def copy(self):
        o = Stamps(self.on, self.v, self.s); o.n = self.n; o.pending = self.pending; o.names = list(self.names); return o
    def dump(self, c, sel=None):
        if not self.on: return
        A = lambda t: c.append(I(t))
        self._commit(c)
        if sel is not None:
            wg, word0, names = sel
            A('s_waitcnt vmcnt(0) lgkmcnt(0)')
            A(f's_cmp_eq_u32 s2, {wg}'); A('s_cselect_b32 s6, 64, 0'); A(f's_cmp_eq_u32 s{S_WAVE}, 0'); A('s_cselect_b32 s6, s6, 0')
            A(f's_mov_b32 s4, s{S_DBG}'); A(f's_mov_b32 s5, s{S_DBG+1}'); A('s_mov_b32 s7, 0x00020000')
            for k, nme in enumerate(names):
                A(f'v_readlane_b32 s64, v{self.v}, {self.names.index(nme) if nme != "real2" else len(self.names) - 1}')
                A('s_nop 4')
                A('v_mov_b32 v1, s64'); A(f'v_mov_b32 v2, {(word0 + k) * 4}')
                A('buffer_store_dword v1, v2, s[4:7], 0 offen')
            A('s_waitcnt vmcnt(0)')
            return
        A('s_waitcnt vmcnt(0) lgkmcnt(0)')
        A(f's_lshl_b32 s64, s2, 2'); A(f's_add_u32 s64, s64, s{S_WAVE}'); A('s_lshl_b32 s64, s64, 8')
        A(f's_add_u32 s64, s64, {STAMP_OFF}')
        A(f's_add_u32 s4, s{S_WS}, s64'); A(f's_addc_u32 s5, s{S_WS+1}, 0')
        A('s_mov_b32 s6, 256'); A('s_mov_b32 s7, 0x00020000')
        A('v_mbcnt_lo_u32_b32 v1, -1, 0'); A('v_mbcnt_hi_u32_b32 v1, -1, v1'); A('v_lshlrev_b32 v1, 2, v1')
        A(f'buffer_store_dword v{self.v}, v1, s[4:7], 0 offen'); A('s_waitcnt vmcnt(0)')

def srd(c, d, base, off, nrec):
    if off is None:
        c += [I(f's_mov_b32 s{d}, s{base}'), I(f's_mov_b32 s{d+1}, s{base+1}')]
    else:
        c += [I(f's_add_u32 s{d}, s{base}, {off}'), I(f's_addc_u32 s{d+1}, s{base+1}, 0')]
    if nrec is not None: c.append(I(f's_mov_b32 s{d+2}, {nrec}'))
    c.append(I(f's_mov_b32 s{d+3}, 0x00020000'))

def code_prefetch(c, regions, vdst):
    A = lambda t, **k: c.append(I(t, **k))
    A('s_getpc_b64 s[4:5]')
    A('L_pc:')
    A('s_lshr_b32 s3, s2, 3'); A('s_lshl_b32 s3, s3, 9')
    A('v_lshrrev_b32 v33, 6, v0'); A('v_lshl_add_u32 v33, v33, 7, s3')
    A('v_and_b32 v34, 63, v0'); A('v_lshl_add_u32 v32, v34, 14, v33')
    lane = 0
    for lab, nblk in regions:
        if lane:
            A(f's_mov_b32 s3, {lab}-L_pc-{lane*16384}'); A(f'v_cmp_le_u32 vcc, {lane}, v34')
            A('v_lshl_add_u32 v35, v34, 14, v33'); A('v_add_u32 v35, s3, v35')
            A('v_cndmask_b32 v32, v32, v35, vcc')
        lane += nblk
    A('s_mov_b32 s6, L_code_end-L_pc'); A('s_mov_b32 s7, 0x00020000')
    A(f'v_cmp_le_u32 vcc, {lane}, v34'); A(f'v_mov_b32 v35, {OOB:#x}'); A('v_cndmask_b32 v32, v32, v35, vcc')
    A(f'buffer_load_dword v{vdst}, v32, s[4:7], 0 offen', tag='cpf')

def emit_wgmap(c):
    c += [I(f's_and_b32 s{S_T0}, s2, 7'), I(f's_lshr_b32 s{S_T1}, s2, 3'),
          I(f's_and_b32 s{S_I}, s{S_T0}, 1'), I(f's_lshl_b32 s{S_I}, s{S_I}, 3'),
          I(f's_and_b32 s{S_J}, s{S_T1}, 7'), I(f's_add_u32 s{S_I}, s{S_I}, s{S_J}'),
          I(f's_lshr_b32 s{S_J}, s{S_T0}, 1'), I(f's_lshl_b32 s{S_J}, s{S_J}, 2'),
          I(f's_lshr_b32 s{S_T1}, s{S_T1}, 3'), I(f's_add_u32 s{S_J}, s{S_J}, s{S_T1}')]

def kb_entry(n):
    if n == 0: return []
    return [I(f's_add_u32 s{S_KB+n}, s{S_KB+n-1}, 128'), I(f's_cmp_eq_u32 s{S_KB+n}, 1280'), I(f's_cselect_b32 s{S_KB+n}, 0, s{S_KB+n}')]

def x_dma(n):
    return [[dma(f'buffer_load_dwordx4 v{V_DMA+q}, s[{SRD_X}:{SRD_X+3}], s{S_KB+n} offen offset:{q*1024} lds',
                 (S_W4K, XBASE + (n % 2) * 16384), tag=f'x{n}')] for q in range(4)]

def x_read(n, sub, dst, tag=None):
    return I(f'ds_read_b128 {dst}, v{V_XR+sub} offset:{XBASE - 65536 + (n % 2) * 16384}', tag=tag)

def flat(groups): return [i for g in groups for i in g]

def prologue(c, st, regions):
    A = lambda t, **k: c.append(I(t, **k))
    A('s_load_dwordx16 s[16:31], s[0:1], 0')
    A('s_load_dwordx4 s[32:35], s[0:1], 64')
    A('s_load_dwordx2 s[36:37], s[0:1], 80')
    if OPT['cpf'] and not OPT.get('cpfl'): code_prefetch(c, regions, V_MU)
    A(f'v_and_b32 v{V_LANE}, 63, v0')
    A('v_lshrrev_b32 v32, 6, v0')
    A(f'v_lshrrev_b32 v33, 3, v{V_LANE}')
    A(f'v_readfirstlane_b32 s{S_WAVE}, v32')
    A(f'v_and_b32 v34, 7, v{V_LANE}')
    A('v_lshrrev_b32 v35, 1, v33')
    A('v_xor_b32 v34, v34, v35')
    A('v_mul_u32_u24 v33, 1280, v33')
    for q in range(4):
        A(f'v_xor_b32 v35, {4*(q&1)}, v34')
        A(f'v_lshl_add_u32 v35, v35, 4, v33')
        A(f'v_add_u32 v{V_DMA+q}, {q*(8*1280-1024)}, v35')
    emit_wgmap(c)
    A(f's_and_b32 s{S_T0}, s{S_J}, 3'); A(f's_mul_i32 s{S_T0}, s{S_T0}, 5'); A(f's_lshr_b32 s{S_T0}, s{S_T0}, 1')
    A(f's_lshr_b32 s{S_T1}, s{S_J}, 2'); A(f's_add_u32 s{S_T0}, s{S_T0}, s{S_T1}')
    rot = OPT.get('rot', 'ij')
    if rot == 'ij': A(f's_add_u32 s{S_T0}, s{S_T0}, s{S_I}')
    if rot == 'i5':
        A(f's_and_b32 s{S_T1}, s{S_I}, 7'); A(f's_lshl_b32 s{S_T1}, s{S_T1}, 2'); A(f's_lshr_b32 s{S_T1}, 0x42086420, s{S_T1}'); A(f's_and_b32 s{S_T1}, s{S_T1}, 15')
        A(f's_add_u32 s{S_T0}, s{S_T0}, s{S_T1}'); A(f's_lshr_b32 s{S_T1}, s{S_I}, 3'); A(f's_add_u32 s{S_T0}, s{S_T0}, s{S_T1}')
    if rot == 'i4':
        A(f's_and_b32 s{S_T1}, s{S_I}, 7'); A(f's_lshl_b32 s{S_T1}, s{S_T1}, 2'); A(f's_lshr_b32 s{S_T1}, 0x85308530, s{S_T1}'); A(f's_and_b32 s{S_T1}, s{S_T1}, 15')
        A(f's_add_u32 s{S_T0}, s{S_T0}, s{S_T1}'); A(f's_lshr_b32 s{S_T1}, s{S_I}, 3'); A(f's_add_u32 s{S_T0}, s{S_T0}, s{S_T1}')
    if rot == 'i': A(f's_mov_b32 s{S_T0}, s{S_I}')
    if rot == '0': A(f's_mov_b32 s{S_T0}, 0')
    if rot == 'x4':
        A(f's_lshr_b32 s{S_T1}, s{S_J}, 2'); A(f's_lshl_b32 s{S_T1}, s{S_T1}, 2'); A(f's_lshr_b32 s{S_T0}, 0x8630, s{S_T1}'); A(f's_and_b32 s{S_T0}, s{S_T0}, 15')
        A(f's_lshr_b32 s{S_T1}, s{S_I}, 3'); A(f's_mul_i32 s{S_T1}, s{S_T1}, 5'); A(f's_add_u32 s{S_T0}, s{S_T0}, s{S_T1}')
    if rot == 'x2':
        A(f's_lshr_b32 s{S_T1}, s{S_J}, 2'); A(f's_lshl_b32 s{S_T1}, s{S_T1}, 2'); A(f's_lshr_b32 s{S_T0}, 0x8630, s{S_T1}'); A(f's_and_b32 s{S_T0}, s{S_T0}, 15')
        A(f's_and_b32 s{S_T1}, s{S_I}, 1'); A(f's_mul_i32 s{S_T1}, s{S_T1}, 5'); A(f's_add_u32 s{S_T0}, s{S_T0}, s{S_T1}')
    for _ in range(2 if rot in ('ij', 'i', '0') else 3):
        A(f's_sub_u32 s{S_T1}, s{S_T0}, 10'); A(f's_cmp_ge_u32 s{S_T0}, 10'); A(f's_cselect_b32 s{S_T0}, s{S_T1}, s{S_T0}')
    A(f's_lshl_b32 s{S_KB}, s{S_T0}, 7')
    A(f's_lshl_b32 s{S_T0}, s{S_I}, 2'); A(f's_add_u32 s{S_T0}, s{S_T0}, s{S_WAVE}')
    A(f's_mul_i32 s{S_T1}, s{S_T0}, {32*1280}')
    A(f's_lshl_b32 s{S_W4K}, s{S_WAVE}, 12')
    A(f's_cmp_eq_u32 s{S_WAVE}, 0'); A(f's_cselect_b32 s73, 0, {OOB:#x}')
    A('s_waitcnt lgkmcnt(0)')
    srd(c, SRD_X, S_X, f's{S_T1}', 32 * 1280)
    if OPT.get('zearly'): zero_stores(c, 40)
    c.extend(flat(x_dma(0)))
    if OPT['cpf'] and OPT.get('cpfl'): code_prefetch(c, regions, V_MU)
    A(f'v_and_b32 v{V_T}, 31, v{V_LANE}')
    A(f'v_lshrrev_b32 v{V_HH}, 5, v{V_LANE}')
    A(f's_lshr_b32 s{S_ROLE}, s{S_J}, 2'); A(f's_lshl_b32 s{S_ROLE}, s{S_ROLE}, 1')
    A(f's_and_b32 s{S_T0}, s{S_J}, 1'); A(f's_add_u32 s{S_ROLE}, s{S_ROLE}, s{S_T0}')
    c.extend(kb_entry(1))

TAIL = []
def zero_stores(c, vt):
    A = lambda t, **k: c.append(I(t, **k))
    body = []
    B = lambda t, **k: body.append(I(t, **k))
    B(f's_mul_i32 s{S_T0}, s{S_J}, {Z_SHARE}'); B(f's_add_u32 s{S_T0}, s{S_T0}, {Z_OFF}')
    srd(body, SRD_T2, S_WS, f's{S_T0}', Z_SHARE)
    for k in range(4): B(f'v_mov_b32 v{vt+k}, 0')
    B(f'v_lshlrev_b32 v{vt+4}, 4, v{V_LANE}'); B(f'v_add_u32 v{vt+4}, s{S_W4K}, v{vt+4}')
    B(f's_lshl_b32 s{S_T0}, s{S_WAVE}, 10'); B(f's_add_u32 s{S_T0}, s{S_T0}, 16384'); B(f'v_lshl_add_u32 v{vt+5}, v{V_LANE}, 4, s{S_T0}')
    B('s_nop 1')
    for k in range(4):
        B(f'buffer_store_dwordx4 {vr(vt)}, v{vt+4}, s[{SRD_T2}:{SRD_T2+3}], 0 offen offset:{k*1024} sc1')
    B(f'buffer_store_dwordx4 {vr(vt)}, v{vt+5}, s[{SRD_T2}:{SRD_T2+3}], 0 offen sc1')
    A(f's_cmp_eq_u32 s{S_I}, 0'); A('s_cbranch_scc1 L_zs'); A('L_zs_ret:')
    mark = I('s_nop 0', tag='zero'); mark.kind = 'vstore'; c.append(mark)
    TAIL.append([I('L_zs:')] + body + [I('s_branch L_zs_ret')])

def zero_early(c, vt):
    _lab[0] += 1; L = f'L_zf_{_lab[0]}'
    k = max(i for i, x in enumerate(ALLC[0] + c) if getattr(x, 'tag', None) == 'zero')
    younger = sum(1 for x in (ALLC[0] + c)[k+1:] if x.kind in VM_KINDS)
    c.extend([I(f's_mov_b32 s{SRD_T2+3}, 0x00020000'), I(f's_cmp_eq_u32 s{S_I}, 0'), I(f's_cbranch_scc1 {L}'), I(f'{L}_ret:')])
    TAIL.append([I(f'{L}:'), I(f's_waitcnt vmcnt({younger})'), I('s_barrier')] + zero_flag(vt) + [I(f's_branch {L}_ret')])
ALLC = [[]]

def tlb_touch(c, vt, srd_, with_wo):
    A = lambda t, **k: c.append(I(t, **k))
    A(f'v_lshlrev_b32 v{vt}, 21, v{V_LANE}'); A(f'v_add_u32 v{vt}, {OPT.get("tlboff", 0x1fff80)}, v{vt}')
    srd(c, srd_, S_WS, None, 0x1A00000)
    A(f'buffer_load_dword v{vt+1}, v{vt}, s[{srd_}:{srd_+3}], 0 offen', tag='tlb')
    A(f'v_lshlrev_b32 v{vt}, 20, v{V_LANE}')
    for ptr, size in ((S_OUT, S * D * 2), (S_WD, F * D * 2)) + (((S_WO, D * D * 2),) if with_wo else ()):
        srd(c, srd_, ptr, None, size)
        A(f'buffer_load_dword v{vt+1}, v{vt}, s[{srd_}:{srd_+3}], 0 offen', tag='tlb')

def zero_flag(vt):
    return [I(f's_or_b32 s{S_T0}, s{S_I}, s{S_WAVE}'), I(f's_cmp_eq_u32 s{S_T0}, 0'), I(f's_cselect_b32 s{SRD_T2+2}, 64, 0'),
            I(f's_add_u32 s{SRD_T2}, s{S_DBG}, {OPT.get("dbgoff", 0)}'), I(f's_addc_u32 s{SRD_T2+1}, s{S_DBG+1}, 0'),
            I(f's_lshl_b32 s{S_T0}, s{S_J}, 2'),
            I(f'v_mov_b32 v{vt}, 1'), I(f'v_lshlrev_b32 v{vt+1}, 6, v{V_LANE}'),
            I(f'buffer_store_dword v{vt}, v{vt+1}, s[{SRD_T2}:{SRD_T2+3}], s{S_T0} offen sc1', tag='zf')]

SPIN_SLOTS = ['zd', 'f0', 'wd', 'h01', 'h2', 'kv', 'oc', 'pc']
def poll_check(name, srd_, va, vp, ve):
    if OPT.get('nopoll'): return []
    _lab[0] += 1
    L = f'L_{name}_{_lab[0]}'
    dbg = OPT.get('spin')
    r = ([I('s_mov_b32 s69, 0')] if dbg else []) + [WaitTag(name), I(f'v_cmp_le_u32 vcc, v{ve}, v{vp}'), I('s_nop 1'), I('s_cmp_eq_u64 vcc, -1'), I(f's_cbranch_scc1 {L}_ok'),
         I(f's_cmp_lg_u32 s{S_WAVE}, 0'), I(f's_cbranch_scc1 {L}_ok')]
    ld = lambda: I(f'buffer_load_dword v{vp}, v{va}, s[{srd_}:{srd_+3}], 0 offen sc1')
    sp2 = OPT.get('spin2', 0)
    if sp2:
        r += offpath([I(f's_mov_b32 s69, {1 if dbg else 0}'), ld(), I(f's_sleep {sp2}'), I(f'{L}_spin:'),
                      ld(), I('s_waitcnt vmcnt(1)'),
                      I(f'v_cmp_le_u32 vcc, v{ve}, v{vp}'), I('s_nop 1'), I('s_cmp_eq_u64 vcc, -1'), I(f's_cbranch_scc1 {L}_ok'),
                      I('s_add_u32 s69, s69, 1'), I('s_cmp_lt_u32 s69, 0x8000'), I(f's_cbranch_scc1 {L}_spin')])
    else:
        r += offpath([I(f's_mov_b32 s69, {1 if dbg else 0}'), I(f'{L}_spin:'),
                      ld(), I('s_waitcnt vmcnt(0)'),
                      I(f'v_cmp_le_u32 vcc, v{ve}, v{vp}'), I('s_nop 1'), I('s_cmp_eq_u64 vcc, -1'), I(f's_cbranch_scc1 {L}_ok'),
                      I(f's_sleep {OPT.get("slp", 2)}'), I('s_add_u32 s69, s69, 1'), I('s_cmp_lt_u32 s69, 0x4000'), I(f's_cbranch_scc1 {L}_spin')])
    r.append(I(f'{L}_ok:'))
    if dbg:
        slot = 48 + SPIN_SLOTS.index(name)
        r.append(I(f'v_writelane_b32 v{V_ST}, s69, {slot}'))
    return r

S_W0 = 73
def poll_load(name, srd_, va, vp):
    return I(f'buffer_load_dword v{vp}, v{va}, s[{srd_}:{srd_+3}], s{S_W0} offen sc1', tag=name)

def two_lane(vd, sa, sb, other=None):
    r = [I(f'v_mov_b32 v{vd}, {sa if other is None else other}')]
    if other is not None: r.append(I(f'v_writelane_b32 v{vd}, {sa}, 0'))
    r.append(I(f'v_writelane_b32 v{vd}, {sb}, 1'))
    return r

def cnt_add(va, vone, tag):
    return [I(f'v_mov_b32 v{vone}, 1'), I(f'buffer_atomic_add v{vone}, v{va}, s[{SRD_Z}:{SRD_Z+3}], 0 offen', tag=tag)]

def cnt_addr(va, off_sreg_expr_code, cond_code=None):
    r = flat([x if isinstance(x, list) else [x] for x in off_sreg_expr_code])
    r += [I(f's_cmp_eq_u32 s{S_WAVE}, 0'), I(f's_cselect_b32 s64, s64, {OOB:#x}'),
          I(f'v_mov_b32 v{va}, {OOB:#x}'), I(f'v_writelane_b32 v{va}, s64, 0')]
    return r

def act_lane_offset(c):
    A = lambda t, **k: c.append(I(t, **k))
    A(f'v_lshrrev_b32 v32, 4, v{V_T}'); A(f'v_mul_u32_u24 v32, {NKS*1024}, v32')
    A(f'v_and_b32 v33, 15, v{V_T}'); A(f'v_lshl_add_u32 v33, v{V_HH}, 4, v33')
    A(f'v_lshl_add_u32 v{V_ACTL}, v33, 4, v32')
    A(f's_lshl_b32 s{S_T0}, s{S_I}, 2'); A(f's_add_u32 s{S_T0}, s{S_T0}, s{S_WAVE}')
    A(f's_mul_i32 s{S_T0}, s{S_T0}, {2*NKS*1024}')
    srd(c, SRD_ACT, S_WS, f's{S_T0}', 2 * NKS * 1024)

def x_read_addrs(c):
    A = lambda t, **k: c.append(I(t, **k))
    A(f'v_lshrrev_b32 v32, 1, v{V_T}'); A('v_and_b32 v32, 7, v32'); A(f'v_xor_b32 v32, v{V_HH}, v32')
    A(f'v_lshlrev_b32 v33, 7, v{V_T}'); A(f'v_add_u32 v33, s{S_W4K}, v33'); A('v_add_u32 v33, 0x10000, v33')
    for sub in range(4):
        A(f'v_xor_b32 v34, {2*sub}, v32'); A(f'v_lshl_add_u32 v{V_XR+sub}, v34, 4, v33')

def p4_ids(c):
    A = lambda t, **k: c.append(I(t, **k))
    A(f's_and_b32 s{S_PT}, s{S_I}, 11'); A(f's_and_b32 s{S_T0}, s{S_J}, 4'); A(f's_add_u32 s{S_PT}, s{S_PT}, s{S_T0}')
    A(f's_lshr_b32 s{S_PC}, s{S_J}, 3'); A(f's_lshl_b32 s{S_PC}, s{S_PC}, 2')
    A(f's_and_b32 s{S_T0}, s{S_J}, 1'); A(f's_lshl_b32 s{S_T0}, s{S_T0}, 1'); A(f's_add_u32 s{S_PC}, s{S_PC}, s{S_T0}')
    A(f's_bfe_u32 s{S_T0}, s{S_I}, 0x10002'); A(f's_add_u32 s{S_PC}, s{S_PC}, s{S_T0}')

def stat_partial(xt, t0, dst):
    r = [I(f'v_mov_b32 v{t0+4+k}, 0') for k in range(4)]
    for k in range(16):
        lo, hi = t0 + 2 * (k & 1), t0 + 2 * (k & 1) + 1
        r += [I(f'v_lshlrev_b32 v{lo}, 16, v{xt+k}'), I(f'v_and_b32 v{hi}, s{S_MASK}, v{xt+k}'),
              I(f'v_add_f32 v{t0+4}, v{t0+4}, v{lo}'), I(f'v_add_f32 v{t0+5}, v{t0+5}, v{hi}'),
              I(f'v_fmac_f32 v{t0+6}, v{lo}, v{lo}'), I(f'v_fmac_f32 v{t0+7}, v{hi}, v{hi}')]
    r += [I(f'v_add_f32 v{dst}, v{t0+4}, v{t0+5}'), I(f'v_add_f32 v{t0+6}, v{t0+6}, v{t0+7}'),
          I(f'v_permlane32_swap_b32 v{dst}, v{t0+6}'), I(f'v_add_f32 v{dst}, v{dst}, v{t0+6}')]
    return r

def stat_addr(va):
    return [I(f's_lshl_b32 s64, s{S_I}, 2'), I(f's_add_u32 s64, s64, s{S_WAVE}'), I('s_lshl_b32 s64, s64, 8'), I(f's_add_u32 s64, s64, {Z_STAT}'),
            I(f's_lshr_b32 s65, 0x0aff, s{S_J}'), I('s_and_b32 s65, s65, 1'), I('s_cmp_eq_u32 s65, 1'), I(f's_cselect_b32 s64, s64, {OOB:#x}'),
            I(f'v_lshlrev_b32 v{va}, 3, v{V_T}'), I(f'v_lshl_add_u32 v{va}, v{V_HH}, 2, v{va}'), I(f'v_add_u32 v{va}, s64, v{va}')]

def ln_final(vs, bmu, t0, V_RS=V_RS, V_MU=V_MU):
    A = []
    a = lambda t: A.append(I(t))
    a(f'v_mul_f32 v{V_MU}, {1.0/640!r}, v{vs}'); a(f'v_mul_f32 v{t0}, {1.0/640!r}, v{vs+1}')
    a(f'v_fma_f32 v{t0}, -v{V_MU}, v{V_MU}, v{t0}'); a(f'v_max_f32 v{t0}, 0, v{t0}'); a(f'v_add_f32 v{t0}, 0x3727c5ac, v{t0}')
    a(f'v_rsq_f32 v{V_RS}, v{t0}')
    n, hf, r1, mf, r2 = t0, t0 + 1, t0 + 2, t0 + 1, t0
    a(f'v_sub_f32 v{n}, 0, v{V_MU}')
    a(f'v_cvt_pk_bf16_f32 v{bmu}, v{n}, v{n}')
    a(f'v_and_b32 v{hf}, s{S_MASK}, v{bmu}'); a(f'v_sub_f32 v{r1}, v{n}, v{hf}')
    a(f'v_cvt_pk_bf16_f32 v{bmu+1}, v{r1}, v{n}')
    a(f'v_lshlrev_b32 v{mf}, 16, v{bmu+1}'); a(f'v_sub_f32 v{r2}, v{r1}, v{mf}')
    a(f'v_cvt_pk_bf16_f32 v{bmu+2}, v{r2}, v{r1}')
    a(f'v_cmp_eq_u32 vcc, 0, v{V_HH}')
    a(f'v_mov_b32 v{bmu+3}, 0'); a(f'v_mov_b32 v{bmu+7}, 0')
    for k in range(3): a(f'v_cndmask_b32 v{bmu+4+k}, v{bmu+k}, v{bmu+3}, vcc')
    for k in range(3): a(f'v_cndmask_b32 v{bmu+k}, v{bmu+3}, v{bmu+k}, vcc')
    return A

def cs_frag(vc, dst, t0):
    return [I(f'v_cvt_pk_bf16_f32 v{t0}, v{vc}, v{vc}'), I(f'v_and_b32 v{t0}, s{S_MASK}, v{t0}'), I(f'v_sub_f32 v{t0}, v{vc}, v{t0}'),
            I(f'v_cvt_pk_bf16_f32 v{dst}, v{vc}, v{t0}'), I(f'v_and_b32 v{t0+1}, s{S_MASK}, v{dst}'), I(f'v_sub_f32 v{t0}, v{t0}, v{t0+1}'),
            I(f'v_cvt_pk_bf16_f32 v{dst+1}, v{vc}, v{t0}'), I(f'v_mov_b32 v{dst+2}, v{dst}')]

def gemm(stream, st, st0, nst, ntile, acc, afr, bfr, reads, nxt_reads, pfx, hooks=None, sync_pre=None, sync_post=None,
         sync_tags=None, final_sync=True, xhook=None, gaps=None, sg=2, pre_stage=None):
    main = []
    hooks = hooks or {}
    nk = nst * 4
    h = ntile // 2
    SE = OPT['se']
    for s in range(nk):
        n = st0 + s // 4
        sp = s % 4
        last = sp == 3
        sync = last and (s + 1 < nk or final_sync)
        rd = []
        if s + 1 < nk:
            if xhook: rd += xhook(s + 1)
            for T in range(ntile):
                for ins in reads(n + (1 if last else 0), (s + 1) % 4, T, afr(s + 1, T)):
                    ins.tag = f'{pfx}{s+1}{"a" if T < h else "b"}'; rd.append(ins)
        else:
            rd = nxt_reads
        rgaps = list(range(sg if last else 0, ntile))
        share = [[] for _ in rgaps]
        for k, ins in enumerate(rd): share[k * len(rgaps) // max(len(rd), 1)].append(ins)
        for T in range(ntile):
            g = []
            if T == sg and sync:
                if sync_pre: g += sync_pre(n)
                tg_ = [f'w{n+1}', f'x{n+1}'] + (sync_tags(n) if sync_tags else [])
                stream.issued(tg_)
                g.append(WaitTag(tg_, lgkm0=True))
            elif T == h: g.append(WaitLg(f'{pfx}{s}b'))
            elif T == 0: g.append(WaitLg(f'{pfx}{s}a'))
            if T == 0 and pre_stage and (s in pre_stage): g += pre_stage[s]
            cc = '0' if s == 0 else acc(T)
            g.append(I(f'v_mfma_f32_32x32x16_bf16 {acc(T)}, {ar(afr(s,T))}, {bfr(s)}, {cc}'))
            if T == sg and sync:
                g.append(I('s_barrier'))
                if SE and (n % SE == 0): st(g, f'S{n+1}')
                stream.release(n + 1)
                if sync_post: g += sync_post(n)
            g += hooks.get((s, T), [])
            if T in rgaps: g += share[rgaps.index(T)]
            cb = hooks.get(('cb', s, T))
            if cb: cb()
            post = []
            for _ in range(gaps(s).count(T)): post += stream.take(1)
            main.append((g, post))
    return main

def finish(c, rep=None):
    c = place_m0(c)
    c = insert_waits(c, rep)
    c = insert_hazard_nops(c, rep)
    return c

def kd(name, vgpr, agpr_off, sgpr=96):
    return f""".amdhsa_kernel {name}
  .amdhsa_next_free_vgpr {vgpr}
  .amdhsa_next_free_sgpr {sgpr}
  .amdhsa_accum_offset {agpr_off}
  .amdhsa_group_segment_fixed_size 0
  .amdhsa_kernarg_size 88
  .amdhsa_user_sgpr_count 2
  .amdhsa_user_sgpr_kernarg_segment_ptr 1
  .amdhsa_system_sgpr_workgroup_id_x 1
.end_amdhsa_kernel
"""

def spread(items, g0, g1, gmax=None):
    n = len(items)
    return [(g0 + (g1 - g0) * k // n, it, gmax if gmax is not None else g1 + 4) for k, it in enumerate(items)]

def atoms(code):
    out = []
    for x in code:
        if isinstance(x, list): out.append(x); continue
        op = getattr(x, 'op', '')
        reads_scc = op in ('s_cselect_b32', 's_cselect_b64', 's_addc_u32', 's_subb_u32') or op.startswith('s_cbranch_scc')
        if reads_scc and out:
            prev = out[-1] if isinstance(out[-1], list) else [out[-1]]
            out[-1] = prev + [x]
        else:
            out.append(x)
    return out

def rep_addr(va, off, cond, shard):
    return [cond + [I(f's_cselect_b32 s64, 0, {OOB:#x}')],
            I(f's_or_b32 s64, s64, s{S_W0}'), shard + [I('s_lshl_b32 s65, s65, 7'), I('s_add_u32 s64, s64, s65')],
            I(f'v_lshlrev_b32 v{va}, {TSH}, v{V_LANE}'), I(f'v_add_u32 v{va}, {off}, v{va}'),
            [I(f'v_cmp_gt_u32 vcc, 16, v{V_LANE}'), I(f'v_mov_b32 v{va+1}, {OOB:#x}'), I(f'v_cndmask_b32 v{va}, v{va+1}, v{va}, vcc')],
            I(f'v_add_u32 v{va}, s64, v{va}')]

def tline(tile, off, dst='s64'):
    return [I(f's_lshl_b32 {dst}, s{tile}, {TSH}')] + ([I(f's_add_u32 {dst}, {dst}, {off}')] if off else [])

def rline(off, dst='s64'):
    return [I(f's_lshl_b32 {dst}, s{S_J}, {RSH}'), I(f's_add_u32 {dst}, {dst}, {Z_CNT_R + off}')]

def wave_shard(dst='s64', t='s65'):
    return [I(f's_lshl_b32 {t}, s{S_WAVE}, 7'), I(f's_add_u32 {dst}, {dst}, {t}')]

def poll_shards(va, ve, sbase, n, exp):
    return [I(f'v_min_u32 v{va}, {n-1}, v{V_LANE}'), I(f'v_lshl_add_u32 v{va}, v{va}, 7, {sbase}'), I(f'v_mov_b32 v{ve}, {exp}')]

def poll_weights(va, ve, sbase, n):
    return [I(f'v_min_u32 v{ve}, {n-1}, v{V_LANE}'), I(f'v_lshl_add_u32 v{va}, v{ve}, 7, {sbase}'), I(f'v_lshrrev_b32 v{ve}, 2, v{ve}'),
            I(f'v_mul_u32_u24 v{ve}, v{ve}, v{ve}'), I(f'v_sub_u32 v{ve}, 14, v{ve}')]

V_TX, V_TW, V_TD = 60, 61, 62
def touch_x_setup(vtx, t0):
    return [I(f's_and_b32 s64, s{S_J}, 3'), I('s_lshl_b32 s64, s64, 5'), I(f's_lshl_b32 s65, s{S_WAVE}, 3'), I('s_add_u32 s64, s64, s65'),
            I(f'v_lshrrev_b32 v{t0}, 1, v{V_LANE}'), I(f'v_add_u32 v{t0}, s64, v{t0}'), I(f'v_mul_u32_u24 v{t0}, 1280, v{t0}'),
            I(f'v_and_b32 v{t0+1}, 1, v{V_LANE}'), I(f'v_lshl_add_u32 v{t0}, v{t0+1}, 6, v{t0}'),
            I(f'v_cmp_gt_u32 vcc, 16, v{V_LANE}'), I(f'v_mov_b32 v{t0+1}, {OOB:#x}'), I(f'v_cndmask_b32 v{vtx}, v{t0+1}, v{t0}, vcc')]

def stage1_issue(c, stream, p1, n1=None):
    pace = OPT.get('pace', 0); n1 = OPT['p1'] if n1 is None else n1
    if pace == 0:
        c.extend(flat(x_dma(1))); c.extend(flat(p1[:n1])); rest = p1[n1:]
    elif pace == 1:
        c.append(WaitTag('x0')); c.extend(flat(x_dma(1)))
        if n1: c.append(WaitTag('w0a')); c.extend(flat(p1[:n1]))
        rest = p1[n1:]
    elif pace == 2:
        rest = x_dma(1) + p1
    elif pace == 3:
        c.append(WaitTag('x0')); c.extend(flat(p1[:n1])); rest = x_dma(1) + p1[n1:]
    return rest


def code_touch(vt, srd_=SRD_T, nblk=4):
    _lab[0] += 1; L = f'L_ct_{_lab[0]}'
    r = [[I(f's_getpc_b64 s[{srd_}:{srd_+1}]'), I(f'{L}:')], I(f's_mov_b32 s{srd_+2}, L_code_end-{L}'), I(f's_mov_b32 s{srd_+3}, 0x00020000'),
         [I(f's_lshl_b32 s69, s{S_WAVE}, 13'), I(f'v_lshl_add_u32 v{vt}, v{V_LANE}, 7, s69')]]
    if nblk < 4: r += [[I(f's_cmp_lt_u32 s{S_WAVE}, {nblk}'), I(f's_cselect_b32 s{srd_+2}, s{srd_+2}, 0')]]
    r.append(I(f'buffer_load_dword v{vt+1}, v{vt}, s[{srd_}:{srd_+3}], 0 offen', tag='ct'))
    return r
```

```python
import sys, copy
from build4 import *
BASE = copy.deepcopy(OPT)
for name, opts in eval(sys.argv[1]).items():
    OPT.clear(); OPT.update(copy.deepcopy(BASE))
    OPT.update(dict(se=1, rot='ij', spin=1)); OPT.update(opts)
    try:
        build(f'var_{name}.s', stamps=True)
        print('ok', name)
    except Exception as e:
        print('FAIL', name, repr(e)[:200])
```
